```python
import torch

def _softmax(x, axis=-1):
    return torch.softmax(x, dim=axis)
def _gelu(x):
    return torch.nn.functional.gelu(x, approximate="tanh")
def _silu(x):
    return torch.nn.functional.silu(x)
def _sigmoid(x):
    return torch.sigmoid(x)
def _layernorm(x, axis=-1, eps=1e-5):
    m = x.mean(dim=axis, keepdim=True)
    v = x.var(dim=axis, keepdim=True, unbiased=False)
    return (x - m) / torch.sqrt(v + eps)
def _scatter_add(tgt, idx, src, axis=0):
    return tgt.clone().index_add_(axis, idx, src)
def _segment_sum(src, seg, n):
    out = torch.zeros((n,) + src.shape[1:], dtype=src.dtype)
    return out.index_add_(0, seg, src)
def _pad(x, pw):
    flat = tuple(v for pair in reversed(pw) for v in pair)
    return torch.nn.functional.pad(x, flat)

kernel_name = 'sequential_preLN__spectral_gfnet__dense_activation_squared_relu__prompt'

def setup_inputs():

    _w = (lambda a: (lambda t: t.to(torch.bfloat16) if t.is_floating_point() else t)(torch.as_tensor(a)))
    def _A_setup():
        B, S, D = 1, 2048, 640
        Df = D // 2 + 1
        return {
            "x": _w((lambda *s: torch.randn(*s, dtype=torch.bfloat16) * 0.05)(B, S, D)),
            "w_r": _w((lambda *s: torch.randn(*s, dtype=torch.bfloat16) * 0.4)(S, Df) * 0.02),
            "w_i": _w((lambda *s: torch.randn(*s, dtype=torch.bfloat16) * 0.4)(S, Df) * 0.02),
        }
    _A_in = _A_setup()

    def _B_setup():
        B, S, D, F = 1, 2048, 640, 1728
        return {
            "x": _w((lambda *s: torch.randn(*s, dtype=torch.bfloat16) * 0.05)(B, S, D)),
            "w1": _w((lambda *s: torch.randn(*s, dtype=torch.bfloat16) * 0.05)(D, F)),
            "b1": _w((lambda *s: torch.randn(*s, dtype=torch.bfloat16) * 0.2)(F)),
            "w2": _w((lambda *s: torch.randn(*s, dtype=torch.bfloat16) * 0.05)(F, D)),
            "b2": _w((lambda *s: torch.randn(*s, dtype=torch.bfloat16) * 1.6)(D)),
        }
    _B_in = _B_setup()

    return {
        "A_x": _A_in["x"],
        "A_w_r": _A_in["w_r"],
        "A_w_i": _A_in["w_i"],
        "B_x": _B_in["x"],
        "B_w1": _B_in["w1"],
        "B_b1": _B_in["b1"],
        "B_w2": _B_in["w2"],
        "B_b2": _B_in["b2"],
    }

def reference(A_x, A_w_r, A_w_i, B_x, B_w1, B_b1, B_w2, B_b2):
    def _A_ref(x, w_r, w_i):
        B, S, D = x.shape
        X = (lambda x, axes=(-2,-1): torch.fft.rfft2(x.float(), dim=axes))(x, axes=(-2, -1))
        W = w_r + 1j * w_i
        X = X * W
        y = (lambda x, s, axes=(-2,-1): torch.fft.irfft2(x, s=s, dim=axes).to(torch.bfloat16))(X, (S, D), axes=(-2, -1))
        return y

    def _B_ref(x, w1, b1, w2, b2):
        h = torch.einsum("bsd,df->bsf", x, w1) + b1
        zero = torch.zeros_like(h)
        r = torch.where(h > zero, h, zero)
        h = r * r
        out = torch.einsum("bsf,fd->bsd", h, w2) + b2
        return out

    x = A_x
    h = x + _A_ref(_layernorm(x, axis=-1), A_w_r, A_w_i)
    h2 = h + _B_ref(_layernorm(h, axis=-1), B_w1, B_b1, B_w2, B_b2)
    return h2
```

```python
import re

def vr(b, n=1, p='v'):
    return f"{p}{b}" if n == 1 else f"{p}[{b}:{b+n-1}]"
def ar(b, n=1): return vr(b, n, 'a')
def sr(b, n=1): return vr(b, n, 's')

class Alloc:
    def __init__(self, start=0, limit=256):
        self.n = start; self.limit = limit; self.hi = start
    def __call__(self, n=1, align=None):
        if align is None: align = 1 if n == 1 else 2
        self.n = (self.n + align - 1) // align * align
        b = self.n; self.n += n
        self.hi = max(self.hi, self.n)
        assert self.n <= self.limit, f"register overflow {self.n}"
        return b
    def mark(self): return self.n
    def reset(self, m): self.n = m

TRANS = ("v_exp_f32", "v_log_f32", "v_rcp_f32", "v_rsq_f32", "v_sqrt_f32", "v_sin_f32", "v_cos_f32", "v_rcp_iflag_f32")

def regs_of(op):
    op = op.strip()
    op = re.sub(r'^-|^abs\(|\)$|^\|', '', op)
    m = re.fullmatch(r'([vas])(\d+)', op)
    if m: return {(m.group(1), int(m.group(2)))}
    m = re.fullmatch(r'([vas])\[(\d+):(\d+)\]', op)
    if m: return {(m.group(1), i) for i in range(int(m.group(2)), int(m.group(3)) + 1)}
    if op == 'vcc': return {('s', 'vcc')}
    if op in ('vcc_lo', 'vcc_hi'): return {('s', 'vcc')}
    if op in ('exec', 'exec_lo', 'exec_hi'): return {('s', 'exec')}
    if op == 'm0': return {('s', 'm0')}
    return set()

def split_ops(s):
    out = []; d = 0; cur = ''
    for ch in s:
        if ch in '[(': d += 1
        if ch in '])': d -= 1
        if ch == ',' and d == 0: out.append(cur.strip()); cur = ''
        else: cur += ch
    if cur.strip(): out.append(cur.strip())
    return out

class Ins:
    def __init__(self, line):
        self.line = line
        t = line.split(';')[0].strip()
        self.label = t.endswith(':')
        self.real = bool(t) and not self.label and not t.startswith('.')
        self.mn = ''; self.w = set(); self.r = set(); self.kind = ''
        self.A = set(); self.B = set(); self.C = set(); self.states = 1; self.sdata = set()
        if not self.real: return
        parts = t.split(None, 1)
        mn = parts[0]; self.mn = mn = re.sub(r'_e32$|_e64$', '', mn)
        rest = parts[1] if len(parts) > 1 else ''
        ops = split_ops(rest)
        mods = ''
        if ops:
            lp = ops[-1].split(None, 1)
            ops[-1] = lp[0]
            if len(lp) > 1: mods = lp[1]
        self.mods = mods; self.ops = ops
        R = [regs_of(o) for o in ops]
        if mn == 's_nop':
            self.kind = 'nop'; self.states = int(ops[0], 0) + 1
        elif mn.startswith('v_mfma'):
            self.kind = 'mfma'; self.w = R[0]; self.A = R[1]; self.B = R[2]; self.C = R[3]
            self.r = R[1] | R[2] | R[3]
            self.passes = 8 if '32x32' in mn else 4
            if mn.endswith('_f32') and 'x4_f32' in mn: self.passes = 8
        elif mn.startswith('v_'):
            self.kind = 'valu'
            self.dpp = ('row_' in mods or 'quad_perm' in mods or mn.endswith('_dpp'))
            self.trans = mn in TRANS
            self.dot = mn.startswith('v_dot')
            if mn.startswith('v_permlane'):
                self.w = R[0] | R[1]; self.r = R[0] | R[1]; self.perm = True
            elif mn.startswith('v_cmp'):
                self.w = R[0]; self.r = set().union(*R[1:])
                if mn.startswith('v_cmpx'): self.w |= {('s', 'exec')}
            elif mn in ('v_add_co_u32', 'v_sub_co_u32', 'v_addc_co_u32', 'v_subb_co_u32'):
                self.w = R[0] | R[1]; self.r = set().union(*R[2:])
            else:
                self.w = R[0]; self.r = set().union(*R[1:]) if len(R) > 1 else set()
                if mn in ('v_fmac_f32', 'v_dot2c_f32_bf16', 'v_writelane_b32') or self.dpp: self.r |= R[0]
                if mn == 'v_cndmask_b32' and len(ops) == 3: self.r |= {('s', 'vcc')}
        elif mn.startswith('buffer_') or mn.startswith('global_'):
            self.kind = 'vmem'
            self.lds = ' lds' in (' ' + mods)
            if mn in ('buffer_wbl2', 'buffer_inv'): pass
            elif 'load' in mn and not self.lds:
                self.w = R[0]; self.r = set().union(*R[1:])
            elif 'load' in mn:
                self.r = set().union(*R) | {('s', 'm0')}
            else:
                self.r = set().union(*R)
                if 'atomic' in mn and 'sc0' in mods: self.w = R[0]
                if mn.startswith('buffer_store'): data = R[0]
                elif mn.startswith('global_store'): data = R[1]
                else: data = set()
                if mn.endswith('x3') or mn.endswith('x4'): self.sdata = data
        elif mn.startswith('ds_'):
            self.kind = 'ds'
            if 'read' in mn or 'permute' in mn or 'swizzle' in mn:
                self.w = R[0]; self.r = set().union(*R[1:])
            else: self.r = set().union(*R)
        elif mn.startswith('s_'):
            self.kind = 'salu'
            if mn.startswith('s_cmp') or mn.startswith('s_cbranch') or mn in ('s_waitcnt', 's_barrier', 's_branch', 's_endpgm', 's_sleep', 's_setprio'):
                self.r = set().union(*R) if R else set()
            else:
                self.w = R[0] if R else set(); self.r = set().union(*R[1:]) if len(R) > 1 else set()
                if 'saveexec' in mn: self.w |= {('s', 'exec')}
        else:
            raise ValueError("unknown instr: " + line)

def need(p, c):
    n = 0
    vw = {x for x in p.w if x[0] in 'va'}
    sw = {x for x in p.w if x[0] == 's'}
    if p.kind == 'valu':
        if c.kind == 'mfma' and vw & c.r: n = max(n, 2)
        if c.kind == 'valu':
            if getattr(c, 'perm', False) and vw & c.r: n = max(n, 2)
            if c.dpp and vw & c.r: n = max(n, 2)
            if p.trans and vw & c.r: n = max(n, 1)
            if c.mn in ('v_readfirstlane_b32', 'v_readlane_b32') and vw & c.r: n = max(n, 1)
            if sw & c.r: n = max(n, 2)
            if c.mn in ('v_readlane_b32', 'v_writelane_b32') and sw & c.r: n = max(n, 4)
            if ('s', 'exec') in sw: n = max(n, 5 if c.dpp else 4 if (getattr(c, 'perm', False) or 'lane' in c.mn) else 0)
            if p.dot and (vw & (c.r | c.w)):
                if not (c.mn == p.mn and not (vw & set().union(*[regs_of(o) for o in c.ops[1:3]]))): n = max(n, 3)
            if 'op_sel' in p.mods and not p.mn.startswith('v_pk') and vw & c.r: n = max(n, 1)
        if p.trans and c.kind in ('vmem', 'ds', 'mfma') and vw & c.r: n = max(n, 1)
        if p.dot and c.kind in ('vmem', 'ds', 'mfma') and vw & c.r: n = max(n, 3)
        if c.kind == 'vmem' and sw & c.r: n = max(n, 5)
        if c.kind == 'mfma' and ('s', 'exec') in sw: n = max(n, 4)
        if c.kind == 'salu' and sw & c.r: n = max(n, 4)
    if p.kind == 'salu':
        if ('s', 'm0') in sw and c.kind == 'vmem' and getattr(c, 'lds', False): n = max(n, 1)
    if p.kind == 'mfma':
        P = p.passes
        t = {4: (0, 6, 8, 3), 8: (0, 10, 12, 7), 16: (0, 18, 20, 15)}[P]
        if c.kind == 'mfma':
            if p.w & c.C:
                n = max(n, t[0] if (p.w == c.C and c.passes == P) else t[1])
            if p.w & (c.A | c.B): n = max(n, t[2])
            if (p.w & c.w) and not (p.w & c.C): n = max(n, t[1])
        elif c.kind in ('valu', 'vmem', 'ds'):
            if p.w & (c.r | c.w): n = max(n, t[2])
            if c.kind == 'valu' and p.C & c.w: n = max(n, t[3])
    if p.kind == 'vmem' and p.sdata:
        if c.kind == 'valu' and p.sdata & c.w: n = max(n, 2)
        elif c.kind in ('mfma', 'vmem', 'ds') and p.sdata & c.w: n = max(n, 1)
    return n

def fix_hazards(lines, verbose=False):
    out = []; hist = []
    added = 0
    for ln in lines:
        for l in ln.split('\n'):
            i = Ins(l)
            if not i.real:
                out.append(i); continue
            d = 0; req = 0
            for p in reversed(hist):
                if d >= 20: break
                k = need(p, i)
                if k > d: req = max(req, k - d)
                d += p.states
            while req > 0:
                k = min(req, 16)
                nop = Ins(f"  s_nop {k-1}"); out.append(nop); hist.append(nop); req -= k; added += k
            out.append(i); hist.append(i)
            if i.mn in ('s_endpgm', 's_branch'): hist = []
    labels = {}
    for idx, i in enumerate(out):
        if i.label: labels[i.line.split(':')[0].strip()] = idx
    for idx, i in enumerate(out):
        if i.real and (i.mn.startswith('s_cbranch') or i.mn == 's_branch'):
            tgt = labels.get(i.ops[0])
            if tgt is None: continue
            pre = [x for x in out[max(0, idx - 40):idx + 1] if x.real]
            post = [x for x in out[tgt:tgt + 40] if x.real][:20]
            dist_post = 0
            for c in post:
                d = dist_post
                for p in reversed(pre):
                    if d >= 20: break
                    if need(p, c) > d:
                        raise RuntimeError(f"hazard across branch {i.line.strip()}: {p.line.strip()} -> {c.line.strip()} need {need(p,c)} have {d}")
                    d += p.states
                dist_post += c.states
                if c.mn in ('s_endpgm', 's_branch'): break
    if verbose: print("; hazard nops added:", added)
    return [i.line for i in out]
```

```python
import sys, struct
from asmlib import *

NAME = "sequential_preLN__spectral_gfnet__dense_activation_squared_relu__prompt"
MB = 1 << 20
OFF_T1, OFF_WT, OFF_T2, OFF_H, OFF_LN2, OFF_W1, OFF_W2, OFF_HP = 0, 4*MB, 8*MB, 12*MB, 16*MB, 20*MB, 24*MB, 28*MB
T1_BYTES = 321 * 8192
T2_STRIDE = 10368
STAMP = False
STAMP_OFF = 250 << 20

def f2u(f): return struct.unpack('<I', struct.pack('<f', f))[0]
def fl(f): return "0x%08x" % f2u(f)

class K:
    def __init__(self, name, idx):
        self.name = name; self.idx = idx; self.L = []
        self.v = Alloc(1, 256); self.a = Alloc(0, 256); self.s = Alloc(3, 100)
    def __call__(self, s): self.L.append("  " + s)
    def label(self, s): self.L.append(s + ":")
    def srd(self, dst, base, nbytes, off=0):
        if off:
            self(f"s_add_u32 s{dst}, s{base}, {off}")
            self(f"s_addc_u32 s{dst+1}, s{base+1}, 0")
        else:
            self(f"s_mov_b32 s{dst}, s{base}")
            self(f"s_mov_b32 s{dst+1}, s{base+1}")
        self(f"s_mov_b32 s{dst+2}, {nbytes}")
        self(f"s_mov_b32 s{dst+3}, 0x20000")
    def exec_mask(self, m):
        self(f"s_mov_b32 exec_lo, 0x{m & 0xffffffff:08x}")
        self(f"s_mov_b32 exec_hi, 0x{m >> 32:08x}")
    def exec_all(self): self("s_mov_b64 exec, -1")
    def stamp_start(self):
        if STAMP: self("s_memrealtime s[90:91]")
    def stamp_mid(self, i):
        if STAMP: self(f"s_memrealtime s[{94+2*i}:{95+2*i}]")
    def stamp_end(self, wsreg):
        if not STAMP: return
        self("s_waitcnt vmcnt(0) lgkmcnt(0)")
        self("s_memrealtime s[92:93]")
        self("s_getreg_b32 s88, hwreg(HW_REG_XCC_ID)")
        self(f"s_add_u32 s86, s{wsreg}, {STAMP_OFF + self.idx*2048*32}")
        self(f"s_addc_u32 s87, s{wsreg+1}, 0")
        self("s_lshl_b32 s89, s2, 5")
        self("s_add_u32 s86, s86, s89")
        self("s_addc_u32 s87, s87, 0")
        self("s_waitcnt lgkmcnt(0)")
        self("v_cmp_eq_u32 vcc, 0, v0")
        self("s_and_saveexec_b64 s[84:85], vcc")
        lab = f"Lst{self.idx}_{len(self.L)}"
        self(f"s_cbranch_execz {lab}")
        for i, s in enumerate([90, 91, 92, 93, 88, 94, 96, 98]): self(f"v_mov_b32 v{4+i}, s{s}")
        self("v_mov_b32 v2, 0")
        self("global_store_dwordx4 v2, v[4:7], s[86:87]")
        self("global_store_dwordx4 v2, v[8:11], s[86:87] offset:16")
        self.label(lab)
    def text(self):
        body = fix_hazards(self.L)
        return f".globl {self.name}\n.p2align 8\n.type {self.name},@function\n{self.name}:\n" + "\n".join(body) + "\n"
    def desc(self):
        nv = max(self.v.hi, 12); acc = (nv + 3) // 4 * 4
        tot = acc + self.a.hi if self.a.hi else nv
        return (f".p2align 6\n.amdhsa_kernel {self.name}\n  .amdhsa_next_free_vgpr {tot}\n  .amdhsa_next_free_sgpr 102\n"
                f"  .amdhsa_accum_offset {acc}\n  .amdhsa_group_segment_fixed_size 0\n  .amdhsa_kernarg_size 88\n"
                f"  .amdhsa_user_sgpr_count 2\n  .amdhsa_user_sgpr_kernarg_segment_ptr 1\n  .amdhsa_system_sgpr_workgroup_id_x 1\n"
                f"  .amdhsa_float_denorm_mode_32 3\n.end_amdhsa_kernel\n")

def mfma(k, d, a, b, c=None, dp='v'):
    cs = "0" if c is None else vr(c, 4, dp)
    k(f"v_mfma_f32_16x16x32_bf16 {vr(d,4,dp)}, {vr(a,4)}, {vr(b,4)}, {cs}")

def gen_cs8(k, ang, C, S, tmp, negS=False):
    for p in range(4):
        k(f"v_cos_f32 v{tmp}, v{ang+2*p}")
        k(f"v_cos_f32 v{tmp+1}, v{ang+2*p+1}")
        n = "-" if negS else ""
        sfx = "_e64" if negS else ""
        k(f"v_sin_f32{sfx} v{tmp+2}, {n}v{ang+2*p}")
        k(f"v_sin_f32{sfx} v{tmp+3}, {n}v{ang+2*p+1}")
        k(f"v_cvt_pk_bf16_f32 v{C+p}, v{tmp}, v{tmp+1}")
        k(f"v_cvt_pk_bf16_f32 v{S+p}, v{tmp+2}, v{tmp+3}")

def bf16_round(k, d, s):
    k(f"v_cvt_pk_bf16_f32 v{d}, v{s}, v{s}")
    k(f"v_lshlrev_b32 v{d}, 16, v{d}")

def ln_stats(k, P, Q, rinv, nmr, t):
    k(f"v_mul_f32 v{P}, {fl(1/640)}, v{P}")
    k(f"v_mul_f32 v{Q}, {fl(1/640)}, v{Q}")
    k(f"v_fma_f32 v{Q}, -v{P}, v{P}, v{Q}")
    k(f"v_max_f32 v{Q}, 0, v{Q}")
    bf16_round(k, t, P)
    bf16_round(k, Q, Q)
    k(f"v_add_f32 v{Q}, {fl(1e-5)}, v{Q}")
    bf16_round(k, Q, Q)
    k(f"v_sqrt_f32 v{Q}, v{Q}")
    bf16_round(k, Q, Q)
    k(f"v_rcp_f32 v{rinv}, v{Q}")
    k(f"v_mul_f32_e64 v{nmr}, -v{t}, v{rinv}")

def cmul_pk(k, oR, oI, R, I, c, s, sign):
    k(f"v_pk_mul_f32 {vr(oR,2)}, {vr(R,2)}, {vr(c,2)}")
    k(f"v_pk_mul_f32 {vr(oI,2)}, {vr(I,2)}, {vr(c,2)}")
    ng = " neg_lo:[1,0,0] neg_hi:[1,0,0]"
    k(f"v_pk_fma_f32 {vr(oR,2)}, {vr(I,2)}, {vr(s,2)}, {vr(oR,2)}" + (ng if sign > 0 else ""))
    k(f"v_pk_fma_f32 {vr(oI,2)}, {vr(R,2)}, {vr(s,2)}, {vr(oI,2)}" + (ng if sign < 0 else ""))

def weight_job(k, lab, first_id, kind, done_label, ws_s):
    k.label(lab)
    m = k.v.mark(); sm = k.s.mark()
    ncol, nblk, ng, argoff, off, nks = (1728, 108, 27, 32, OFF_W1, 20) if kind == 'w1' else (640, 40, 10, 48, OFF_W2, 54)
    sp = k.s(2, 2); S1 = k.s(4, 4); S2 = k.s(4, 4); sj = k.s(); sw = k.s(); sF = k.s(); sks = k.s(); st = k.s(); so = k.s(); ssel0 = k.s(); ssel1 = k.s()
    k(f"s_load_dwordx2 {sr(sp,2)}, s[0:1], {argoff}")
    k(f"s_cmp_ge_u32 s2, {first_id + 135}")
    k(f"s_cbranch_scc1 {done_label}")
    vw = k.v(); vl = k.v(); vfq = k.v(); vg = k.v(); va = k.v(); vo = k.v(); vt = k.v()
    k(f"v_lshrrev_b32 v{vw}, 6, v0")
    k(f"v_and_b32 v{vl}, 63, v0")
    k(f"v_readfirstlane_b32 s{sw}, v{vw}")
    k(f"v_and_b32 v{vfq}, 15, v{vl}")
    k(f"v_lshrrev_b32 v{vg}, 4, v{vl}")
    k(f"s_sub_u32 s{sj}, s2, {first_id}")
    k(f"s_lshl_b32 s{sj}, s{sj}, 2")
    k(f"s_add_u32 s{sj}, s{sj}, s{sw}")
    k(f"s_mul_i32 s{sks}, s{sj}, {(65536 + ng - 1)//ng}")
    k(f"s_lshr_b32 s{sks}, s{sks}, 16")
    for j in range(540): assert (j * ((65536 + ng - 1)//ng)) >> 16 == j // ng
    k(f"s_mul_i32 s{st}, s{sks}, {ng}")
    k(f"s_sub_u32 s{sF}, s{sj}, s{st}")
    rowb = ncol * 2
    gm = 8 if kind == 'w1' else 4
    k(f"v_mul_u32_u24 v{va}, {gm*rowb}, v{vg}")
    k(f"v_lshl_add_u32 v{va}, v{vfq}, 3, v{va}")
    k(f"s_mul_i32 s{st}, s{sks}, {32*rowb}")
    k(f"s_lshl_b32 s{so}, s{sF}, 7")
    k(f"s_add_u32 s{st}, s{st}, s{so}")
    k(f"v_lshrrev_b32 v{vo}, 2, v{vfq}")
    k(f"v_lshlrev_b32 v{vo}, 10, v{vo}")
    k(f"v_lshl_add_u32 v{vo}, v{vg}, 8, v{vo}")
    k(f"v_and_b32 v{vt}, 3, v{vfq}")
    k(f"v_lshl_add_u32 v{vo}, v{vt}, 6, v{vo}")
    k(f"s_mul_i32 s{so}, s{sks}, {nblk*1024}")
    k(f"s_lshl_b32 s{sF}, s{sF}, 12")
    k(f"s_add_u32 s{so}, s{so}, s{sF}")
    k(f"s_mov_b32 s{ssel0}, 0x05040100")
    k(f"s_mov_b32 s{ssel1}, 0x07060302")
    k("s_waitcnt lgkmcnt(0)")
    k.srd(S1, sp, 640*1728*2)
    k.srd(S2, ws_s, nks*nblk*1024, off)
    X = k.v(16, 2); O = k.v(16, 4)
    va2 = [va]
    for j in range(8):
        row = j if kind == 'w1' else 16*(j >> 2) + (j & 3)
        byte = row * rowb
        if byte < 4096:
            k(f"buffer_load_dwordx2 {vr(X+2*j,2)}, v{va}, {sr(S1,4)}, s{st} offen offset:{byte}")
        else:
            k(f"v_add_u32 v{vt}, {byte}, v{va}")
            k(f"buffer_load_dwordx2 {vr(X+2*j,2)}, v{vt}, {sr(S1,4)}, s{st} offen")
    k("s_waitcnt vmcnt(0)")
    for e in range(4):
        for p in range(4):
            sel = ssel0 if (e & 1) == 0 else ssel1
            lo = X + 2*(2*p) + (e >> 1); hi = X + 2*(2*p+1) + (e >> 1)
            k(f"v_perm_b32 v{O+4*e+p}, v{hi}, v{lo}, s{sel}")
        k(f"buffer_store_dwordx4 {vr(O+4*e,4)}, v{vo}, {sr(S2,4)}, s{so} offen offset:{16*e}")
    k.v.reset(m); k.s.reset(sm)

def gen_k1():
    k = K("k1_kernel", 0)
    ROWB = 1280; OUTB = 8 * ROWB; REG = 2816
    sx = k.s(2, 2); sws = k.s(2, 2); swr = k.s(4, 4)
    k.stamp_start()
    k(f"s_load_dwordx2 {sr(sx,2)}, s[0:1], 0")
    k(f"s_load_dwordx2 {sr(sws,2)}, s[0:1], 80")
    k(f"s_load_dwordx4 {sr(swr,4)}, s[0:1], 8")
    k("s_cmp_ge_u32 s2, 256")
    k("s_cbranch_scc1 K1_side")
    SX = k.s(4, 4); ST = k.s(4, 4); sp2 = k.s(); sa = k.s(); st = k.s(); sxo = k.s(); sto = k.s(); sw = k.s(); s1m = k.s(); s2m = k.s()
    k(f"s_lshr_b32 s{st}, s2, 3")
    k(f"s_and_b32 s{sa}, s{st}, 3")
    k(f"s_lshr_b32 s{st}, s{st}, 2")
    k(f"s_and_b32 s{sp2}, s2, 7")
    k(f"s_lshl_b32 s{sp2}, s{sp2}, 2")
    k(f"s_and_b32 s{sxo}, s{st}, 3")
    k(f"s_add_u32 s{sp2}, s{sp2}, s{sxo}")
    k(f"s_lshr_b32 s{st}, s{st}, 2")
    k(f"s_lshl_b32 s{st}, s{st}, 2")
    k(f"s_add_u32 s{sa}, s{sa}, s{st}")
    k(f"s_lshl_b32 s{st}, s{sa}, 8")
    k(f"s_add_u32 s{st}, s{st}, s{sp2}")
    k(f"s_mul_i32 s{sxo}, s{st}, 1280")
    k(f"s_lshl_b32 s{sto}, s{sp2}, 8")
    k(f"s_lshl_b32 s{st}, s{sa}, 5")
    k(f"s_add_u32 s{sto}, s{sto}, s{st}")
    k(f"s_add_u32 s{s1m}, s{sto}, {1*MB}")
    k(f"s_add_u32 s{s2m}, s{sto}, {2*MB}")
    vi = k.v(); vl31 = k.v(); vxa = k.v(); vl = k.v(); vk1 = k.v(); vg = k.v(); vw = k.v()
    k(f"v_lshrrev_b32 v{vi}, 5, v0")
    k(f"v_and_b32 v{vl31}, 31, v0")
    k(f"v_mul_u32_u24 v{vxa}, 40960, v{vi}")
    k(f"v_lshl_add_u32 v{vxa}, v{vl31}, 3, v{vxa}")
    k(f"v_and_b32 v{vk1}, 15, v0")
    k(f"v_bfe_u32 v{vg}, v0, 4, 2")
    k(f"v_lshrrev_b32 v{vw}, 6, v0")
    X = k.v(10, 2)
    k("s_waitcnt lgkmcnt(0)")
    k.srd(SX, sx, 2048*1280)
    for it in range(5):
        k(f"buffer_load_dwordx2 {vr(X+2*it,2)}, v{vxa}, {sr(SX,4)}, s{sxo} offen offset:{256*it}")
    k.srd(ST, sws, T1_BYTES, OFF_T1)
    BR = k.v(4, 4); BI = k.v(4, 4); TC = k.v(8, 2); TS = k.v(8, 2)
    C0 = k.v(4, 4); S0 = k.v(4, 4); nS0 = k.v(4, 4); C1 = k.v(4, 4); S1 = k.v(4, 4); nC1 = k.v(4, 4)
    ang = k.v(8, 2); tmp = k.v(4, 2); fk = k.v(); fg = k.v(); a0 = k.v()
    k(f"v_cvt_f32_u32 v{fk}, v{vk1}")
    k(f"v_cvt_f32_u32 v{fg}, v{vg}")
    k(f"v_mul_f32 v{fg}, 4.0, v{fg}")
    k(f"v_mul_f32 v{a0}, {fl(1/20)}, v{fk}")
    k(f"v_mul_f32 v{ang}, v{a0}, v{fg}")
    for j in range(1, 4): k(f"v_add_f32 v{ang+j}, v{ang+j-1}, v{a0}")
    k(f"v_mul_f32 v{ang+4}, {fl(16.0)}, v{a0}")
    for j in range(5, 8): k(f"v_add_f32 v{ang+j}, v{ang+j-1}, v{a0}")
    gen_cs8(k, ang, BR, BI, tmp, negS=True)
    k.exec_mask(0xFFFFFFFFFFFF0000)
    for r in (BR+2, BR+3, BI+2, BI+3): k(f"v_mov_b32 v{r}, 0")
    k.exec_all()
    k(f"v_mul_f32 v{a0}, {fl(1/640)}, v{fk}")
    k(f"v_mul_f32 v{ang}, v{a0}, v{fg}")
    for j in range(1, 4): k(f"v_add_f32 v{ang+j}, v{ang+j-1}, v{a0}")
    for j in range(4): k(f"v_fmamk_f32 v{ang+4+j}, v{a0}, {fl(16.0)}, v{ang+j}")
    for j in range(8):
        k(f"v_cos_f32 v{TC+j}, v{ang+j}")
        k(f"v_sin_f32 v{TS+j}, v{ang+j}")
    k(f"v_mul_f32 v{a0}, {fl(1/32)}, v{fk}")
    k(f"v_mul_f32 v{ang}, v{a0}, v{fg}")
    for j in range(1, 4): k(f"v_add_f32 v{ang+j}, v{ang+j-1}, v{a0}")
    for j in range(4): k(f"v_fmamk_f32 v{ang+4+j}, v{a0}, {fl(16.0)}, v{ang+j}")
    gen_cs8(k, ang, C0, S0, tmp)
    for p in range(4):
        k(f"v_xor_b32 v{nS0+p}, 0x80008000, v{S0+p}")
        k(f"v_xor_b32 v{C1+p}, 0x80000000, v{C0+p}")
        k(f"v_xor_b32 v{S1+p}, 0x80000000, v{S0+p}")
        k(f"v_xor_b32 v{nC1+p}, 0x00008000, v{C0+p}")
    vwr = k.v(); vt0 = k.v(); vt1 = k.v(); voA = k.v(); voB = k.v(); vrd = k.v(); vst = k.v(); t2 = k.v()
    k(f"v_mul_u32_u24 v{vwr}, {ROWB}, v{vi}")
    k(f"v_lshl_add_u32 v{vwr}, v{vl31}, 3, v{vwr}")
    k(f"v_mul_u32_u24 v{vt0}, {2*ROWB}, v{vw}")
    k(f"v_and_b32 v{t2}, 3, v0")
    k(f"v_lshl_add_u32 v{vt0}, v{t2}, 3, v{vt0}")
    k(f"v_bfe_u32 v{t2}, v0, 2, 2")
    k(f"v_lshl_add_u32 v{vt0}, v{t2}, 6, v{vt0}")
    k(f"v_add_u32 v{vt1}, 1024, v{vt0}")
    k(f"v_lshl_add_u32 v{vt0}, v{vg}, 8, v{vt0}")
    k(f"v_mul_u32_u24 v{voA}, {REG}, v{vw}")
    k(f"v_add_u32 v{voA}, {OUTB}, v{voA}")
    k(f"v_mad_u32_u24 v{t2}, v{vg}, 5, 0")
    k(f"v_lshl_add_u32 v{t2}, v{t2}, 4, v{vk1}")
    k(f"v_lshlrev_b32 v{t2}, 2, v{t2}")
    k(f"v_sub_u32 v{voB}, v{voA}, v{t2}")
    k(f"v_add_u32 v{voB}, {260*4}, v{voB}")
    k(f"v_add_u32 v{voA}, v{voA}, v{t2}")
    k(f"v_and_b32 v{t2}, 1, v0")
    k(f"v_lshrrev_b32 v{vrd}, 1, v0")
    k(f"v_lshlrev_b32 v{vst}, 13, v{vrd}")
    k(f"v_lshl_add_u32 v{vst}, v{t2}, 4, v{vst}")
    k(f"v_mul_u32_u24 v{t2}, 324, v{t2}")
    k(f"v_add_u32 v{vrd}, v{vrd}, v{t2}")
    k(f"v_lshlrev_b32 v{vrd}, 2, v{vrd}")
    k(f"v_add_u32 v{vrd}, {OUTB}, v{vrd}")
    P = k.v(); Q = k.v(); ones = k.v(); F = k.v(20, 2); sc = k.v(2, 2)
    k(f"v_mov_b32 v{ones}, 0x3f803f80")
    k(f"v_mov_b32 v{P}, 0")
    k(f"v_mov_b32 v{Q}, 0")
    k.stamp_mid(0)
    k("s_waitcnt vmcnt(0)")
    k.stamp_mid(1)
    for i in range(10):
        k(f"v_dot2c_f32_bf16 v{P}, v{X+i}, v{ones}")
        k(f"v_dot2c_f32_bf16 v{Q}, v{X+i}, v{X+i}")
    for i in range(2):
        k(f"v_lshlrev_b32 v{F+2*i}, 16, v{X+i}")
        k(f"v_and_b32 v{F+2*i+1}, 0xffff0000, v{X+i}")
    k(f"v_permlane16_swap_b32 v{P}, v{Q}")
    k(f"v_add_f32 v{P}, v{P}, v{Q}")
    nxt = 2
    for sh in (8, 4, 2, 1):
        for i in (nxt,):
            k(f"v_lshlrev_b32 v{F+2*i}, 16, v{X+i}")
            k(f"v_and_b32 v{F+2*i+1}, 0xffff0000, v{X+i}")
        nxt += 1
        k(f"v_add_f32_dpp v{P}, v{P}, v{P} row_ror:{sh} row_mask:0xf bank_mask:0xf")
    k(f"v_mov_b32 v{Q}, v{P}")
    for i in (6, 7):
        k(f"v_lshlrev_b32 v{F+2*i}, 16, v{X+i}")
        k(f"v_and_b32 v{F+2*i+1}, 0xffff0000, v{X+i}")
    k(f"v_permlane16_swap_b32 v{P}, v{Q}")
    for i in (8, 9):
        k(f"v_lshlrev_b32 v{F+2*i}, 16, v{X+i}")
        k(f"v_and_b32 v{F+2*i+1}, 0xffff0000, v{X+i}")
    ln_stats(k, P, Q, sc, sc+1, tmp)
    for i in range(10):
        k(f"v_pk_fma_f32 {vr(F+2*i,2)}, {vr(F+2*i,2)}, {vr(sc,2)}, {vr(sc,2)} op_sel:[0,0,1] op_sel_hi:[1,0,1]")
    for i in range(10):
        k(f"v_cvt_pk_bf16_f32 v{X+i}, v{F+2*i}, v{F+2*i+1}")
        if i & 1: k(f"ds_write_b64 v{vwr}, {vr(X+i-1,2)} offset:{256*(i>>1)}")
    A = k.v(16, 4)
    k("s_waitcnt lgkmcnt(0)")
    for rho in range(2):
        for t in range(2):
            b = A + 8*rho + 4*t
            k(f"ds_read_b64_tr_b16 {vr(b,2)}, v{vt0} offset:{rho*ROWB + t*32}")
            k(f"ds_read_b64_tr_b16 {vr(b+2,2)}, v{vt1} offset:{rho*ROWB + t*32}")
    D1 = k.v(32, 4)
    for rho in range(2):
        k(f"s_waitcnt lgkmcnt({4 - 4*rho})")
        for t in range(2):
            mfma(k, D1 + 16*rho + 4*t, A + 8*rho + 4*t, BR)
            mfma(k, D1 + 16*rho + 8 + 4*t, A + 8*rho + 4*t, BI)
    E = k.v(16, 4); Bop = k.v(16, 4); D2 = k.v(32, 4)
    for rho in range(2):
        for h in range(4):
            cmul_pk(k, E + 2*h, E + 8 + 2*h, D1 + 16*rho + 2*h, D1 + 16*rho + 8 + 2*h, TC + 2*h, TS + 2*h, -1)
        for o in range(2):
            for p in range(4):
                k(f"v_cvt_pk_bf16_f32 v{Bop + 8*rho + 4*o + p}, v{E + 8*o + 2*p}, v{E + 8*o + 2*p + 1}")
        bR = Bop + 8*rho; bI = bR + 4; d = D2 + 16*rho
        mfma(k, d + 0, C0, bR); mfma(k, d + 4, C1, bR); mfma(k, d + 8, nS0, bR); mfma(k, d + 12, S1, bR)
        mfma(k, d + 0, S0, bI, d + 0); mfma(k, d + 4, S1, bI, d + 4); mfma(k, d + 8, C0, bI, d + 8); mfma(k, d + 12, nC1, bI, d + 12)
    O = E
    for i in range(16): k(f"v_cvt_pk_bf16_f32 v{O+i}, v{D2+i}, v{D2+16+i}")
    k.exec_mask(0x07FF07FF07FF07FF)
    for o in range(2):
        for r in range(4): k(f"ds_write_b32 v{voA}, v{O + 8*o + r} offset:{o*1296 + r*80}")
    k.exec_mask(0x03FE03FE03FE03FF)
    for o in range(2): k(f"ds_write_b32 v{voB}, v{O + 8*o + 4} offset:{o*1296 + 3*80}")
    k.exec_mask(0x03FE03FE03FE03FE)
    for o in range(2):
        for r in range(1, 4): k(f"ds_write_b32 v{voB}, v{O + 8*o + 4 + r} offset:{o*1296 + (3-r)*80}")
    k.exec_all()
    k("s_waitcnt lgkmcnt(0)")
    k("s_barrier")
    Z = D2
    for it in range(3):
        k(f"ds_read2st64_b32 {vr(Z+4*it,2)}, v{vrd} offset0:{2*it} offset1:{2*it+11}")
        k(f"ds_read2st64_b32 {vr(Z+4*it+2,2)}, v{vrd} offset0:{2*it+22} offset1:{2*it+33}")
    for it in range(3):
        k(f"s_waitcnt lgkmcnt({4 - 2*it})")
        k(f"buffer_store_dwordx4 {vr(Z+4*it,4)}, v{vst}, {sr(ST,4)}, s{[sto, s1m, s2m][it]} offen")
    k.stamp_end(sws)
    k("s_endpgm")
    lds = OUTB + 4 * REG
    k.label("K1_side")
    k.v.reset(1); k.s.reset(swr + 4)
    SR = k.s(4, 4); SI = k.s(4, 4); SO = k.s(4, 4)
    sj = k.s(); sw = k.s(); skg = k.s(); ssg = k.s(); st = k.s(); su = k.s(); sb = k.s(4); so = k.s()
    k("s_cmp_ge_u32 s2, 448")
    k("s_cbranch_scc1 K1_done")
    vw = k.v(); vkc = k.v(); va = k.v(); vo = k.v()
    k(f"v_lshrrev_b32 v{vw}, 6, v0")
    k(f"v_and_b32 v{vkc}, 63, v0")
    k(f"v_readfirstlane_b32 s{sw}, v{vw}")
    k(f"s_sub_u32 s{sj}, s2, 256")
    k(f"s_lshl_b32 s{sj}, s{sj}, 2")
    k(f"s_add_u32 s{sj}, s{sj}, s{sw}")
    k(f"s_lshr_b32 s{skg}, s{sj}, 7")
    k(f"s_and_b32 s{ssg}, s{sj}, 127")
    k(f"s_lshl_b32 s{skg}, s{skg}, 6")
    k(f"v_add_u32 v{vkc}, s{skg}, v{vkc}")
    k(f"v_lshlrev_b32 v{va}, 1, v{vkc}")
    k(f"v_lshlrev_b32 v{vo}, 13, v{vkc}")
    k(f"s_lshr_b32 s{st}, s{ssg}, 5")
    k(f"s_lshl_b32 s{st}, s{st}, 4")
    k(f"s_and_b32 s{su}, s{ssg}, 3")
    k(f"s_lshl_b32 s{su}, s{su}, 2")
    k(f"s_add_u32 s{st}, s{st}, s{su}")
    k(f"s_lshr_b32 s{su}, s{ssg}, 2")
    k(f"s_and_b32 s{su}, s{su}, 7")
    k(f"s_lshl_b32 s{su}, s{su}, 8")
    k(f"s_add_u32 s{st}, s{st}, s{su}")
    k(f"s_mul_i32 s{sb}, s{st}, 642")
    for r in range(1, 4): k(f"s_add_u32 s{sb+r}, s{sb+r-1}, {64*642}")
    k(f"s_lshl_b32 s{so}, s{ssg}, 6")
    k("s_waitcnt lgkmcnt(0)")
    k.srd(SR, swr, 2048*642); k.srd(SI, swr+2, 2048*642); k.srd(SO, sws, T1_BYTES, OFF_WT)
    R = k.v(16, 4); I = k.v(16, 4)
    for e in range(4):
        for r in range(4):
            k(f"buffer_load_ushort v{R+4*e+r}, v{va}, {sr(SR,4)}, s{sb+r} offen offset:{642*e}")
            k(f"buffer_load_ushort v{I+4*e+r}, v{va}, {sr(SI,4)}, s{sb+r} offen offset:{642*e}")
    for e in range(4):
        k(f"s_waitcnt vmcnt({24 - 8*e + e})")
        for r in range(4): k(f"v_lshl_or_b32 v{R+4*e+r}, v{I+4*e+r}, 16, v{R+4*e+r}")
        k(f"buffer_store_dwordx4 {vr(R+4*e,4)}, v{vo}, {sr(SO,4)}, s{so} offen offset:{16*e}")
    k.stamp_end(sws)
    k.label("K1_done")
    k("s_endpgm")
    return k, 448, 256, lds

def gen_k2():
    k = K("k2_kernel", 1)
    RS = 144
    sws = k.s(2, 2)
    k.stamp_start()
    k(f"s_load_dwordx2 {sr(sws,2)}, s[0:1], 80")
    k("s_cmp_ge_u32 s2, 321")
    k("s_cbranch_scc1 K2_side")
    S1 = k.s(4, 4); SW = k.s(4, 4); S2 = k.s(4, 4); skc = k.s(); st = k.s(); su = k.s(); so = k.s(); ssc = k.s()
    k(f"s_lshr_b32 s{st}, s2, 5")
    k(f"s_lshl_b32 s{st}, s{st}, 3")
    k(f"s_and_b32 s{su}, s2, 7")
    k(f"s_add_u32 s{st}, s{st}, s{su}")
    k(f"s_lshl_b32 s{st}, s{st}, 2")
    k(f"s_bfe_u32 s{su}, s2, 0x20003")
    k(f"s_add_u32 s{skc}, s{st}, s{su}")
    k(f"s_lshl_b32 s{so}, s{skc}, 13")
    vm = k.v(); vg = k.v(); vw = k.v(); vl = k.v(); vxa = k.v(); vwa = k.v(); t2 = k.v()
    k(f"v_and_b32 v{vm}, 15, v0")
    k(f"v_bfe_u32 v{vg}, v0, 4, 2")
    k(f"v_lshrrev_b32 v{vw}, 6, v0")
    k(f"v_lshlrev_b32 v{vxa}, 8, v{vm}")
    k(f"v_lshl_add_u32 v{vxa}, v{vg}, 5, v{vxa}")
    k(f"v_add_u32 v{t2}, 4096, v{vxa}")
    k(f"v_and_b32 v{vl}, 63, v0")
    k(f"v_lshlrev_b32 v{vwa}, 4, v{vl}")
    k(f"v_lshl_add_u32 v{vwa}, v{vw}, 11, v{vwa}")
    X = k.v(32, 4)
    W = k.v(8, 4)
    k("s_waitcnt lgkmcnt(0)")
    k.srd(S1, sws, T1_BYTES, OFF_T1); k.srd(SW, sws, T1_BYTES, OFF_WT)
    for t in range(2):
        for kk in range(2):
            for o in range(2):
                k(f"buffer_load_dwordx4 {vr(X+16*o+8*t+4*kk,4)}, v{vxa if t == 0 else t2}, {sr(S1,4)}, s{so} offen offset:{128*kk+16*o}")
    for t in range(2):
        k(f"buffer_load_dwordx4 {vr(W+4*t,4)}, v{vwa}, {sr(SW,4)}, s{so} offen offset:{1024*t}")
    k.srd(S2, sws, 256*T2_STRIDE, OFF_T2)
    sc = 2.0 / (2048 * 640)
    k(f"s_mov_b32 s{ssc}, {fl(sc)}")
    k(f"s_cmp_eq_u32 s{skc}, 0")
    k(f"s_cselect_b32 s{ssc}, {fl(sc/2)}, s{ssc}")
    k(f"s_cmp_eq_u32 s{skc}, 320")
    k(f"s_cselect_b32 s{ssc}, {fl(sc/2)}, s{ssc}")
    C64 = k.v(8, 4); S64 = k.v(8, 4); N64 = k.v(8, 4); C32 = k.v(8, 4); S32 = k.v(8, 4); N32 = k.v(8, 4)
    FC = k.v(8, 2); FS = k.v(8, 2); IC = k.v(8, 2); IS = k.v(8, 2)
    ang = k.v(8, 2); tmp = k.v(4, 2); fq = k.v(); fg = k.v(); a0 = k.v(); fm = k.v(); sg = k.v()
    k(f"v_lshl_add_u32 v{fq}, v{vw}, 4, v{vm}")
    k(f"v_cvt_f32_u32 v{fq}, v{fq}")
    k(f"v_cvt_f32_u32 v{fg}, v{vg}")
    k(f"v_cvt_f32_u32 v{fm}, v{vm}")
    k(f"v_mul_f32 v{fg}, 4.0, v{fg}")
    k(f"v_mul_f32 v{a0}, {fl(1/64)}, v{fq}")
    k(f"v_mul_f32 v{ang}, v{a0}, v{fg}")
    k(f"v_add_f32 v{ang}, v{ang}, v{ang}")
    for j in range(1, 8): k(f"v_add_f32 v{ang+j}, v{ang+j-1}, v{a0}")
    gen_cs8(k, ang, C64, S64, tmp)
    k(f"v_and_b32 v{sg}, 1, v0")
    k(f"v_mul_u32_u24 v{sg}, 0x8000, v{sg}")
    k(f"v_lshl_or_b32 v{sg}, v{sg}, 16, v{sg}")
    for p in range(4):
        k(f"v_xor_b32 v{C64+4+p}, v{sg}, v{C64+p}")
        k(f"v_xor_b32 v{S64+4+p}, v{sg}, v{S64+p}")
        k(f"v_xor_b32 v{N64+p}, 0x80008000, v{S64+p}")
        k(f"v_xor_b32 v{N64+4+p}, 0x80008000, v{S64+4+p}")
    k(f"v_mul_f32 v{a0}, {fl(1/2048)}, v{fq}")
    k(f"v_mul_f32 v{ang}, v{a0}, v{fg}")
    for j in range(1, 4): k(f"v_add_f32 v{ang+j}, v{ang+j-1}, v{a0}")
    for j in range(4): k(f"v_fmamk_f32 v{ang+4+j}, v{a0}, {fl(16.0)}, v{ang+j}")
    for j in range(8):
        k(f"v_cos_f32 v{FC+j}, v{ang+j}")
        k(f"v_sin_f32 v{FS+j}, v{ang+j}")
    k(f"v_mul_f32 v{a0}, {fl(1/32)}, v{fm}")
    k(f"v_mul_f32 v{ang}, v{a0}, v{fg}")
    for j in range(1, 4): k(f"v_add_f32 v{ang+j}, v{ang+j-1}, v{a0}")
    for j in range(4): k(f"v_fmamk_f32 v{ang+4+j}, v{a0}, {fl(16.0)}, v{ang+j}")
    gen_cs8(k, ang, C32, S32, tmp)
    for p in range(4):
        k(f"v_xor_b32 v{C32+4+p}, 0x80000000, v{C32+p}")
        k(f"v_xor_b32 v{S32+4+p}, 0x80000000, v{S32+p}")
        k(f"v_xor_b32 v{N32+p}, 0x80008000, v{S32+p}")
        k(f"v_xor_b32 v{N32+4+p}, 0x00008000, v{S32+p}")
    k(f"v_cvt_f32_u32 v{tmp}, v{vw}")
    k(f"v_fmamk_f32 v{tmp}, v{tmp}, {fl(16.0)}, v{fg}")
    k(f"v_mul_f32 v{a0}, {fl(1/2048)}, v{fm}")
    k(f"v_mul_f32 v{ang}, v{a0}, v{tmp}")
    for j in range(1, 4): k(f"v_add_f32 v{ang+j}, v{ang+j-1}, v{a0}")
    k(f"v_add_f32 v{a0}, {fl(16/2048)}, v{a0}")
    k(f"v_mul_f32 v{ang+4}, v{a0}, v{tmp}")
    for j in range(5, 8): k(f"v_add_f32 v{ang+j}, v{ang+j-1}, v{a0}")
    for j in range(8):
        k(f"v_cos_f32 v{IC+j}, v{ang+j}")
        k(f"v_sin_f32 v{IS+j}, v{ang+j}")
    for j in range(8):
        k(f"v_mul_f32 v{IC+j}, s{ssc}, v{IC+j}")
        k(f"v_mul_f32 v{IS+j}, s{ssc}, v{IS+j}")
    vlw = k.v(); vlr = k.v(); vst = k.v()
    k(f"v_mul_u32_u24 v{vlr}, {RS}, v{vm}")
    k(f"v_lshl_add_u32 v{vlw}, v{vg}, 3, v{vlr}")
    k(f"v_lshl_add_u32 v{vlw}, v{vw}, 5, v{vlw}")
    k(f"v_lshl_add_u32 v{vlr}, v{vg}, 4, v{vlr}")
    k(f"v_lshl_add_u32 v{vst}, v{vw}, 4, v{vm}")
    k(f"v_lshl_add_u32 v{vst}, v{vst}, 2, v{vg}")
    k(f"v_mul_u32_u24 v{vst}, {T2_STRIDE}, v{vst}")
    k(f"s_lshl_b32 s{st}, s{skc}, 5")
    D = k.v(16, 4)
    E = k.v(16, 4); B = k.v(8, 4)
    k.stamp_mid(0)
    for t in range(2):
        for kk in range(2):
            k(f"s_waitcnt vmcnt({8 - 4*t - 2*kk})")
            xr = X + 8*t + 4*kk; xi = xr + 16
            mfma(k, D + 4*t, xr, C64 + 4*kk, None if kk == 0 else D + 4*t)
            mfma(k, D + 8 + 4*t, xr, N64 + 4*kk, None if kk == 0 else D + 8 + 4*t)
            mfma(k, D + 4*t, xi, S64 + 4*kk, D + 4*t)
            mfma(k, D + 8 + 4*t, xi, C64 + 4*kk, D + 8 + 4*t)
    k.stamp_mid(1)
    for h in range(4): cmul_pk(k, E + 2*h, E + 8 + 2*h, D + 2*h, D + 8 + 2*h, FC + 2*h, FS + 2*h, -1)
    for o in range(2):
        for p in range(4): k(f"v_cvt_pk_bf16_f32 v{B+4*o+p}, v{E+8*o+2*p}, v{E+8*o+2*p+1}")
    for T in range(2): mfma(k, D + 4*T, C32 + 4*T, B); mfma(k, D + 8 + 4*T, N32 + 4*T, B)
    for T in range(2): mfma(k, D + 4*T, S32 + 4*T, B + 4, D + 4*T); mfma(k, D + 8 + 4*T, C32 + 4*T, B + 4, D + 8 + 4*T)
    WR = X; WI = X + 8
    k("s_waitcnt vmcnt(0)")
    for j in range(8):
        k(f"v_lshlrev_b32 v{WR+j}, 16, v{W+j}")
        k(f"v_and_b32 v{WI+j}, 0xffff0000, v{W+j}")
    for h in range(4): cmul_pk(k, E + 2*h, E + 8 + 2*h, D + 2*h, D + 8 + 2*h, WR + 2*h, WI + 2*h, +1)
    for o in range(2):
        for p in range(4): k(f"v_cvt_pk_bf16_f32 v{B+4*o+p}, v{E+8*o+2*p}, v{E+8*o+2*p+1}")
    for t in range(2): mfma(k, D + 4*t, B, C32 + 4*t); mfma(k, D + 8 + 4*t, B, S32 + 4*t)
    for t in range(2): mfma(k, D + 4*t, B + 4, N32 + 4*t, D + 4*t); mfma(k, D + 8 + 4*t, B + 4, C32 + 4*t, D + 8 + 4*t)
    for h in range(4): cmul_pk(k, E + 2*h, E + 8 + 2*h, D + 2*h, D + 8 + 2*h, IC + 2*h, IS + 2*h, +1)
    for o in range(2):
        for p in range(4): k(f"v_cvt_pk_bf16_f32 v{B+4*o+p}, v{E+8*o+2*p}, v{E+8*o+2*p+1}")
        for t in range(2): k(f"ds_write_b64 v{vlw}, {vr(B+4*o+2*t,2)} offset:{o*32*RS + t*16*RS}")
    k("s_waitcnt lgkmcnt(0)")
    k("s_barrier")
    for t in range(2):
        for kk in range(2):
            for o in range(2):
                k(f"ds_read_b128 {vr(X+16*o+8*t+4*kk,4)}, v{vlr} offset:{o*32*RS + t*16*RS + kk*64}")
    for t in range(2):
        for kk in range(2):
            k(f"s_waitcnt lgkmcnt({6 - 4*t - 2*kk})")
            xr = X + 8*t + 4*kk; xi = xr + 16
            mfma(k, D + 4*t, xr, C64 + 4*kk, None if kk == 0 else D + 4*t)
            mfma(k, D + 8 + 4*t, xr, S64 + 4*kk, None if kk == 0 else D + 8 + 4*t)
            mfma(k, D + 4*t, xi, N64 + 4*kk, D + 4*t)
            mfma(k, D + 8 + 4*t, xi, C64 + 4*kk, D + 8 + 4*t)
    for o in range(2):
        for p in range(4): k(f"v_cvt_pk_bf16_f32 v{B+4*o+p}, v{D+8*o+2*p}, v{D+8*o+2*p+1}")
        k(f"buffer_store_dwordx4 {vr(B+4*o,4)}, v{vst}, {sr(S2,4)}, s{st} offen offset:{16*o}")
    k.stamp_end(sws)
    k("s_endpgm")
    k.v.reset(1); k.s.reset(sws + 2)
    weight_job(k, "K2_side", 321, 'w1', "K2_done", sws)
    k.stamp_end(sws)
    k.label("K2_done")
    k("s_endpgm")
    return k, 321 + 135, 256, 64 * RS

def gen_k3():
    k = K("k3_kernel", 2)
    ZOFF = 322 * 32; STAT = 12288
    sws = k.s(2, 2); sx = k.s(2, 2)
    k.stamp_start()
    k(f"s_load_dwordx2 {sr(sws,2)}, s[0:1], 80")
    k(f"s_load_dwordx2 {sr(sx,2)}, s[0:1], 0")
    k("s_cmp_ge_u32 s2, 256")
    k("s_cbranch_scc1 K3_side")
    S2 = k.s(4, 4); SX = k.s(4, 4); SH = k.s(4, 4); SL = k.s(4, 4)
    sblk = k.s(); st = k.s(); su = k.s(); sw = k.s(); stau = k.s(); stt = k.s(); sxo = k.s(4); slo = k.s(); sm = k.s()
    k(f"s_and_b32 s{sblk}, s2, 7")
    k(f"s_lshl_b32 s{sblk}, s{sblk}, 5")
    k(f"s_lshr_b32 s{st}, s2, 3")
    k(f"s_add_u32 s{sblk}, s{sblk}, s{st}")
    vw = k.v(); vl = k.v(); vm = k.v(); vg = k.v(); vda = k.v(); vxa = k.v(); vxl = k.v(); t2 = k.v(); t3 = k.v()
    k(f"v_lshrrev_b32 v{vw}, 6, v0")
    k(f"v_lshlrev_b32 v{vda}, 4, v0")
    k(f"v_readfirstlane_b32 s{sw}, v{vw}")
    k(f"v_and_b32 v{vm}, 15, v0")
    k(f"v_bfe_u32 v{vg}, v0, 4, 2")
    k(f"s_and_b32 s{stau}, s{sw}, 1")
    k(f"s_lshr_b32 s{stt}, s{sw}, 1")
    k(f"s_lshr_b32 s{st}, s{sblk}, 2")
    k(f"s_lshl_b32 s{st}, s{st}, 5")
    k(f"s_and_b32 s{su}, s{sblk}, 3")
    k(f"s_lshl_b32 s{su}, s{su}, 2")
    k(f"s_add_u32 s{st}, s{st}, s{su}")
    k(f"s_lshl_b32 s{su}, s{stau}, 4")
    k(f"s_add_u32 s{st}, s{st}, s{su}")
    k(f"s_mul_i32 s{sxo}, s{st}, 1280")
    k(f"s_lshl_b32 s{su}, s{stt}, 5")
    k(f"s_add_u32 s{sxo}, s{sxo}, s{su}")
    k(f"v_lshlrev_b32 v{vxa}, 6, v{vm}")
    k(f"v_lshl_add_u32 v{vxa}, v{vg}, 3, v{vxa}")
    k(f"v_lshrrev_b32 v{t2}, 2, v{vm}")
    k(f"v_mul_u32_u24 v{vxl}, 1280, v{t2}")
    k(f"v_and_b32 v{t3}, 3, v0")
    k(f"v_lshl_add_u32 v{vxl}, v{t3}, 6, v{vxl}")
    k(f"v_lshl_add_u32 v{vxl}, v{vg}, 3, v{vxl}")
    k(f"v_add_u32 v{vxl}, 1024, v{vxl}")
    k(f"s_mul_i32 s{st}, s{sblk}, {T2_STRIDE}")
    k(f"s_lshl_b32 s{sm}, s{sw}, 10")
    XM = k.v(10, 2)
    k("s_waitcnt lgkmcnt(0)")
    k(f"s_add_u32 s{S2}, s{sws}, s{st}")
    k(f"s_addc_u32 s{S2+1}, s{sws+1}, 0")
    k(f"s_add_u32 s{S2}, s{S2}, {OFF_T2}")
    k(f"s_addc_u32 s{S2+1}, s{S2+1}, 0")
    k(f"s_mov_b32 s{S2+2}, {321*32}")
    k(f"s_mov_b32 s{S2+3}, 0x20000")
    for it in range(3):
        k(f"s_add_u32 m0, s{sm}, {4096*it}")
        k(f"s_movk_i32 s{su}, {4096*it}")
        k(f"buffer_load_dwordx4 v{vda}, {sr(S2,4)}, s{su} offen lds")
    k.srd(SX, sx, 2048*1280)
    for i in range(4): k(f"buffer_load_dwordx2 {vr(XM+2*i,2)}, v{vxa}, {sr(SX,4)}, s{sxo} offen offset:{1280*i}")
    k(f"buffer_load_dwordx2 {vr(XM+8,2)}, v{vxl}, {sr(SX,4)}, s{sxo} offen")
    k.srd(SH, sws, 2048*1280, OFF_H); k.srd(SL, sws, 128*20*1024, OFF_LN2)
    MC = k.v(4, 4); MS = k.v(4, 4); MsC = k.v(4, 4); MnsS = k.v(4, 4)
    TC = k.v(6, 2); TS = k.v(6, 2)
    BM = k.v(4, 4); BL = k.v(16, 4)
    ang = k.v(8, 2); tmp = k.v(4, 2); fn = k.v(); fg = k.v(); a0 = k.v(); fm = k.v(); sg = k.v()
    k(f"v_cvt_f32_u32 v{fm}, v{vm}")
    k(f"v_cvt_f32_u32 v{fg}, v{vg}")
    k(f"s_lshl_b32 s{su}, s{stt}, 4")
    k(f"v_cvt_f32_u32 v{fn}, s{su}")
    k(f"v_add_f32 v{fn}, v{fn}, v{fm}")
    k(f"v_mul_f32 v{a0}, {fl(1/32)}, v{fn}")
    k(f"v_mul_f32 v{ang}, {fl(8.0)}, v{fg}")
    k(f"v_mul_f32 v{ang}, v{ang}, v{a0}")
    for j in range(1, 8): k(f"v_add_f32 v{ang+j}, v{ang+j-1}, v{a0}")
    gen_cs8(k, ang, MC, MS, tmp)
    k(f"v_bfe_u32 v{sg}, v0, 5, 1")
    k(f"v_mul_u32_u24 v{sg}, 0x8000, v{sg}")
    k(f"v_lshl_or_b32 v{sg}, v{sg}, 16, v{sg}")
    k(f"v_xor_b32 v{t2}, 0x80008000, v{sg}")
    for p in range(4):
        k(f"v_xor_b32 v{MsC+p}, v{sg}, v{MC+p}")
        k(f"v_xor_b32 v{MnsS+p}, v{t2}, v{MS+p}")
    k(f"v_mul_f32 v{a0}, {fl(1/640)}, v{fn}")
    k(f"v_mul_f32 v{ang}, v{a0}, v{fg}")
    for T in range(1, 3): k(f"v_fmamk_f32 v{ang+T}, v{a0}, {fl(4.0*T)}, v{ang}")
    for T in range(3):
        k(f"v_cos_f32 v{TC+2*T}, v{ang+T}")
        k(f"v_sin_f32 v{TC+2*T+1}, v{ang+T}")
    for which in range(2):
        if which == 0: k(f"v_mul_f32 v{a0}, {fl(1/20)}, v{fm}")
        else:
            k(f"v_cvt_f32_u32 v{a0}, v{t3}")
            k(f"v_add_f32 v{a0}, {fl(16.0)}, v{a0}")
            k(f"v_mul_f32 v{a0}, {fl(1/20)}, v{a0}")
        k(f"v_mul_f32 v{ang}, v{a0}, v{fg}")
        for T in range(1, 3): k(f"v_fmamk_f32 v{ang+T}, v{a0}, {fl(4.0*T)}, v{ang}")
        dst = BM if which == 0 else ang + 4
        for T in range(3):
            k(f"v_cos_f32 v{tmp}, v{ang+T}")
            k(f"v_sin_f32_e64 v{tmp+1}, -v{ang+T}")
            k(f"v_cvt_pk_bf16_f32 v{dst+T}, v{tmp}, v{tmp+1}")
    k(f"v_mov_b32 v{BM+3}, 0")
    for i in range(16): k(f"v_mov_b32 v{BL+i}, 0")
    k.exec_mask(0xFFFF000000000000)
    k(f"v_mov_b32 v{BM+2}, 0")
    k(f"v_mov_b32 v{ang+6}, 0")
    for i in range(4):
        k.exec_mask(0x000F000F000F000F << (4*i))
        for T in range(3): k(f"v_mov_b32 v{BL+4*i+T}, v{ang+4+T}")
    k.exec_all()
    AD = k.v(6); vsn = k.v()
    k(f"v_bfe_u32 v{t2}, v0, 2, 2")
    k(f"v_lshl_add_u32 v{t2}, v{vg}, 3, v{t2}")
    k(f"v_mad_u32_u24 v{t2}, v{t2}, 20, v{t3}")
    k(f"v_lshlrev_b32 v{t2}, 5, v{t2}")
    k(f"s_lshl_b32 s{su}, s{stau}, 3")
    k.exec_mask(0x00000000FFFFFFFF)
    k(f"v_add_u32 v{t2}, s{su}, v{t2}")
    for T in range(3):
        for jh in range(2): k(f"v_add_u32 v{AD+2*T+jh}, {(4*T + 80*jh)*32}, v{t2}")
    k.exec_mask(0xFFFFFFFF00000000)
    k(f"v_sub_u32 v{t2}, s{su}, v{t2}")
    for T in range(3):
        for jh in range(2): k(f"v_add_u32 v{AD+2*T+jh}, {(640 - 4*T - 80*jh)*32}, v{t2}")
    k.exec_mask(0x1111111000000000); k(f"v_mov_b32 v{AD+0}, {ZOFF}")
    k.exec_mask(0x1111111100000000); k(f"v_mov_b32 v{AD+1}, {ZOFF}")
    k.exec_mask(0x4444444400000000); k(f"v_mov_b32 v{AD+4}, {ZOFF}"); k(f"v_mov_b32 v{AD+5}, {ZOFF}")
    k.exec_all()
    vh = k.v(); vln = k.v(); vlnl = k.v(); vsw = k.v(); vsr = k.v(); vsl = k.v()
    k(f"v_and_b32 v{t2}, 1, v{vg}")
    k(f"v_mul_u32_u24 v{vh}, 1280, v{t2}")
    k(f"v_lshl_add_u32 v{vh}, v{vm}, 6, v{vh}")
    k(f"v_lshrrev_b32 v{vsn}, 1, v{vg}")
    k(f"v_lshl_add_u32 v{vh}, v{vsn}, 4, v{vh}")
    k(f"v_lshlrev_b32 v{vln}, 10, v{vm}")
    k(f"v_lshl_add_u32 v{vln}, v{vsn}, 8, v{vln}")
    k(f"v_lshrrev_b32 v{vlnl}, 2, v{vm}")
    k(f"v_lshlrev_b32 v{vlnl}, 4, v{vlnl}")
    k(f"v_lshl_add_u32 v{vlnl}, v{vsn}, 8, v{vlnl}")
    k(f"v_lshl_add_u32 v{vlnl}, v{t2}, 3, v{vlnl}")
    k(f"v_lshl_add_u32 v{vlnl}, v{t3}, 10, v{vlnl}")
    k(f"v_add_u32 v{vlnl}, {16*1024}, v{vlnl}")
    k(f"v_lshl_add_u32 v{vln}, v{t2}, 4, v{vln}")
    k(f"s_lshr_b32 s{st}, s{sblk}, 1")
    k(f"s_mul_i32 s{slo}, s{st}, {20*1024}")
    k(f"s_and_b32 s{st}, s{sblk}, 1")
    k(f"s_lshl_b32 s{st}, s{st}, 7")
    k(f"s_add_u32 s{slo}, s{slo}, s{st}")
    k(f"s_lshl_b32 s{st}, s{stau}, 6")
    k(f"s_add_u32 s{slo}, s{slo}, s{st}")
    k(f"s_lshl_b32 s{st}, s{stt}, 9")
    k(f"s_add_u32 s{slo}, s{slo}, s{st}")
    k(f"v_lshlrev_b32 v{vsw}, 4, v{t2}")
    k(f"v_lshl_add_u32 v{vsw}, v{vsn}, 3, v{vsw}")
    k(f"s_lshl_b32 s{st}, s{stau}, 6")
    k(f"s_add_u32 s{st}, s{st}, {STAT}")
    k(f"v_mov_b32 v{vsr}, s{st}")
    k(f"s_lshl_b32 s{su}, s{stt}, 5")
    k(f"s_add_u32 s{su}, s{su}, s{st}")
    k(f"v_add_u32 v{vsw}, s{su}, v{vsw}")
    k(f"v_lshrrev_b32 v{vsl}, 2, v{vm}")
    k(f"v_lshl_add_u32 v{vsl}, v{vsl}, 3, v{vsr}")
    A = k.v(24, 4)
    k.stamp_mid(0)
    k("s_waitcnt vmcnt(5)")
    k("s_barrier")
    k.stamp_mid(1)
    for T in range(3):
        for o in range(2):
            for jh in range(2): k(f"ds_read_b64_tr_b16 {vr(A+8*T+4*o+2*jh,2)}, v{AD+2*T+jh} offset:{16*o}")
    DA = k.v(24, 4)
    for T in range(3):
        k(f"s_waitcnt lgkmcnt({8 - 4*T})")
        mfma(k, DA + 8*T, A + 8*T, MC); mfma(k, DA + 8*T + 4, A + 8*T, MS)
        mfma(k, DA + 8*T, A + 8*T + 4, MnsS, DA + 8*T); mfma(k, DA + 8*T + 4, A + 8*T + 4, MsC, DA + 8*T + 4)
    E = A; OP = k.v(16, 4)
    for i in range(4): k(f"v_mov_b32 v{OP+4*i+3}, 0")
    for T in range(3):
        for h in range(2):
            R = DA + 8*T + 2*h; I = R + 4; oR = E + 8*T + 2*h; oI = oR + 4; cs = TC + 2*T
            k(f"v_pk_mul_f32 {vr(oR,2)}, {vr(R,2)}, {vr(cs,2)} op_sel_hi:[1,0]")
            k(f"v_pk_mul_f32 {vr(oI,2)}, {vr(I,2)}, {vr(cs,2)} op_sel_hi:[1,0]")
            k(f"v_pk_fma_f32 {vr(oR,2)}, {vr(I,2)}, {vr(cs,2)}, {vr(oR,2)} op_sel:[0,1,0] neg_lo:[1,0,0] neg_hi:[1,0,0]")
            k(f"v_pk_fma_f32 {vr(oI,2)}, {vr(R,2)}, {vr(cs,2)}, {vr(oI,2)} op_sel:[0,1,0]")
        for i in range(4): k(f"v_cvt_pk_bf16_f32 v{OP+4*i+T}, v{E+8*T+i}, v{E+8*T+4+i}")
    Y = DA
    for i in range(4):
        mfma(k, Y + 4*i, OP + 4*i, BM)
    for i in range(4):
        mfma(k, Y + 16, OP + 4*i, BL + 4*i, None if i == 0 else Y + 16)
    XF = A
    k("s_waitcnt vmcnt(0)")
    for i in range(10):
        k(f"v_lshlrev_b32 v{XF+2*i}, 16, v{XM+i}")
        k(f"v_and_b32 v{XF+2*i+1}, 0xffff0000, v{XM+i}")
    HP = XM
    for i in range(10):
        k(f"v_pk_add_f32 {vr(XF+2*i,2)}, {vr(XF+2*i,2)}, {vr(Y+2*i,2)}")
    for i in range(10): k(f"v_cvt_pk_bf16_f32 v{HP+i}, v{XF+2*i}, v{XF+2*i+1}")
    ones = tmp; ST = k.v(10, 2)
    k(f"v_mov_b32 v{ones}, 0x3f803f80")
    for i in range(5):
        k(f"v_dot2_f32_bf16 v{ST+2*i}, v{HP+2*i}, v{ones}, 0")
        k(f"v_dot2_f32_bf16 v{ST+2*i+1}, v{HP+2*i}, v{HP+2*i}, 0")
    for i in range(5):
        k(f"v_dot2_f32_bf16 v{ST+2*i}, v{HP+2*i+1}, v{ones}, v{ST+2*i}")
        k(f"v_dot2_f32_bf16 v{ST+2*i+1}, v{HP+2*i+1}, v{HP+2*i+1}, v{ST+2*i+1}")
    for i in range(10):
        k(f"v_lshlrev_b32 v{XF+2*i}, 16, v{HP+i}")
        k(f"v_and_b32 v{XF+2*i+1}, 0xffff0000, v{HP+i}")
    for i in range(4):
        k.exec_mask(0x000F000F000F000F << (4*i))
        k(f"v_pk_add_f32 {vr(ST+2*i,2)}, {vr(ST+2*i,2)}, {vr(ST+8,2)}")
    k.exec_all()
    for q in range(2):
        k(f"v_permlane32_swap_b32 v{ST+q}, v{ST+2+q}")
        k(f"v_permlane32_swap_b32 v{ST+4+q}, v{ST+6+q}")
    k(f"v_pk_add_f32 {vr(ST,2)}, {vr(ST,2)}, {vr(ST+2,2)}")
    k(f"v_pk_add_f32 {vr(ST+4,2)}, {vr(ST+4,2)}, {vr(ST+6,2)}")
    for q in range(2): k(f"v_permlane16_swap_b32 v{ST+q}, v{ST+4+q}")
    k(f"v_pk_add_f32 {vr(ST,2)}, {vr(ST,2)}, {vr(ST+4,2)}")
    for sh in (8, 4, 2, 1):
        for q in range(2): k(f"v_add_f32_dpp v{ST+q}, v{ST+q}, v{ST+q} row_ror:{sh} row_mask:0xf bank_mask:0xf")
    k.exec_mask(0x0001000100010001)
    k(f"ds_write_b64 v{vsw}, {vr(ST,2)}")
    k.exec_all()
    HS = OP
    for pr in range(2):
        for q in range(4): k(f"v_mov_b32 v{HS+4*pr+q}, v{HP+4*pr+q}")
    for pr in range(2):
        for q in range(2): k(f"v_permlane16_swap_b32 v{HS+4*pr+q}, v{HS+4*pr+2+q}")
    k("s_waitcnt lgkmcnt(0)")
    k("s_barrier")
    G = k.v(20, 4)
    for t in range(2):
        for hh in range(2): k(f"ds_read_b128 {vr(G+8*t+4*hh,4)}, v{vsr} offset:{32*t+16*hh}")
    for t in range(2): k(f"ds_read_b64 {vr(G+16+2*t,2)}, v{vsl} offset:{32*t}")
    for pr in range(2):
        k(f"buffer_store_dwordx4 {vr(HS+4*pr,4)}, v{vh}, {sr(SH,4)}, s{sxo} offen offset:{2560*pr}")
    k(f"buffer_store_dwordx2 {vr(HP+8,2)}, v{vxl}, {sr(SH,4)}, s{sxo} offen")
    k("s_waitcnt lgkmcnt(0)")
    for i in range(4): k(f"v_pk_add_f32 {vr(ST+2*i,2)}, {vr(G+2*i,2)}, {vr(G+8+2*i,2)}")
    k(f"v_pk_add_f32 {vr(ST+8,2)}, {vr(G+16,2)}, {vr(G+18,2)}")
    SCL = G
    chains = []
    for i in range(5):
        kk = K("tmp", 0); ln_stats(kk, ST+2*i, ST+2*i+1, SCL+2*i, SCL+2*i+1, Y + i); chains.append(kk.L)
    for j in range(len(chains[0])):
        for c in chains: k.L.append(c[j])
    LP = Y + 8
    for i in range(10):
        sc_ = SCL + 2*(i >> 1)
        k(f"v_pk_fma_f32 {vr(XF+2*i,2)}, {vr(XF+2*i,2)}, {vr(sc_,2)}, {vr(sc_,2)} op_sel:[0,0,1] op_sel_hi:[1,0,1]")
    for i in range(10): k(f"v_cvt_pk_bf16_f32 v{LP+i}, v{XF+2*i}, v{XF+2*i+1}")
    for pr in range(2):
        for q in range(2): k(f"v_permlane16_swap_b32 v{LP+4*pr+q}, v{LP+4*pr+2+q}")
    for pr in range(2):
        k(f"buffer_store_dwordx4 {vr(LP+4*pr,4)}, v{vln}, {sr(SL,4)}, s{slo} offen offset:{32*pr}")
    k(f"buffer_store_dwordx2 {vr(LP+8,2)}, v{vlnl}, {sr(SL,4)}, s{slo} offen")
    k.stamp_end(sws)
    k("s_endpgm")
    k.v.reset(1); k.s.reset(sx + 2)
    weight_job(k, "K3_side", 256, 'w2', "K3_done", sws)
    k.stamp_end(sws)
    k.label("K3_done")
    k("s_endpgm")
    return k, 256 + 135, 256, STAT + 128

def gen_k4():
    k = K("k4_kernel", 3)
    sws = k.s(2, 2); sb = k.s(2, 2)
    k.stamp_start()
    k(f"s_load_dwordx2 {sr(sws,2)}, s[0:1], 80")
    k(f"s_load_dwordx2 {sr(sb,2)}, s[0:1], 40")
    k("s_cmp_ge_u32 s2, 256")
    k("s_cbranch_scc1 K4_done")
    SL = k.s(4, 4); SW = k.s(4, 4); SB = k.s(4, 4); SO = k.s(4, 4)
    srt = k.s(); sct = k.s(); sfb = k.s(); st = k.s(); su = k.s(); sw = k.s(); swo = k.s(); swo2 = k.s(); sl0 = k.s(); sl1 = k.s(); sm = k.s(); so = k.s()
    k(f"s_and_b32 s{srt}, s2, 7")
    k(f"s_lshl_b32 s{srt}, s{srt}, 1")
    k(f"s_lshr_b32 s{st}, s2, 7")
    k(f"s_add_u32 s{srt}, s{srt}, s{st}")
    k(f"s_bfe_u32 s{sct}, s2, 0x40003")
    k(f"s_lshr_b32 s{st}, s{sct}, 2")
    k(f"s_mul_i32 s{sfb}, s{st}, 27")
    k(f"s_and_b32 s{st}, s{sct}, 3")
    k(f"s_mul_i32 s{su}, s{st}, 7")
    k(f"s_min_u32 s{su}, s{su}, 20")
    k(f"s_add_u32 s{sfb}, s{sfb}, s{su}")
    vw = k.v(); vl16 = k.v(); vb = k.v(); vlr = k.v(3); vst = k.v()
    k(f"v_lshrrev_b32 v{vw}, 6, v0")
    k(f"v_and_b32 v{vl16}, 63, v0")
    k(f"v_readfirstlane_b32 s{sw}, v{vw}")
    k(f"v_lshlrev_b32 v{vl16}, 4, v{vl16}")
    k(f"v_bfe_u32 v{vb}, v0, 4, 2")
    k(f"v_lshlrev_b32 v{vb}, 3, v{vb}")
    k(f"s_lshl_b32 s{su}, s{sfb}, 5")
    k(f"s_mul_i32 s{swo}, s{sw}, 108")
    k(f"s_add_u32 s{swo}, s{swo}, s{sfb}")
    k(f"s_lshl_b32 s{swo}, s{swo}, 10")
    k(f"s_mul_i32 s{sm}, s{sw}, {7*1024}")
    k(f"s_lshl_b32 s{st}, s{srt}, 2")
    k(f"s_add_u32 s{st}, s{st}, s{sw}")
    k(f"s_mul_i32 s{sl0}, s{st}, {2*20*1024}")
    k(f"s_add_u32 s{sl1}, s{sl0}, {20*1024}")
    k(f"s_lshl_b32 s{st}, s{srt}, 1")
    k(f"s_lshr_b32 s{so}, s{sw}, 1")
    k(f"s_add_u32 s{st}, s{st}, s{so}")
    k(f"s_mul_i32 s{so}, s{st}, {54*4096}")
    k(f"s_and_b32 s{st}, s{sw}, 1")
    k(f"s_lshl_b32 s{st}, s{st}, 11")
    k(f"s_add_u32 s{so}, s{so}, s{st}")
    for i in range(3): k(f"v_add_u32 v{vlr+i}, {65536*i}, v{vl16}")
    BI = k.v(14, 2); Bf = k.v(160, 4); Af = k.v(56, 4)
    ACC = k.a(56, 4)
    k("s_waitcnt lgkmcnt(0)")
    k.srd(SB, sb, 1728*2); k.srd(SW, sws, 20*108*1024, OFF_W1); k.srd(SL, sws, 128*20*1024, OFF_LN2)
    for b in range(7): k(f"buffer_load_dwordx2 {vr(BI+2*b,2)}, v{vb}, {sr(SB,4)}, s{su} offen offset:{32*b}")
    def issue(c):
        k(f"s_add_u32 m0, s{sm}, {c*4*7*1024}")
        k(f"s_add_u32 s{swo2}, s{swo}, 4096")
        for b in range(4): k(f"buffer_load_dwordx4 v{vl16}, {sr(SW,4)}, s{swo} offen offset:{1024*b} lds")
        k(f"s_add_u32 m0, s{sm}, {c*4*7*1024 + 4096}")
        k(f"s_add_u32 s{swo}, s{swo}, {4*108*1024}")
        for b in range(3): k(f"buffer_load_dwordx4 v{vl16}, {sr(SW,4)}, s{swo2} offen offset:{1024*b} lds")
        for q in range(4):
            for rho in range(2):
                k(f"buffer_load_dwordx4 {vr(Bf + (4*c+q)*8 + 4*rho, 4)}, v{vl16}, {sr(SL,4)}, s{sl0 if rho == 0 else sl1} offen offset:{1024*q}")
        k(f"s_add_u32 s{sl0}, s{sl0}, 4096")
        k(f"s_add_u32 s{sl1}, s{sl1}, 4096")
    for c in range(3): issue(c)
    k.srd(SO, sws, 32*54*4096, OFF_HP)
    k("s_waitcnt vmcnt(45)")
    T = Af
    for b in range(7):
        for q in range(2):
            k(f"v_lshlrev_b32 v{T+2*q}, 16, v{BI+2*b+q}")
            k(f"v_and_b32 v{T+2*q+1}, 0xffff0000, v{BI+2*b+q}")
        for rho in range(2):
            for r in range(4): k(f"v_accvgpr_write_b32 a{ACC+8*b+4*rho+r}, v{T+r}")
    issue(3)
    def rd(ks, buf):
        for b in range(7):
            off = (ks*7 + b) * 1024
            k(f"ds_read_b128 {vr(Af + 28*buf + 4*b, 4)}, v{vlr + (off >> 16)} offset:{off & 0xffff}")
    k.stamp_mid(0)
    for c in range(5):
        k(f"s_waitcnt vmcnt({[45, 45, 30, 15, 0][c]})")
        k("s_barrier")
        if c == 0: k.stamp_mid(1)
        rd(4*c, 0)
        if c == 0: issue(4)
        for q in range(4):
            ks = 4*c + q
            if q < 3:
                rd(ks + 1, (q + 1) & 1)
            for b in range(7):
                k(f"s_waitcnt lgkmcnt({(7 if q < 3 else 0) + 6 - b})")
                for rho in range(2):
                    mfma(k, ACC + 8*b + 4*rho, Af + 28*(q & 1) + 4*b, Bf + ks*8 + 4*rho, ACC + 8*b + 4*rho, dp='a')
    k.stamp_mid(2)
    E = Bf
    for b in range(7):
        k(f"s_add_u32 s{st}, s{sfb}, {b}")
        k(f"s_lshr_b32 s{su}, s{st}, 1")
        k(f"s_lshl_b32 s{su}, s{su}, 12")
        k(f"s_and_b32 s{st}, s{st}, 1")
        k(f"s_lshl_b32 s{st}, s{st}, 3")
        k(f"s_add_u32 s{su}, s{su}, s{st}")
        sreg = [swo, swo2][b & 1]
        k(f"s_add_u32 s{sreg}, s{su}, s{so}")
        e = E + 12*b
        for i in range(8): k(f"v_accvgpr_read_b32 v{e+i}, a{ACC+8*b+i}")
        for i in range(8): k(f"v_max_f32 v{e+i}, 0, v{e+i}")
        for i in range(4): k(f"v_pk_mul_f32 {vr(e+2*i,2)}, {vr(e+2*i,2)}, {vr(e+2*i,2)}")
        for i in range(4): k(f"v_cvt_pk_bf16_f32 v{e+8+i}, v{e+2*i}, v{e+2*i+1}")
        for rho in range(2):
            k(f"buffer_store_dwordx2 {vr(e+8+2*rho,2)}, v{vl16}, {sr(SO,4)}, s{sreg} offen offset:{1024*rho}")
    k.stamp_end(sws)
    k.label("K4_done")
    k("s_endpgm")
    return k, 256, 256, 140 * 1024

def gen_k5():
    k = K("k5_kernel", 4)
    DEPTH = 6
    sws = k.s(2, 2); sb = k.s(4, 4)
    k.stamp_start()
    k(f"s_load_dwordx2 {sr(sws,2)}, s[0:1], 80")
    k(f"s_load_dwordx4 {sr(sb,4)}, s[0:1], 56")
    k("s_cmp_ge_u32 s2, 256")
    k("s_cbranch_scc1 K5_done")
    SHp = k.s(4, 4); SW = k.s(4, 4); SB = k.s(4, 4); SH = k.s(4, 4); SO = k.s(4, 4)
    srt = k.s(); sct = k.s(); st = k.s(); su = k.s(); sw = k.s(); swo = k.s(); swo2 = k.s(); sho = k.s(); so = k.s(); sbo = k.s()
    k(f"s_and_b32 s{srt}, s2, 7")
    k(f"s_lshl_b32 s{srt}, s{srt}, 2")
    k(f"s_lshr_b32 s{st}, s2, 6")
    k(f"s_add_u32 s{srt}, s{srt}, s{st}")
    k(f"s_bfe_u32 s{sct}, s2, 0x30003")
    vw = k.v(); vl16 = k.v(); vg8 = k.v(); vo = k.v(); t2 = k.v(); vlw = k.v(); vlr = k.v()
    k(f"v_lshrrev_b32 v{vw}, 6, v0")
    k(f"v_and_b32 v{vl16}, 63, v0")
    k(f"v_readfirstlane_b32 s{sw}, v{vw}")
    k(f"v_lshlrev_b32 v{vl16}, 4, v{vl16}")
    k(f"s_mul_i32 s{swo}, s{sw}, 40")
    k(f"s_mul_i32 s{st}, s{sct}, 5")
    k(f"s_add_u32 s{swo}, s{swo}, s{st}")
    k(f"s_lshl_b32 s{swo}, s{swo}, 10")
    k(f"s_mul_i32 s{sho}, s{srt}, 54")
    k(f"s_add_u32 s{sho}, s{sho}, s{sw}")
    k(f"s_lshl_b32 s{sho}, s{sho}, 12")
    BUF = k.v(36*DEPTH, 4); ACC = k.a(80, 4)
    k("s_waitcnt lgkmcnt(0)")
    k.srd(SW, sws, 54*40*1024, OFF_W2); k.srd(SHp, sws, 32*54*4096, OFF_HP)
    def issue(n):
        bb = BUF + 36*(n % DEPTH)
        if n == 13:
            k(f"s_cmp_ge_u32 s{sw}, 2")
            k(f"s_cselect_b32 s{sho}, 0x7f000000, s{sho}")
        k(f"s_add_u32 s{swo2}, s{swo}, 4096")
        for i in range(4):
            k(f"buffer_load_dwordx4 {vr(bb+4*i,4)}, v{vl16}, {sr(SW,4)}, s{swo} offen offset:{1024*i}")
            k(f"buffer_load_dwordx4 {vr(bb+20+4*i,4)}, v{vl16}, {sr(SHp,4)}, s{sho} offen offset:{1024*i}")
        k(f"buffer_load_dwordx4 {vr(bb+16,4)}, v{vl16}, {sr(SW,4)}, s{swo2} offen")
        k(f"s_add_u32 s{swo}, s{swo}, {4*40*1024}")
        k(f"s_add_u32 s{sho}, s{sho}, {4*4096}")
    for n in range(DEPTH): issue(n)
    k.srd(SB, sb, 640*2); k.srd(SH, sws, 2048*1280, OFF_H); k.srd(SO, sb+2, 2048*1280)
    k(f"s_lshl_b32 s{st}, s{srt}, 2")
    k(f"s_add_u32 s{st}, s{st}, s{sw}")
    k(f"s_lshr_b32 s{su}, s{st}, 1")
    k(f"s_lshl_b32 s{su}, s{su}, 5")
    k(f"s_and_b32 s{st}, s{st}, 1")
    k(f"s_lshl_b32 s{st}, s{st}, 3")
    k(f"s_add_u32 s{su}, s{su}, s{st}")
    k(f"s_mul_i32 s{so}, s{su}, 1280")
    k(f"s_mul_i32 s{sbo}, s{sct}, 160")
    k(f"s_add_u32 s{so}, s{so}, s{sbo}")
    k(f"v_bfe_u32 v{vg8}, v0, 4, 2")
    k(f"v_lshlrev_b32 v{vg8}, 3, v{vg8}")
    k(f"v_and_b32 v{vo}, 3, v0")
    k(f"v_bfe_u32 v{t2}, v0, 2, 1")
    k(f"v_lshl_add_u32 v{vo}, v{t2}, 4, v{vo}")
    k(f"v_bfe_u32 v{t2}, v0, 3, 1")
    k(f"v_lshl_add_u32 v{vo}, v{t2}, 2, v{vo}")
    k(f"v_mul_u32_u24 v{vo}, 1280, v{vo}")
    k(f"v_add_u32 v{vo}, v{vo}, v{vg8}")
    k(f"s_mul_i32 s{st}, s{sw}, {5*1024}")
    k(f"v_add_u32 v{vlw}, s{st}, v{vl16}")
    k(f"s_mul_i32 s{st}, s{sw}, {20*1024}")
    k(f"v_add_u32 v{vlr}, s{st}, v{vl16}")
    HB = k.v(10, 2); BB = k.v(10, 2)
    k.stamp_mid(0)
    NS = 14
    for n in range(NS):
        out_after = min(NS - 1, n + DEPTH - 1) - n
        extra = 10 if n >= NS - DEPTH + 1 else 0
        k(f"s_waitcnt vmcnt({9*out_after + extra})")
        if n == 0: k.stamp_mid(1)
        bb = BUF + 36*(n % DEPTH)
        for b in range(5):
            for rf in range(4):
                d = ACC + 4*(5*rf + b)
                mfma(k, d, bb + 4*b, bb + 20 + 4*rf, None if n == 0 else d, dp='a')
        if n + DEPTH < NS: issue(n + DEPTH)
        if n + DEPTH == NS:
            for b in range(5):
                k(f"buffer_load_dwordx2 {vr(HB+2*b,2)}, v{vo}, {sr(SH,4)}, s{so} offen offset:{32*b}")
                k(f"buffer_load_dwordx2 {vr(BB+2*b,2)}, v{vg8}, {sr(SB,4)}, s{sbo} offen offset:{32*b}")
    k.stamp_mid(2)
    k(f"v_add_u32 v{t2}, 40960, v{vlw}")
    for rf in range(4):
        for b in range(5):
            k(f"ds_write_b128 v{vlw if rf < 2 else t2}, {ar(ACC+4*(5*rf+b),4)} offset:{((rf&1)*20 + b)*1024}")
    k("s_waitcnt lgkmcnt(0)")
    k("s_barrier")
    R = BUF
    for src in range(4):
        for b in range(5): k(f"ds_read_b128 {vr(R+4*(5*src+b),4)}, v{vlr} offset:{(src*5+b)*1024}")
    F = BUF + 80
    k("s_waitcnt vmcnt(0)")
    for i in range(10):
        k(f"v_lshlrev_b32 v{F+2*i}, 16, v{HB+i}")
        k(f"v_and_b32 v{F+2*i+1}, 0xffff0000, v{HB+i}")
        k(f"v_lshlrev_b32 v{F+20+2*i}, 16, v{BB+i}")
        k(f"v_and_b32 v{F+20+2*i+1}, 0xffff0000, v{BB+i}")
    for i in range(10): k(f"v_pk_add_f32 {vr(F+2*i,2)}, {vr(F+2*i,2)}, {vr(F+20+2*i,2)}")
    for src in range(4):
        k(f"s_waitcnt lgkmcnt({15 - 5*src})")
        for i in range(10): k(f"v_pk_add_f32 {vr(F+2*i,2)}, {vr(F+2*i,2)}, {vr(R+20*src+2*i,2)}")
    for b in range(5):
        for q in range(2): k(f"v_cvt_pk_bf16_f32 v{HB+2*b+q}, v{F+4*b+2*q}, v{F+4*b+2*q+1}")
        k(f"buffer_store_dwordx2 {vr(HB+2*b,2)}, v{vo}, {sr(SO,4)}, s{so} offen offset:{32*b}")
    k.stamp_end(sws)
    k.label("K5_done")
    k("s_endpgm")
    return k, 256, 256, 80 * 1024

def main():
    global STAMP
    STAMP = "--stamp" in sys.argv
    ks = [gen_k1(), gen_k2(), gen_k3(), gen_k4(), gen_k5()]
    hdr = open("cdna_kernels/" + NAME + ".s.ref").read().split("\n")
    hdr = [l for l in hdr if l.startswith(";") and "@launch" not in l and "Override launch" not in l and "grid=ceil" not in l]
    out = hdr[:]
    for k, g, b, lds in ks: out.append(f"; @launch kernel={k.name} grid=({g},1,1) block=({b},1,1) lds={lds}")
    out.append('.amdgcn_target "amdgcn-amd-amdhsa--gfx950"\n.text')
    for k, *_ in ks: out.append(k.text())
    out.append('.section .rodata,"a"')
    for k, *_ in ks: out.append(k.desc())
    print("\n".join(out))

if __name__ == "__main__": main()
```

```python
import sys, struct
from asmlib import *

NAME = "sequential_preLN__spectral_gfnet__dense_activation_squared_relu__prompt"
MB = 1 << 20
OFF_T1, OFF_WT, OFF_T2, OFF_H, OFF_LN2, OFF_W1, OFF_W2, OFF_HP, OFF_FL = 0, 4*MB, 8*MB, 12*MB, 16*MB, 20*MB, 24*MB, 28*MB, 36*MB
T1_BYTES = 321 * 8192
T2_STRIDE = 10368
STAMP = "--stamp" in sys.argv
STAMP_OFF = 250 << 20

def f2u(f): return struct.unpack('<I', struct.pack('<f', f))[0]
def fl(f): return "0x%08x" % f2u(f)

class K:
    def __init__(self, name, idx):
        self.name = name; self.idx = idx; self.L = []
        self.v = Alloc(1, 256); self.a = Alloc(0, 256); self.s = Alloc(3, 64)
    def __call__(self, s): self.L.append("  " + s)
    def label(self, s): self.L.append(s + ":")
    def srd(self, dst, base, nbytes, off=0):
        if off:
            self(f"s_add_u32 s{dst}, s{base}, {off}")
            self(f"s_addc_u32 s{dst+1}, s{base+1}, 0")
        else:
            self(f"s_mov_b32 s{dst}, s{base}")
            self(f"s_mov_b32 s{dst+1}, s{base+1}")
        self(f"s_mov_b32 s{dst+2}, {nbytes}")
        self(f"s_mov_b32 s{dst+3}, 0x20000")
    def exec_mask(self, m):
        self(f"s_mov_b32 exec_lo, 0x{m & 0xffffffff:08x}")
        self(f"s_mov_b32 exec_hi, 0x{m >> 32:08x}")
    def exec_all(self): self("s_mov_b64 exec, -1")
    def stamp_start(self):
        if STAMP: self("s_memrealtime s[64:65]")
    def stamp_mid(self, i):
        if STAMP: self(f"s_memrealtime s[{68+2*i}:{69+2*i}]")
    def stamp_clk(self, i):
        if STAMP: self(f"s_memtime s[{68+2*i}:{69+2*i}]")
    def stamp_end(self, wsreg):
        if not STAMP: return
        self("s_waitcnt vmcnt(0) lgkmcnt(0)")
        self("s_memrealtime s[66:67]")
        self("s_getreg_b32 s96, hwreg(HW_REG_XCC_ID)")
        self(f"s_add_u32 s94, s{wsreg}, {STAMP_OFF + self.idx*2048*64}")
        self(f"s_addc_u32 s95, s{wsreg+1}, 0")
        self("s_lshl_b32 s97, s2, 6")
        self("s_add_u32 s94, s94, s97")
        self("s_addc_u32 s95, s95, 0")
        self("s_waitcnt lgkmcnt(0)")
        self("v_cmp_eq_u32 vcc, 0, v0")
        self("s_and_saveexec_b64 s[98:99], vcc")
        lab = f"Lst{self.idx}_{len(self.L)}"
        self(f"s_cbranch_execz {lab}")
        for i, s in enumerate([64, 65, 66, 96] + [68 + 2*j for j in range(12)]): self(f"v_mov_b32 v{4+i}, s{s}")
        self("v_mov_b32 v2, 0")
        for j in range(4): self(f"global_store_dwordx4 v2, v[{4+4*j}:{7+4*j}], s[94:95] offset:{16*j}")
        self.label(lab)
    def text(self):
        body = fix_hazards(self.L)
        return f".globl {self.name}\n.p2align 8\n.type {self.name},@function\n{self.name}:\n" + "\n".join(body) + "\n"
    def desc(self):
        nv = max(self.v.hi, 20); acc = (nv + 3) // 4 * 4
        tot = acc + self.a.hi if self.a.hi else nv
        return (f".p2align 6\n.amdhsa_kernel {self.name}\n  .amdhsa_next_free_vgpr {tot}\n  .amdhsa_next_free_sgpr 102\n"
                f"  .amdhsa_accum_offset {acc}\n  .amdhsa_group_segment_fixed_size 0\n  .amdhsa_kernarg_size 88\n"
                f"  .amdhsa_user_sgpr_count 2\n  .amdhsa_user_sgpr_kernarg_segment_ptr 1\n  .amdhsa_system_sgpr_workgroup_id_x 1\n"
                f"  .amdhsa_float_denorm_mode_32 3\n.end_amdhsa_kernel\n")

def mfma(k, d, a, b, c=None, dp='v'):
    cs = "0" if c is None else vr(c, 4, dp)
    k(f"v_mfma_f32_16x16x32_bf16 {vr(d,4,dp)}, {vr(a,4)}, {vr(b,4)}, {cs}")

def gen_cs8(k, ang, C, S, tmp, negS=False):
    for p in range(4):
        k(f"v_cos_f32 v{tmp}, v{ang+2*p}")
        k(f"v_cos_f32 v{tmp+1}, v{ang+2*p+1}")
        n = "-" if negS else ""
        sfx = "_e64" if negS else ""
        k(f"v_sin_f32{sfx} v{tmp+2}, {n}v{ang+2*p}")
        k(f"v_sin_f32{sfx} v{tmp+3}, {n}v{ang+2*p+1}")
        k(f"v_cvt_pk_bf16_f32 v{C+p}, v{tmp}, v{tmp+1}")
        k(f"v_cvt_pk_bf16_f32 v{S+p}, v{tmp+2}, v{tmp+3}")

def bf16_round(k, d, s):
    k(f"v_cvt_pk_bf16_f32 v{d}, v{s}, v{s}")
    k(f"v_lshlrev_b32 v{d}, 16, v{d}")

def ln_stats(k, P, Q, rinv, nmr, t):
    k(f"v_mul_f32 v{P}, {fl(1/640)}, v{P}")
    k(f"v_mul_f32 v{Q}, {fl(1/640)}, v{Q}")
    k(f"v_fma_f32 v{Q}, -v{P}, v{P}, v{Q}")
    k(f"v_max_f32 v{Q}, 0, v{Q}")
    bf16_round(k, t, P)
    bf16_round(k, Q, Q)
    k(f"v_add_f32 v{Q}, {fl(1e-5)}, v{Q}")
    bf16_round(k, Q, Q)
    k(f"v_sqrt_f32 v{Q}, v{Q}")
    bf16_round(k, Q, Q)
    k(f"v_rcp_f32 v{rinv}, v{Q}")
    k(f"v_mul_f32_e64 v{nmr}, -v{t}, v{rinv}")

def cmul_pk(k, oR, oI, R, I, c, s, sign):
    k(f"v_pk_mul_f32 {vr(oR,2)}, {vr(R,2)}, {vr(c,2)}")
    k(f"v_pk_mul_f32 {vr(oI,2)}, {vr(I,2)}, {vr(c,2)}")
    ng = " neg_lo:[1,0,0] neg_hi:[1,0,0]"
    k(f"v_pk_fma_f32 {vr(oR,2)}, {vr(I,2)}, {vr(s,2)}, {vr(oR,2)}" + (ng if sign > 0 else ""))
    k(f"v_pk_fma_f32 {vr(oI,2)}, {vr(R,2)}, {vr(s,2)}, {vr(oI,2)}" + (ng if sign < 0 else ""))
```

```python
from g_base import *
from g_wj import *
def gen_k1():
    k = K("k1_kernel", 0)
    ROWB = 1280; OUTB = 8 * ROWB; REG = 2816
    sx = k.s(2, 2); sws = k.s(2, 2); swr = k.s(4, 4)
    k.stamp_start()
    k(f"s_load_dwordx2 {sr(sx,2)}, s[0:1], 0")
    k(f"s_load_dwordx2 {sr(sws,2)}, s[0:1], 80")
    k(f"s_load_dwordx4 {sr(swr,4)}, s[0:1], 8")
    k("s_cmp_ge_u32 s2, 256")
    k("s_cbranch_scc1 K1_side")
    SX = k.s(4, 4); ST = k.s(4, 4); sp2 = k.s(); sa = k.s(); st = k.s(); sxo = k.s(); sto = k.s(); sw = k.s(); s1m = k.s(); s2m = k.s()
    k(f"s_lshr_b32 s{st}, s2, 3")
    k(f"s_and_b32 s{sa}, s{st}, 3")
    k(f"s_lshr_b32 s{st}, s{st}, 2")
    k(f"s_and_b32 s{sp2}, s2, 7")
    k(f"s_lshl_b32 s{sp2}, s{sp2}, 2")
    k(f"s_and_b32 s{sxo}, s{st}, 3")
    k(f"s_add_u32 s{sp2}, s{sp2}, s{sxo}")
    k(f"s_lshr_b32 s{st}, s{st}, 2")
    k(f"s_lshl_b32 s{st}, s{st}, 2")
    k(f"s_add_u32 s{sa}, s{sa}, s{st}")
    k(f"s_lshl_b32 s{st}, s{sa}, 8")
    k(f"s_add_u32 s{st}, s{st}, s{sp2}")
    k(f"s_mul_i32 s{sxo}, s{st}, 1280")
    k(f"s_lshl_b32 s{sto}, s{sp2}, 8")
    k(f"s_lshl_b32 s{st}, s{sa}, 5")
    k(f"s_add_u32 s{sto}, s{sto}, s{st}")
    k(f"s_add_u32 s{s1m}, s{sto}, {1*MB}")
    k(f"s_add_u32 s{s2m}, s{sto}, {2*MB}")
    vi = k.v(); vl31 = k.v(); vxa = k.v(); vl = k.v(); vk1 = k.v(); vg = k.v(); vw = k.v()
    k(f"v_lshrrev_b32 v{vi}, 5, v0")
    k(f"v_and_b32 v{vl31}, 31, v0")
    k(f"v_mul_u32_u24 v{vxa}, 40960, v{vi}")
    k(f"v_lshl_add_u32 v{vxa}, v{vl31}, 3, v{vxa}")
    k(f"v_and_b32 v{vk1}, 15, v0")
    k(f"v_bfe_u32 v{vg}, v0, 4, 2")
    k(f"v_lshrrev_b32 v{vw}, 6, v0")
    X = k.v(10, 2)
    k("s_waitcnt lgkmcnt(0)")
    k.srd(SX, sx, 2048*1280)
    for it in range(5):
        k(f"buffer_load_dwordx2 {vr(X+2*it,2)}, v{vxa}, {sr(SX,4)}, s{sxo} offen offset:{256*it}")
    k.srd(ST, sws, T1_BYTES, OFF_T1)
    BR = k.v(4, 4); BI = k.v(4, 4); TC = k.v(8, 2); TS = k.v(8, 2)
    C0 = k.v(4, 4); S0 = k.v(4, 4); nS0 = k.v(4, 4); C1 = k.v(4, 4); S1 = k.v(4, 4); nC1 = k.v(4, 4)
    ang = k.v(8, 2); tmp = k.v(4, 2); fk = k.v(); fg = k.v(); a0 = k.v()
    k(f"v_cvt_f32_u32 v{fk}, v{vk1}")
    k(f"v_cvt_f32_u32 v{fg}, v{vg}")
    k(f"v_mul_f32 v{fg}, 4.0, v{fg}")
    k(f"v_mul_f32 v{a0}, {fl(1/20)}, v{fk}")
    k(f"v_mul_f32 v{ang}, v{a0}, v{fg}")
    for j in range(1, 4): k(f"v_add_f32 v{ang+j}, v{ang+j-1}, v{a0}")
    k(f"v_mul_f32 v{ang+4}, {fl(16.0)}, v{a0}")
    for j in range(5, 8): k(f"v_add_f32 v{ang+j}, v{ang+j-1}, v{a0}")
    gen_cs8(k, ang, BR, BI, tmp, negS=True)
    k.exec_mask(0xFFFFFFFFFFFF0000)
    for r in (BR+2, BR+3, BI+2, BI+3): k(f"v_mov_b32 v{r}, 0")
    k.exec_all()
    k(f"v_mul_f32 v{a0}, {fl(1/640)}, v{fk}")
    k(f"v_mul_f32 v{ang}, v{a0}, v{fg}")
    for j in range(1, 4): k(f"v_add_f32 v{ang+j}, v{ang+j-1}, v{a0}")
    for j in range(4): k(f"v_fmamk_f32 v{ang+4+j}, v{a0}, {fl(16.0)}, v{ang+j}")
    for j in range(8):
        k(f"v_cos_f32 v{TC+j}, v{ang+j}")
        k(f"v_sin_f32 v{TS+j}, v{ang+j}")
    k(f"v_mul_f32 v{a0}, {fl(1/32)}, v{fk}")
    k(f"v_mul_f32 v{ang}, v{a0}, v{fg}")
    for j in range(1, 4): k(f"v_add_f32 v{ang+j}, v{ang+j-1}, v{a0}")
    for j in range(4): k(f"v_fmamk_f32 v{ang+4+j}, v{a0}, {fl(16.0)}, v{ang+j}")
    gen_cs8(k, ang, C0, S0, tmp)
    for p in range(4):
        k(f"v_xor_b32 v{nS0+p}, 0x80008000, v{S0+p}")
        k(f"v_xor_b32 v{C1+p}, 0x80000000, v{C0+p}")
        k(f"v_xor_b32 v{S1+p}, 0x80000000, v{S0+p}")
        k(f"v_xor_b32 v{nC1+p}, 0x00008000, v{C0+p}")
    vwr = k.v(); vt0 = k.v(); vt1 = k.v(); voA = k.v(); voB = k.v(); vrd = k.v(); vst = k.v(); t2 = k.v()
    k(f"v_mul_u32_u24 v{vwr}, {ROWB}, v{vi}")
    k(f"v_lshl_add_u32 v{vwr}, v{vl31}, 3, v{vwr}")
    k(f"v_mul_u32_u24 v{vt0}, {2*ROWB}, v{vw}")
    k(f"v_and_b32 v{t2}, 3, v0")
    k(f"v_lshl_add_u32 v{vt0}, v{t2}, 3, v{vt0}")
    k(f"v_bfe_u32 v{t2}, v0, 2, 2")
    k(f"v_lshl_add_u32 v{vt0}, v{t2}, 6, v{vt0}")
    k(f"v_add_u32 v{vt1}, 1024, v{vt0}")
    k(f"v_lshl_add_u32 v{vt0}, v{vg}, 8, v{vt0}")
    k(f"v_mul_u32_u24 v{voA}, {REG}, v{vw}")
    k(f"v_add_u32 v{voA}, {OUTB}, v{voA}")
    k(f"v_mad_u32_u24 v{t2}, v{vg}, 5, 0")
    k(f"v_lshl_add_u32 v{t2}, v{t2}, 4, v{vk1}")
    k(f"v_lshlrev_b32 v{t2}, 2, v{t2}")
    k(f"v_sub_u32 v{voB}, v{voA}, v{t2}")
    k(f"v_add_u32 v{voB}, {260*4}, v{voB}")
    k(f"v_add_u32 v{voA}, v{voA}, v{t2}")
    k(f"v_and_b32 v{t2}, 1, v0")
    k(f"v_lshrrev_b32 v{vrd}, 1, v0")
    k(f"v_lshlrev_b32 v{vst}, 13, v{vrd}")
    k(f"v_lshl_add_u32 v{vst}, v{t2}, 4, v{vst}")
    k(f"v_mul_u32_u24 v{t2}, 324, v{t2}")
    k(f"v_add_u32 v{vrd}, v{vrd}, v{t2}")
    k(f"v_lshlrev_b32 v{vrd}, 2, v{vrd}")
    k(f"v_add_u32 v{vrd}, {OUTB}, v{vrd}")
    P = k.v(); Q = k.v(); ones = k.v(); F = k.v(20, 4); sc = k.v(2, 2)
    k(f"v_mov_b32 v{ones}, 0x3f803f80")
    k(f"v_mov_b32 v{P}, 0")
    k(f"v_mov_b32 v{Q}, 0")
    k.stamp_mid(0)
    k("s_waitcnt vmcnt(0)")
    k.stamp_mid(1)
    for i in range(10):
        k(f"v_dot2c_f32_bf16 v{P}, v{X+i}, v{ones}")
        k(f"v_dot2c_f32_bf16 v{Q}, v{X+i}, v{X+i}")
    for i in range(2):
        k(f"v_lshlrev_b32 v{F+2*i}, 16, v{X+i}")
        k(f"v_and_b32 v{F+2*i+1}, 0xffff0000, v{X+i}")
    k(f"v_permlane16_swap_b32 v{P}, v{Q}")
    k(f"v_add_f32 v{P}, v{P}, v{Q}")
    nxt = 2
    for sh in (8, 4, 2, 1):
        for i in (nxt,):
            k(f"v_lshlrev_b32 v{F+2*i}, 16, v{X+i}")
            k(f"v_and_b32 v{F+2*i+1}, 0xffff0000, v{X+i}")
        nxt += 1
        k(f"v_add_f32_dpp v{P}, v{P}, v{P} row_ror:{sh} row_mask:0xf bank_mask:0xf")
    k(f"v_mov_b32 v{Q}, v{P}")
    for i in (6, 7):
        k(f"v_lshlrev_b32 v{F+2*i}, 16, v{X+i}")
        k(f"v_and_b32 v{F+2*i+1}, 0xffff0000, v{X+i}")
    k(f"v_permlane16_swap_b32 v{P}, v{Q}")
    for i in (8, 9):
        k(f"v_lshlrev_b32 v{F+2*i}, 16, v{X+i}")
        k(f"v_and_b32 v{F+2*i+1}, 0xffff0000, v{X+i}")
    ln_stats(k, P, Q, sc, sc+1, tmp)
    for i in range(10):
        k(f"v_pk_fma_f32 {vr(F+2*i,2)}, {vr(F+2*i,2)}, {vr(sc,2)}, {vr(sc,2)} op_sel:[0,0,1] op_sel_hi:[1,0,1]")
    for i in range(10):
        k(f"v_cvt_pk_bf16_f32 v{X+i}, v{F+2*i}, v{F+2*i+1}")
        if i & 1: k(f"ds_write_b64 v{vwr}, {vr(X+i-1,2)} offset:{256*(i>>1)}")
    A = F
    k.stamp_mid(2)
    k("s_waitcnt lgkmcnt(0)")
    for rho in range(2):
        for t in range(2):
            b = A + 8*rho + 4*t
            k(f"ds_read_b64_tr_b16 {vr(b,2)}, v{vt0} offset:{rho*ROWB + t*32}")
            k(f"ds_read_b64_tr_b16 {vr(b+2,2)}, v{vt1} offset:{rho*ROWB + t*32}")
    D1 = k.v(32, 4)
    for rho in range(2):
        k(f"s_waitcnt lgkmcnt({4 - 4*rho})")
        for t in range(2):
            mfma(k, D1 + 16*rho + 4*t, A + 8*rho + 4*t, BR)
            mfma(k, D1 + 16*rho + 8 + 4*t, A + 8*rho + 4*t, BI)
    E = k.v(16, 4); Bop = A; D2 = D1
    for rho in range(2):
        for h in range(4):
            cmul_pk(k, E + 2*h, E + 8 + 2*h, D1 + 16*rho + 2*h, D1 + 16*rho + 8 + 2*h, TC + 2*h, TS + 2*h, -1)
        for o in range(2):
            for p in range(4):
                k(f"v_cvt_pk_bf16_f32 v{Bop + 8*rho + 4*o + p}, v{E + 8*o + 2*p}, v{E + 8*o + 2*p + 1}")
        bR = Bop + 8*rho; bI = bR + 4; d = D2 + 16*rho
        mfma(k, d + 0, C0, bR); mfma(k, d + 4, C1, bR); mfma(k, d + 8, nS0, bR); mfma(k, d + 12, S1, bR)
        mfma(k, d + 0, S0, bI, d + 0); mfma(k, d + 4, S1, bI, d + 4); mfma(k, d + 8, C0, bI, d + 8); mfma(k, d + 12, nC1, bI, d + 12)
    O = E
    k.stamp_mid(3)
    for i in range(16): k(f"v_cvt_pk_bf16_f32 v{O+i}, v{D2+i}, v{D2+16+i}")
    k.exec_mask(0x07FF07FF07FF07FF)
    for o in range(2):
        for r in range(4): k(f"ds_write_b32 v{voA}, v{O + 8*o + r} offset:{o*1296 + r*80}")
    k.exec_mask(0x03FE03FE03FE03FF)
    for o in range(2): k(f"ds_write_b32 v{voB}, v{O + 8*o + 4} offset:{o*1296 + 3*80}")
    k.exec_mask(0x03FE03FE03FE03FE)
    for o in range(2):
        for r in range(1, 4): k(f"ds_write_b32 v{voB}, v{O + 8*o + 4 + r} offset:{o*1296 + (3-r)*80}")
    k.exec_all()
    k("s_waitcnt lgkmcnt(0)")
    k("s_barrier")
    Z = D2
    k.stamp_mid(4)
    for it in range(3):
        k(f"ds_read2st64_b32 {vr(Z+4*it,2)}, v{vrd} offset0:{2*it} offset1:{2*it+11}")
        k(f"ds_read2st64_b32 {vr(Z+4*it+2,2)}, v{vrd} offset0:{2*it+22} offset1:{2*it+33}")
    for it in range(3):
        k(f"s_waitcnt lgkmcnt({4 - 2*it})")
        k(f"buffer_store_dwordx4 {vr(Z+4*it,4)}, v{vst}, {sr(ST,4)}, s{[sto, s1m, s2m][it]} offen")
    k.stamp_mid(5)
    k.stamp_end(sws)
    k("s_endpgm")
    lds = OUTB + 4 * REG
    k.label("K1_side")
    k.v.reset(1); k.s.reset(swr + 4)
    SR = k.s(4, 4); SI = k.s(4, 4); SO = k.s(4, 4)
    sj = k.s(); sw = k.s(); skg = k.s(); ssg = k.s(); st = k.s(); su = k.s(); sb = k.s(4); so = k.s()
    k("s_cmp_ge_u32 s2, 448")
    k("s_cbranch_scc1 K1_side2")
    vw = k.v(); vkc = k.v(); va = k.v(); vo = k.v()
    k(f"v_lshrrev_b32 v{vw}, 6, v0")
    k(f"v_and_b32 v{vkc}, 63, v0")
    k(f"v_readfirstlane_b32 s{sw}, v{vw}")
    k(f"s_sub_u32 s{sj}, s2, 256")
    k(f"s_lshl_b32 s{sj}, s{sj}, 2")
    k(f"s_add_u32 s{sj}, s{sj}, s{sw}")
    k(f"s_lshr_b32 s{skg}, s{sj}, 7")
    k(f"s_and_b32 s{ssg}, s{sj}, 127")
    k(f"s_lshl_b32 s{skg}, s{skg}, 6")
    k(f"v_add_u32 v{vkc}, s{skg}, v{vkc}")
    k(f"v_lshlrev_b32 v{va}, 1, v{vkc}")
    k(f"v_lshlrev_b32 v{vo}, 13, v{vkc}")
    k(f"s_lshr_b32 s{st}, s{ssg}, 5")
    k(f"s_lshl_b32 s{st}, s{st}, 4")
    k(f"s_and_b32 s{su}, s{ssg}, 3")
    k(f"s_lshl_b32 s{su}, s{su}, 2")
    k(f"s_add_u32 s{st}, s{st}, s{su}")
    k(f"s_lshr_b32 s{su}, s{ssg}, 2")
    k(f"s_and_b32 s{su}, s{su}, 7")
    k(f"s_lshl_b32 s{su}, s{su}, 8")
    k(f"s_add_u32 s{st}, s{st}, s{su}")
    k(f"s_mul_i32 s{sb}, s{st}, 642")
    for r in range(1, 4): k(f"s_add_u32 s{sb+r}, s{sb+r-1}, {64*642}")
    k(f"s_lshl_b32 s{so}, s{ssg}, 6")
    k("s_waitcnt lgkmcnt(0)")
    k.srd(SR, swr, 2048*642); k.srd(SI, swr+2, 2048*642); k.srd(SO, sws, T1_BYTES, OFF_WT)
    R = k.v(16, 4); I = k.v(16, 4)
    k("s_cmp_lg_u32 s2, 256")
    k("s_cbranch_scc1 K1_nofl")
    SF = k.s(4, 4)
    k.srd(SF, sws, 4096, OFF_FL)
    for i in range(4): k(f"v_mov_b32 v{R+i}, 0")
    k(f"v_lshlrev_b32 v{I}, 4, v0")
    k(f"buffer_store_dwordx4 {vr(R,4)}, v{I}, {sr(SF,4)}, 0 offen")
    k("s_waitcnt vmcnt(0)")
    k.label("K1_nofl")
    for e in range(4):
        for r in range(4):
            k(f"buffer_load_ushort v{R+4*e+r}, v{va}, {sr(SR,4)}, s{sb+r} offen offset:{642*e}")
            k(f"buffer_load_ushort v{I+4*e+r}, v{va}, {sr(SI,4)}, s{sb+r} offen offset:{642*e}")
    for e in range(4):
        k(f"s_waitcnt vmcnt({24 - 8*e + e})")
        for r in range(4): k(f"v_lshl_or_b32 v{R+4*e+r}, v{I+4*e+r}, 16, v{R+4*e+r}")
        k(f"buffer_store_dwordx4 {vr(R+4*e,4)}, v{vo}, {sr(SO,4)}, s{so} offen offset:{16*e}")
    k.stamp_end(sws)
    k("s_endpgm")
    k.label("K1_side2")
    k.v.reset(1); k.s.reset(swr + 4)
    k(f"s_cmp_ge_u32 s2, {448 + NWG_W1}")
    k("s_cbranch_scc1 K1_done")
    weight_job(k, 448, 'w1', sws)
    k.stamp_end(sws)
    k.label("K1_done")
    k("s_endpgm")
    return k, 448 + NWG_W1, 256, lds
```

```python
from g_base import *
from g_wj import *
def gen_k2():
    k = K("k2_kernel", 1)
    RS = 144
    sws = k.s(2, 2)
    k.stamp_start()
    k(f"s_load_dwordx2 {sr(sws,2)}, s[0:1], 80")
    k("s_cmp_ge_u32 s2, 321")
    k("s_cbranch_scc1 K2_side")
    S1 = k.s(4, 4); SW = k.s(4, 4); S2 = k.s(4, 4); skc = k.s(); st = k.s(); su = k.s(); so = k.s(); ssc = k.s()
    k(f"s_lshr_b32 s{st}, s2, 5")
    k(f"s_lshl_b32 s{st}, s{st}, 3")
    k(f"s_and_b32 s{su}, s2, 7")
    k(f"s_add_u32 s{st}, s{st}, s{su}")
    k(f"s_lshl_b32 s{st}, s{st}, 2")
    k(f"s_bfe_u32 s{su}, s2, 0x20003")
    k(f"s_add_u32 s{skc}, s{st}, s{su}")
    k(f"s_lshl_b32 s{so}, s{skc}, 13")
    vm = k.v(); vg = k.v(); vw = k.v(); vl = k.v(); vxa = k.v(); vwa = k.v(); t2 = k.v()
    k(f"v_and_b32 v{vm}, 15, v0")
    k(f"v_bfe_u32 v{vg}, v0, 4, 2")
    k(f"v_lshrrev_b32 v{vw}, 6, v0")
    k(f"v_lshlrev_b32 v{vxa}, 8, v{vm}")
    k(f"v_lshl_add_u32 v{vxa}, v{vg}, 5, v{vxa}")
    k(f"v_add_u32 v{t2}, 4096, v{vxa}")
    k(f"v_and_b32 v{vl}, 63, v0")
    k(f"v_lshlrev_b32 v{vwa}, 4, v{vl}")
    k(f"v_lshl_add_u32 v{vwa}, v{vw}, 11, v{vwa}")
    X = k.v(32, 4)
    W = k.v(8, 4)
    k("s_waitcnt lgkmcnt(0)")
    k.srd(S1, sws, T1_BYTES, OFF_T1); k.srd(SW, sws, T1_BYTES, OFF_WT)
    for t in range(2):
        for kk in range(2):
            for o in range(2):
                k(f"buffer_load_dwordx4 {vr(X+16*o+8*t+4*kk,4)}, v{vxa if t == 0 else t2}, {sr(S1,4)}, s{so} offen offset:{128*kk+16*o}")
    for t in range(2):
        k(f"buffer_load_dwordx4 {vr(W+4*t,4)}, v{vwa}, {sr(SW,4)}, s{so} offen offset:{1024*t}")
    k.srd(S2, sws, 256*T2_STRIDE, OFF_T2)
    sc = 2.0 / (2048 * 640)
    k(f"s_mov_b32 s{ssc}, {fl(sc)}")
    k(f"s_cmp_eq_u32 s{skc}, 0")
    k(f"s_cselect_b32 s{ssc}, {fl(sc/2)}, s{ssc}")
    k(f"s_cmp_eq_u32 s{skc}, 320")
    k(f"s_cselect_b32 s{ssc}, {fl(sc/2)}, s{ssc}")
    C64 = k.v(8, 4); S64 = k.v(8, 4); N64 = k.v(8, 4); C32 = k.v(8, 4); S32 = k.v(8, 4); N32 = k.v(8, 4)
    FC = k.v(8, 2); FS = k.v(8, 2); IC = k.v(8, 2); IS = k.v(8, 2)
    ang = k.v(8, 2); tmp = k.v(4, 2); fq = k.v(); fg = k.v(); a0 = k.v(); fm = k.v(); sg = k.v()
    k(f"v_lshl_add_u32 v{fq}, v{vw}, 4, v{vm}")
    k(f"v_cvt_f32_u32 v{fq}, v{fq}")
    k(f"v_cvt_f32_u32 v{fg}, v{vg}")
    k(f"v_cvt_f32_u32 v{fm}, v{vm}")
    k(f"v_mul_f32 v{fg}, 4.0, v{fg}")
    k(f"v_mul_f32 v{a0}, {fl(1/64)}, v{fq}")
    k(f"v_mul_f32 v{ang}, v{a0}, v{fg}")
    k(f"v_add_f32 v{ang}, v{ang}, v{ang}")
    for j in range(1, 8): k(f"v_add_f32 v{ang+j}, v{ang+j-1}, v{a0}")
    gen_cs8(k, ang, C64, S64, tmp)
    k(f"v_and_b32 v{sg}, 1, v0")
    k(f"v_mul_u32_u24 v{sg}, 0x8000, v{sg}")
    k(f"v_lshl_or_b32 v{sg}, v{sg}, 16, v{sg}")
    for p in range(4):
        k(f"v_xor_b32 v{C64+4+p}, v{sg}, v{C64+p}")
        k(f"v_xor_b32 v{S64+4+p}, v{sg}, v{S64+p}")
        k(f"v_xor_b32 v{N64+p}, 0x80008000, v{S64+p}")
        k(f"v_xor_b32 v{N64+4+p}, 0x80008000, v{S64+4+p}")
    k(f"v_mul_f32 v{a0}, {fl(1/2048)}, v{fq}")
    k(f"v_mul_f32 v{ang}, v{a0}, v{fg}")
    for j in range(1, 4): k(f"v_add_f32 v{ang+j}, v{ang+j-1}, v{a0}")
    for j in range(4): k(f"v_fmamk_f32 v{ang+4+j}, v{a0}, {fl(16.0)}, v{ang+j}")
    for j in range(8):
        k(f"v_cos_f32 v{FC+j}, v{ang+j}")
        k(f"v_sin_f32 v{FS+j}, v{ang+j}")
    k(f"v_mul_f32 v{a0}, {fl(1/32)}, v{fm}")
    k(f"v_mul_f32 v{ang}, v{a0}, v{fg}")
    for j in range(1, 4): k(f"v_add_f32 v{ang+j}, v{ang+j-1}, v{a0}")
    for j in range(4): k(f"v_fmamk_f32 v{ang+4+j}, v{a0}, {fl(16.0)}, v{ang+j}")
    gen_cs8(k, ang, C32, S32, tmp)
    for p in range(4):
        k(f"v_xor_b32 v{C32+4+p}, 0x80000000, v{C32+p}")
        k(f"v_xor_b32 v{S32+4+p}, 0x80000000, v{S32+p}")
        k(f"v_xor_b32 v{N32+p}, 0x80008000, v{S32+p}")
        k(f"v_xor_b32 v{N32+4+p}, 0x00008000, v{S32+p}")
    k(f"v_cvt_f32_u32 v{tmp}, v{vw}")
    k(f"v_fmamk_f32 v{tmp}, v{tmp}, {fl(16.0)}, v{fg}")
    k(f"v_mul_f32 v{a0}, {fl(1/2048)}, v{fm}")
    k(f"v_mul_f32 v{ang}, v{a0}, v{tmp}")
    for j in range(1, 4): k(f"v_add_f32 v{ang+j}, v{ang+j-1}, v{a0}")
    k(f"v_add_f32 v{a0}, {fl(16/2048)}, v{a0}")
    k(f"v_mul_f32 v{ang+4}, v{a0}, v{tmp}")
    for j in range(5, 8): k(f"v_add_f32 v{ang+j}, v{ang+j-1}, v{a0}")
    for j in range(8):
        k(f"v_cos_f32 v{IC+j}, v{ang+j}")
        k(f"v_sin_f32 v{IS+j}, v{ang+j}")
    for j in range(8):
        k(f"v_mul_f32 v{IC+j}, s{ssc}, v{IC+j}")
        k(f"v_mul_f32 v{IS+j}, s{ssc}, v{IS+j}")
    vlw = k.v(); vlr = k.v(); vst = k.v()
    k(f"v_mul_u32_u24 v{vlr}, {RS}, v{vm}")
    k(f"v_lshl_add_u32 v{vlw}, v{vg}, 3, v{vlr}")
    k(f"v_lshl_add_u32 v{vlw}, v{vw}, 5, v{vlw}")
    k(f"v_lshl_add_u32 v{vlr}, v{vg}, 4, v{vlr}")
    k(f"v_lshl_add_u32 v{vst}, v{vw}, 4, v{vm}")
    k(f"v_lshl_add_u32 v{vst}, v{vst}, 2, v{vg}")
    k(f"v_mul_u32_u24 v{vst}, {T2_STRIDE}, v{vst}")
    k(f"s_lshl_b32 s{st}, s{skc}, 5")
    D = k.v(16, 4)
    E = k.v(16, 4); B = k.v(8, 4)
    k.stamp_mid(0)
    for t in range(2):
        for kk in range(2):
            k(f"s_waitcnt vmcnt({8 - 4*t - 2*kk})")
            xr = X + 8*t + 4*kk; xi = xr + 16
            mfma(k, D + 4*t, xr, C64 + 4*kk, None if kk == 0 else D + 4*t)
            mfma(k, D + 8 + 4*t, xr, N64 + 4*kk, None if kk == 0 else D + 8 + 4*t)
            mfma(k, D + 4*t, xi, S64 + 4*kk, D + 4*t)
            mfma(k, D + 8 + 4*t, xi, C64 + 4*kk, D + 8 + 4*t)
    k.stamp_mid(1)
    for h in range(4): cmul_pk(k, E + 2*h, E + 8 + 2*h, D + 2*h, D + 8 + 2*h, FC + 2*h, FS + 2*h, -1)
    for o in range(2):
        for p in range(4): k(f"v_cvt_pk_bf16_f32 v{B+4*o+p}, v{E+8*o+2*p}, v{E+8*o+2*p+1}")
    for T in range(2): mfma(k, D + 4*T, C32 + 4*T, B); mfma(k, D + 8 + 4*T, N32 + 4*T, B)
    for T in range(2): mfma(k, D + 4*T, S32 + 4*T, B + 4, D + 4*T); mfma(k, D + 8 + 4*T, C32 + 4*T, B + 4, D + 8 + 4*T)
    WR = X; WI = X + 8
    k.stamp_mid(2)
    k("s_waitcnt vmcnt(0)")
    k.srd(S1, sws, 16*140*1024, OFF_W1)
    k(f"s_lshr_b32 s{su}, s2, 3")
    k(f"s_mul_i32 s{su}, s{su}, {448*128}")
    k(f"v_lshlrev_b32 v{vxa}, 7, v0")
    if "NOWARM=1" not in sys.argv:
        k(f"buffer_load_dword v{t2}, v{vxa}, {sr(S1,4)}, s{su} offen")
        k(f"s_add_u32 s{su}, s{su}, {192*128}")
        k(f"buffer_load_dword v{t2}, v{vxa}, {sr(S1,4)}, s{su} offen")
    for j in range(8):
        k(f"v_lshlrev_b32 v{WR+j}, 16, v{W+j}")
        k(f"v_and_b32 v{WI+j}, 0xffff0000, v{W+j}")
    for h in range(4): cmul_pk(k, E + 2*h, E + 8 + 2*h, D + 2*h, D + 8 + 2*h, WR + 2*h, WI + 2*h, +1)
    for o in range(2):
        for p in range(4): k(f"v_cvt_pk_bf16_f32 v{B+4*o+p}, v{E+8*o+2*p}, v{E+8*o+2*p+1}")
    for t in range(2): mfma(k, D + 4*t, B, C32 + 4*t); mfma(k, D + 8 + 4*t, B, S32 + 4*t)
    for t in range(2): mfma(k, D + 4*t, B + 4, N32 + 4*t, D + 4*t); mfma(k, D + 8 + 4*t, B + 4, C32 + 4*t, D + 8 + 4*t)
    for h in range(4): cmul_pk(k, E + 2*h, E + 8 + 2*h, D + 2*h, D + 8 + 2*h, IC + 2*h, IS + 2*h, +1)
    for o in range(2):
        for p in range(4): k(f"v_cvt_pk_bf16_f32 v{B+4*o+p}, v{E+8*o+2*p}, v{E+8*o+2*p+1}")
        for t in range(2): k(f"ds_write_b64 v{vlw}, {vr(B+4*o+2*t,2)} offset:{o*32*RS + t*16*RS}")
    k.stamp_mid(3)
    k("s_waitcnt lgkmcnt(0)")
    k("s_barrier")
    k.stamp_mid(4)
    for t in range(2):
        for kk in range(2):
            for o in range(2):
                k(f"ds_read_b128 {vr(X+16*o+8*t+4*kk,4)}, v{vlr} offset:{o*32*RS + t*16*RS + kk*64}")
    for t in range(2):
        for kk in range(2):
            k(f"s_waitcnt lgkmcnt({6 - 4*t - 2*kk})")
            xr = X + 8*t + 4*kk; xi = xr + 16
            mfma(k, D + 4*t, xr, C64 + 4*kk, None if kk == 0 else D + 4*t)
            mfma(k, D + 8 + 4*t, xr, S64 + 4*kk, None if kk == 0 else D + 8 + 4*t)
            mfma(k, D + 4*t, xi, N64 + 4*kk, D + 4*t)
            mfma(k, D + 8 + 4*t, xi, C64 + 4*kk, D + 8 + 4*t)
    for o in range(2):
        for p in range(4): k(f"v_cvt_pk_bf16_f32 v{B+4*o+p}, v{D+8*o+2*p}, v{D+8*o+2*p+1}")
        k(f"buffer_store_dwordx4 {vr(B+4*o,4)}, v{vst}, {sr(S2,4)}, s{st} offen offset:{16*o}")
    k.stamp_mid(5)
    k.stamp_end(sws)
    k("s_endpgm")
    k.v.reset(1); k.s.reset(sws + 2)
    k.label("K2_side")
    k(f"s_cmp_ge_u32 s2, {321 + NWG_W2}")
    k("s_cbranch_scc1 K2_done")
    weight_job(k, 321, 'w2', sws)
    k.stamp_end(sws)
    k.label("K2_done")
    k("s_endpgm")
    return k, 321 + NWG_W2, 256, 64 * RS
```

```python
from g_base import *
P = dict(NPF1=0, NPF2=0, DMA_A=8, T1=1, TS1=0, TU0=0, TU1=35, TU2=70, S1A=0, S1B=0, S2A=14, KM=14, RD=12, D0=16, E0=16, ERATE=4, POLL_LIMIT=400000, TD=0, TE=0, DW=2, DW0=42, DWMAX=40)
for a in sys.argv:
    if '=' in a:
        n, v = a.split('='); P[n] = int(v)

class VM:
    def __init__(self, k): self.k = k; self.n = 0
    def __call__(self, line):
        self.k(line); self.n += 1; return self.n - 1
    def wait(self, idx, extra=""):
        c = min(63, self.n - idx - 1)
        self.k(f"s_waitcnt vmcnt({c})" + extra)

def interleave(k, start, groups):
    body = k.L[start:]; ok = []; full = True
    for i, l in enumerate(body):
        ok.append(full)
        t = l.strip()
        if t.startswith("s_mov_b32 exec"): full = False
        if t.startswith("s_mov_b64 exec, -1"): full = True
    pos = [i for i in range(len(body)) if ok[i]]
    out = []; n = len(groups); gi = 0
    step = len(pos) / (n + 0.5) if n else 1
    marks = {}
    for g in range(n): marks.setdefault(pos[int(g * step)], []).append(g)
    for i, l in enumerate(body):
        for g in marks.get(i, []): out += ["  " + x for x in groups[g]]
        out.append(l)
    k.L[start:] = out

def gen_k3():
    k = K("k3_kernel", 2); vm = VM(k)
    ZOFF = 322 * 32; STAT = 10368; STAGE = 10496; WB = 21504
    sws = k.s(2, 2); sx = k.s(2, 2); sb1 = k.s(2, 2); sb2 = k.s(4, 4)
    k.stamp_start()
    k(f"s_load_dwordx2 {sr(sws,2)}, s[0:1], 80")
    k(f"s_load_dwordx2 {sr(sx,2)}, s[0:1], 0")
    k(f"s_load_dwordx2 {sr(sb1,2)}, s[0:1], 40")
    k(f"s_load_dwordx4 {sr(sb2,4)}, s[0:1], 56")
    k("s_cmp_ge_u32 s2, 256")
    k("s_cbranch_scc1 K3_done")
    SWS = k.s(4, 4); SA = k.s(4, 4); SB = k.s(4, 4); SC = k.s(4, 4)
    sG = k.s(); sj = k.s(); sblk = k.s(); st = k.s(); su = k.s(); sw = k.s(); stau = k.s(); stt = k.s(); sxo = k.s(); sm = k.s(); sw1 = k.s(); sw1m = k.s()
    sfl = k.s(); scnt = k.s(); sT = k.s(); sW2 = k.s(); sl0 = k.s(); sl1 = k.s(); so = k.s(); so2 = k.s(); sH = k.s(); sc5 = k.s()
    k(f"s_bfe_u32 s{sG}, s2, 0x20001")
    k(f"s_lshl_b32 s{sG}, s{sG}, 2")
    k(f"s_lshr_b32 s{st}, s2, 6")
    k(f"s_add_u32 s{sG}, s{sG}, s{st}")
    k(f"s_and_b32 s{su}, s2, 1")
    k(f"s_lshl_b32 s{st}, s{su}, 3")
    k(f"s_bfe_u32 s{sj}, s2, 0x30003")
    k(f"s_add_u32 s{sj}, s{sj}, s{st}")
    k(f"s_lshl_b32 s{st}, s{su}, 2")
    k(f"s_bfe_u32 s{sc5}, s2, 0x20003")
    k(f"s_add_u32 s{sc5}, s{sc5}, s{st}")
    k(f"s_lshl_b32 s{sblk}, s{sG}, 4")
    k(f"s_add_u32 s{sblk}, s{sblk}, s{sj}")
    vl16 = k.v(); vl16b = k.v(); vm_ = k.v(); vg = k.v(); vF = k.v(); vP = k.v(); vtc = k.v(); emark = k.v.mark(); BI = k.v(16, 4); A139 = k.v(4, 4)
    vmark = k.v.mark()
    vw = k.v(); vda = k.v(); vxa = k.v(); vxl = k.v(); t2 = k.v(); t3 = k.v(); vb = k.v()
    k(f"v_lshrrev_b32 v{vw}, 6, v0")
    k(f"v_lshlrev_b32 v{vda}, 4, v0")
    k(f"v_readfirstlane_b32 s{sw}, v{vw}")
    k(f"v_and_b32 v{vm_}, 15, v0")
    k(f"v_bfe_u32 v{vg}, v0, 4, 2")
    k(f"v_and_b32 v{vl16}, 0x3f0, v{vda}")
    k(f"s_and_b32 s{stau}, s{sw}, 1")
    k(f"s_lshr_b32 s{stt}, s{sw}, 1")
    k(f"s_lshr_b32 s{st}, s{sblk}, 2")
    k(f"s_lshl_b32 s{st}, s{st}, 5")
    k(f"s_and_b32 s{su}, s{sblk}, 3")
    k(f"s_lshl_b32 s{su}, s{su}, 2")
    k(f"s_add_u32 s{st}, s{st}, s{su}")
    k(f"s_lshl_b32 s{su}, s{stau}, 4")
    k(f"s_add_u32 s{st}, s{st}, s{su}")
    k(f"s_mul_i32 s{sxo}, s{st}, 1280")
    k(f"s_lshl_b32 s{su}, s{stt}, 5")
    k(f"s_add_u32 s{sxo}, s{sxo}, s{su}")
    k(f"v_lshlrev_b32 v{vxa}, 6, v{vm_}")
    k(f"v_lshl_add_u32 v{vxa}, v{vg}, 3, v{vxa}")
    k(f"v_lshrrev_b32 v{t2}, 2, v{vm_}")
    k(f"v_mul_u32_u24 v{vxl}, 1280, v{t2}")
    k(f"v_and_b32 v{t3}, 3, v0")
    k(f"v_lshl_add_u32 v{vxl}, v{t3}, 6, v{vxl}")
    k(f"v_lshl_add_u32 v{vxl}, v{vg}, 3, v{vxl}")
    k(f"v_add_u32 v{vxl}, 1024, v{vxl}")
    k(f"v_lshlrev_b32 v{vb}, 3, v{vg}")
    k(f"s_mul_i32 s{st}, s{sblk}, {T2_STRIDE}")
    k(f"s_lshl_b32 s{sm}, s{sw}, 10")
    k(f"s_mul_i32 s{sw1m}, s{sw}, 35")
    k(f"s_min_u32 s{sw1m}, s{sw1m}, 104")
    k(f"s_lshl_b32 s{sw1m}, s{sw1m}, 10")
    k(f"s_mul_i32 s{sw1}, s{sj}, {140*1024}")
    k(f"s_add_u32 s{sw1}, s{sw1}, {OFF_W1}")
    k(f"s_add_u32 s{sT}, s{sw1}, {139*1024}")
    k(f"s_add_u32 s{sw1}, s{sw1}, s{sw1m}")
    k(f"s_add_u32 s{sw1m}, s{sw1m}, {WB}")
    XM = k.v(10, 2)
    k("s_waitcnt lgkmcnt(0)")
    k(f"s_add_u32 s{SA}, s{sws}, s{st}")
    k(f"s_addc_u32 s{SA+1}, s{sws+1}, 0")
    k(f"s_add_u32 s{SA}, s{SA}, {OFF_T2}")
    k(f"s_addc_u32 s{SA+1}, s{SA+1}, 0")
    k(f"s_mov_b32 s{SA+2}, {321*32}")
    k(f"s_mov_b32 s{SA+3}, 0x20000")
    for it in range(3):
        k(f"s_add_u32 m0, s{sm}, {4096*it}")
        k(f"s_movk_i32 s{su}, {4096*it}")
        iT2 = vm(f"buffer_load_dwordx4 v{vda}, {sr(SA,4)}, s{su} offen lds")
    k.srd(SB, sx, 2048*1280)
    for i in range(4): vm(f"buffer_load_dwordx2 {vr(XM+2*i,2)}, v{vxa}, {sr(SB,4)}, s{sxo} offen offset:{1280*i}")
    iX = vm(f"buffer_load_dwordx2 {vr(XM+8,2)}, v{vxl}, {sr(SB,4)}, s{sxo} offen")
    k.srd(SWS, sws, 40*MB); k.srd(SC, sb1, 1728*2)
    vm(f"buffer_load_dwordx4 {vr(A139,4)}, v{vl16}, {sr(SWS,4)}, s{sT} offen")
    k(f"s_mul_i32 s{st}, s{sj}, 192")
    for b in range(6): vm(f"buffer_load_dwordx2 {vr(BI+2*b,2)}, v{vb}, {sr(SC,4)}, s{st} offen offset:{32*b}")
    k(f"s_sub_u32 s{su}, s{sj}, 12")
    k(f"s_cmp_ge_u32 s{sj}, 12")
    k(f"s_cselect_b32 s{su}, s{su}, s{sj}")
    k(f"s_lshl_b32 s{su}, s{su}, 5")
    vm(f"buffer_load_dwordx2 {vr(BI+12,2)}, v{vb}, {sr(SC,4)}, s{su} offen offset:{96*32}")
    k(f"s_lshr_b32 s{st}, s2, 6")
    k(f"s_lshl_b32 s{st}, s{st}, 2")
    k(f"s_add_u32 s{scnt}, s{st}, s{sw}")
    k(f"s_mul_i32 s{st}, s{scnt}, {70*128}")
    k(f"s_mul_i32 s{su}, s{sj}, {140*1024}")
    k(f"s_add_u32 s{st}, s{st}, s{su}")
    k(f"s_add_u32 s{sH}, s{st}, {OFF_W1}")
    k(f"v_lshlrev_b32 v{vtc}, 3, v{vl16}")
    if P['T1']:
        k.exec_mask((1 << 35) - 1)
        for i in range(2):
            vm(f"buffer_load_dword v{vP}, v{vtc}, {sr(SWS,4)}, s{sH} offen")
            if i < 1: k(f"s_add_u32 s{sH}, s{sH}, {35*128}")
        k.exec_all()
    k(f"s_bfe_u32 s{st}, s2, 0x10005")
    k(f"s_lshl_b32 s{st}, s{st}, 4")
    k(f"s_add_u32 s{st}, s{st}, s{scnt}")
    k(f"s_mul_i32 s{st}, s{st}, {23*128}")
    k(f"s_mul_i32 s{su}, s{sc5}, {270*1024}")
    k(f"s_add_u32 s{st}, s{st}, s{su}")
    k(f"s_add_u32 s{sH}, s{st}, {OFF_W2}")
    def touch2():
        k.exec_mask((1 << 23) - 1)
        vm(f"buffer_load_dword v{vP}, v{vtc}, {sr(SWS,4)}, s{sH} offen")
        k.exec_all()
        k(f"s_add_u32 s{sH}, s{sH}, {90*1024}")
    dma = []
    for i in range(35):
        g = []
        if i % 4 == 0:
            g.append(f"s_add_u32 m0, s{sw1m}, {1024*i}")
            if i: g.append(f"s_add_u32 s{sw1}, s{sw1}, 4096")
        g.append(f"buffer_load_dwordx4 v{vl16}, {sr(SWS,4)}, s{sw1} offen offset:{1024*(i%4)} lds")
        dma.append(g)
    def pf(start, n):
        gs = dma[:n]; del dma[:n]
        interleave(k, start, gs); vm.n += len(gs)
    c0 = len(k.L)
    MC = k.v(4, 4); MS = k.v(4, 4); MsC = k.v(4, 4); MnsS = k.v(4, 4)
    TC = k.v(6, 2)
    BM = k.v(4, 4); BL = k.v(16, 4)
    ang = k.v(8, 2); tmp = k.v(4, 2); fn = k.v(); fg = k.v(); a0 = k.v(); fm = k.v(); sg = k.v()
    k(f"v_cvt_f32_u32 v{fm}, v{vm_}")
    k(f"v_cvt_f32_u32 v{fg}, v{vg}")
    k(f"s_lshl_b32 s{su}, s{stt}, 4")
    k(f"v_cvt_f32_u32 v{fn}, s{su}")
    k(f"v_add_f32 v{fn}, v{fn}, v{fm}")
    k(f"v_mul_f32 v{a0}, {fl(1/32)}, v{fn}")
    k(f"v_mul_f32 v{ang}, {fl(8.0)}, v{fg}")
    k(f"v_mul_f32 v{ang}, v{ang}, v{a0}")
    for j in range(1, 8): k(f"v_add_f32 v{ang+j}, v{ang+j-1}, v{a0}")
    gen_cs8(k, ang, MC, MS, tmp)
    k(f"v_bfe_u32 v{sg}, v0, 5, 1")
    k(f"v_mul_u32_u24 v{sg}, 0x8000, v{sg}")
    k(f"v_lshl_or_b32 v{sg}, v{sg}, 16, v{sg}")
    k(f"v_xor_b32 v{t2}, 0x80008000, v{sg}")
    for p in range(4):
        k(f"v_xor_b32 v{MsC+p}, v{sg}, v{MC+p}")
        k(f"v_xor_b32 v{MnsS+p}, v{t2}, v{MS+p}")
    k(f"v_mul_f32 v{a0}, {fl(1/640)}, v{fn}")
    k(f"v_mul_f32 v{ang}, v{a0}, v{fg}")
    for T in range(1, 3): k(f"v_fmamk_f32 v{ang+T}, v{a0}, {fl(4.0*T)}, v{ang}")
    for T in range(3):
        k(f"v_cos_f32 v{TC+2*T}, v{ang+T}")
        k(f"v_sin_f32 v{TC+2*T+1}, v{ang+T}")
    for which in range(2):
        if which == 0: k(f"v_mul_f32 v{a0}, {fl(1/20)}, v{fm}")
        else:
            k(f"v_cvt_f32_u32 v{a0}, v{t3}")
            k(f"v_add_f32 v{a0}, {fl(16.0)}, v{a0}")
            k(f"v_mul_f32 v{a0}, {fl(1/20)}, v{a0}")
        k(f"v_mul_f32 v{ang}, v{a0}, v{fg}")
        for T in range(1, 3): k(f"v_fmamk_f32 v{ang+T}, v{a0}, {fl(4.0*T)}, v{ang}")
        dst = BM if which == 0 else ang + 4
        for T in range(3):
            k(f"v_cos_f32 v{tmp}, v{ang+T}")
            k(f"v_sin_f32_e64 v{tmp+1}, -v{ang+T}")
            k(f"v_cvt_pk_bf16_f32 v{dst+T}, v{tmp}, v{tmp+1}")
    k(f"v_mov_b32 v{BM+3}, 0")
    for i in range(16): k(f"v_mov_b32 v{BL+i}, 0")
    k.exec_mask(0xFFFF000000000000)
    k(f"v_mov_b32 v{BM+2}, 0")
    k(f"v_mov_b32 v{ang+6}, 0")
    for i in range(4):
        k.exec_mask(0x000F000F000F000F << (4*i))
        for T in range(3): k(f"v_mov_b32 v{BL+4*i+T}, v{ang+4+T}")
    k.exec_all()
    AD = k.v(6); vsn = k.v()
    k(f"v_bfe_u32 v{t2}, v0, 2, 2")
    k(f"v_lshl_add_u32 v{t2}, v{vg}, 3, v{t2}")
    k(f"v_mad_u32_u24 v{t2}, v{t2}, 20, v{t3}")
    k(f"v_lshlrev_b32 v{t2}, 5, v{t2}")
    k(f"s_lshl_b32 s{su}, s{stau}, 3")
    k.exec_mask(0x00000000FFFFFFFF)
    k(f"v_add_u32 v{t2}, s{su}, v{t2}")
    for T in range(3):
        for jh in range(2): k(f"v_add_u32 v{AD+2*T+jh}, {(4*T + 80*jh)*32}, v{t2}")
    k.exec_mask(0xFFFFFFFF00000000)
    k(f"v_sub_u32 v{t2}, s{su}, v{t2}")
    for T in range(3):
        for jh in range(2): k(f"v_add_u32 v{AD+2*T+jh}, {(640 - 4*T - 80*jh)*32}, v{t2}")
    k.exec_mask(0x1111111000000000); k(f"v_mov_b32 v{AD+0}, {ZOFF}")
    k.exec_mask(0x1111111100000000); k(f"v_mov_b32 v{AD+1}, {ZOFF}")
    k.exec_mask(0x4444444400000000); k(f"v_mov_b32 v{AD+4}, {ZOFF}"); k(f"v_mov_b32 v{AD+5}, {ZOFF}")
    k.exec_all()
    SGA = k.v(4); sgl = k.v(); sr0 = k.v(); sr1 = k.v(); vsw = k.v(); vsr = k.v(); vsl = k.v()
    k(f"v_and_b32 v{t2}, 1, v{vg}")
    k(f"v_lshrrev_b32 v{vsn}, 1, v{vg}")
    k(f"s_lshl_b32 s{st}, s{stt}, 8")
    k(f"s_lshl_b32 s{su}, s{stau}, 6")
    k(f"s_add_u32 s{st}, s{st}, s{su}")
    k(f"v_lshl_add_u32 v{sgl}, v{vsn}, 7, s{st}")
    k(f"v_lshlrev_b32 v{SGA+1}, 4, v{vm_}")
    k(f"v_xor_b32 v{SGA}, v{sgl}, v{SGA+1}")
    k(f"v_lshl_add_u32 v{SGA}, v{vm_}, 9, v{SGA}")
    k(f"v_lshl_add_u32 v{SGA}, v{t2}, 3, v{SGA}")
    for i in range(1, 4): k(f"v_xor_b32 v{SGA+i}, {16*i}, v{SGA}")
    k(f"v_lshrrev_b32 v{sr0}, 2, v{vm_}")
    k(f"v_xor_b32 v{sr1}, v{sr0}, v{t3}")
    k(f"v_lshl_add_u32 v{sgl}, v{sr1}, 4, v{sgl}")
    k(f"v_lshl_add_u32 v{sgl}, v{t3}, 9, v{sgl}")
    k(f"v_lshl_add_u32 v{sgl}, v{t2}, 3, v{sgl}")
    k(f"v_add_u32 v{sgl}, {16*512}, v{sgl}")
    k(f"v_lshlrev_b32 v{vsw}, 4, v{t2}")
    k(f"v_lshl_add_u32 v{vsw}, v{vsn}, 3, v{vsw}")
    k(f"s_add_u32 s{st}, s{su}, {STAT}")
    k(f"v_mov_b32 v{vsr}, s{st}")
    k(f"s_lshl_b32 s{su}, s{stt}, 5")
    k(f"s_add_u32 s{su}, s{su}, s{st}")
    k(f"v_add_u32 v{vsw}, s{su}, v{vsw}")
    k(f"v_lshl_add_u32 v{vsl}, v{sr0}, 3, v{vsr}")
    k(f"v_lshrrev_b32 v{sr0}, 5, v0")
    k(f"v_lshlrev_b32 v{sr0}, 4, v{sr0}")
    k(f"v_xor_b32 v{sr0}, v{sr0}, v{vda}")
    k(f"v_xor_b32 v{sr1}, 128, v{sr0}")
    k(f"v_add_u32 v{vl16b}, 4096, v{vl16}")
    pf(c0, P['NPF1'])
    k(f"s_mul_i32 s{st}, s{sblk}, 10240")
    for S, off in ((SA, OFF_H), (SC, OFF_LN2)):
        k(f"s_add_u32 s{su}, s{st}, {off}")
        k(f"s_add_u32 s{S}, s{sws}, s{su}")
        k(f"s_addc_u32 s{S+1}, s{sws+1}, 0")
        k(f"s_mov_b32 s{S+2}, 10240")
    A = k.v(24, 4)
    if not P.get('CLK') and not P.get('ST2'): k.stamp_mid(0)
    vm.wait(iT2)
    k("s_barrier")
    if not P.get('CLK'): k.stamp_mid(1)
    c1 = len(k.L)
    for T in range(3):
        for o in range(2):
            for jh in range(2): k(f"ds_read_b64_tr_b16 {vr(A+8*T+4*o+2*jh,2)}, v{AD+2*T+jh} offset:{16*o}")
    DA = k.v(24, 4)
    for T in range(3):
        k(f"s_waitcnt lgkmcnt({8 - 4*T})")
        mfma(k, DA + 8*T, A + 8*T, MC); mfma(k, DA + 8*T + 4, A + 8*T, MS)
        mfma(k, DA + 8*T, A + 8*T + 4, MnsS, DA + 8*T); mfma(k, DA + 8*T + 4, A + 8*T + 4, MsC, DA + 8*T + 4)
    E = A; OP = k.v(16, 4)
    for i in range(4): k(f"v_mov_b32 v{OP+4*i+3}, 0")
    for T in range(3):
        for h in range(2):
            R = DA + 8*T + 2*h; I = R + 4; oR = E + 8*T + 2*h; oI = oR + 4; cs = TC + 2*T
            k(f"v_pk_mul_f32 {vr(oR,2)}, {vr(R,2)}, {vr(cs,2)} op_sel_hi:[1,0]")
            k(f"v_pk_mul_f32 {vr(oI,2)}, {vr(I,2)}, {vr(cs,2)} op_sel_hi:[1,0]")
            k(f"v_pk_fma_f32 {vr(oR,2)}, {vr(I,2)}, {vr(cs,2)}, {vr(oR,2)} op_sel:[0,1,0] neg_lo:[1,0,0] neg_hi:[1,0,0]")
            k(f"v_pk_fma_f32 {vr(oI,2)}, {vr(R,2)}, {vr(cs,2)}, {vr(oI,2)} op_sel:[0,1,0]")
        for i in range(4): k(f"v_cvt_pk_bf16_f32 v{OP+4*i+T}, v{E+8*T+i}, v{E+8*T+4+i}")
    Y = DA
    for i in range(4):
        mfma(k, Y + 4*i, OP + 4*i, BM)
    for i in range(4):
        mfma(k, Y + 16, OP + 4*i, BL + 4*i, None if i == 0 else Y + 16)
    pf(c1, P['NPF2'])
    XF = A
    vm.wait(iX)
    for i in range(10):
        k(f"v_lshlrev_b32 v{XF+2*i}, 16, v{XM+i}")
        k(f"v_and_b32 v{XF+2*i+1}, 0xffff0000, v{XM+i}")
    HP = XM
    for i in range(10):
        k(f"v_pk_add_f32 {vr(XF+2*i,2)}, {vr(XF+2*i,2)}, {vr(Y+2*i,2)}")
    for i in range(10): k(f"v_cvt_pk_bf16_f32 v{HP+i}, v{XF+2*i}, v{XF+2*i+1}")
    ones = tmp; ST = k.v(10, 2)
    k(f"v_mov_b32 v{ones}, 0x3f803f80")
    for i in range(5):
        k(f"v_dot2_f32_bf16 v{ST+2*i}, v{HP+2*i}, v{ones}, 0")
        k(f"v_dot2_f32_bf16 v{ST+2*i+1}, v{HP+2*i}, v{HP+2*i}, 0")
    for i in range(5):
        k(f"v_dot2_f32_bf16 v{ST+2*i}, v{HP+2*i+1}, v{ones}, v{ST+2*i}")
        k(f"v_dot2_f32_bf16 v{ST+2*i+1}, v{HP+2*i+1}, v{HP+2*i+1}, v{ST+2*i+1}")
    for i in range(5): k(f"ds_write_b64 v{SGA+i if i < 4 else sgl}, {vr(HP+2*i,2)} offset:{STAGE}")
    for i in range(4):
        k.exec_mask(0x000F000F000F000F << (4*i))
        k(f"v_pk_add_f32 {vr(ST+2*i,2)}, {vr(ST+2*i,2)}, {vr(ST+8,2)}")
    k.exec_all()
    for q in range(2):
        k(f"v_permlane32_swap_b32 v{ST+q}, v{ST+2+q}")
        k(f"v_permlane32_swap_b32 v{ST+4+q}, v{ST+6+q}")
    k(f"v_pk_add_f32 {vr(ST,2)}, {vr(ST,2)}, {vr(ST+2,2)}")
    k(f"v_pk_add_f32 {vr(ST+4,2)}, {vr(ST+4,2)}, {vr(ST+6,2)}")
    for q in range(2): k(f"v_permlane16_swap_b32 v{ST+q}, v{ST+4+q}")
    k(f"v_pk_add_f32 {vr(ST,2)}, {vr(ST,2)}, {vr(ST+4,2)}")
    un = 0
    for sh in (8, 4, 2, 1):
        for q in range(2): k(f"v_add_f32_dpp v{ST+q}, v{ST+q}, v{ST+q} row_ror:{sh} row_mask:0xf bank_mask:0xf")
        for i in (un,):
            k(f"v_lshlrev_b32 v{XF+2*i}, 16, v{HP+i}")
            k(f"v_and_b32 v{XF+2*i+1}, 0xffff0000, v{HP+i}")
        un += 1
    k.exec_mask(0x0001000100010001)
    k(f"ds_write_b64 v{vsw}, {vr(ST,2)}")
    k.exec_all()
    for i in range(un, 10):
        k(f"v_lshlrev_b32 v{XF+2*i}, 16, v{HP+i}")
        k(f"v_and_b32 v{XF+2*i+1}, 0xffff0000, v{HP+i}")
    if not P.get('CLK'): k.stamp_mid(2)
    k("s_waitcnt lgkmcnt(0)")
    k("s_barrier")
    G = k.v(20, 4); Z = OP
    for t in range(2):
        for hh in range(2): k(f"ds_read_b128 {vr(G+8*t+4*hh,4)}, v{vsr} offset:{32*t+16*hh}")
    for t in range(2): k(f"ds_read_b64 {vr(G+16+2*t,2)}, v{vsl} offset:{32*t}")
    for it in range(3): k(f"ds_read_b128 {vr(Z+4*it,4)}, v{sr1 if it == 1 else sr0} offset:{STAGE + 4096*it}")
    k(f"s_movk_i32 s{st}, 4096")
    k(f"s_movk_i32 s{su}, 8192")
    k("s_waitcnt lgkmcnt(3)")
    for i in range(4): k(f"v_pk_add_f32 {vr(ST+2*i,2)}, {vr(G+2*i,2)}, {vr(G+8+2*i,2)}")
    k(f"v_pk_add_f32 {vr(ST+8,2)}, {vr(G+16,2)}, {vr(G+18,2)}")
    k("s_waitcnt lgkmcnt(0)")
    for it in range(3): vm(f"buffer_store_dwordx4 {vr(Z+4*it,4)}, v{vda}, {sr(SA,4)}, {['0', 's%d' % st, 's%d' % su][it]} offen sc1")
    SCL = G
    chains = []
    for i in range(5):
        kk = K("tmp", 0); ln_stats(kk, ST+2*i, ST+2*i+1, SCL+2*i, SCL+2*i+1, Y + i); chains.append(kk.L)
    for j in range(len(chains[0])):
        for c in chains: k.L.append(c[j])
    LP = Y + 8
    for i in range(10):
        sc_ = SCL + 2*(i >> 1)
        k(f"v_pk_fma_f32 {vr(XF+2*i,2)}, {vr(XF+2*i,2)}, {vr(sc_,2)}, {vr(sc_,2)} op_sel:[0,0,1] op_sel_hi:[1,0,1]")
    for i in range(10):
        k(f"v_cvt_pk_bf16_f32 v{LP+i}, v{XF+2*i}, v{XF+2*i+1}")
        if i & 1: k(f"ds_write_b64 v{SGA+(i>>1) if i < 8 else sgl}, {vr(LP+i-1,2)}")
    k("s_waitcnt lgkmcnt(0)")
    k("s_barrier")
    Z2 = G
    for it in range(3): k(f"ds_read_b128 {vr(Z2+4*it,4)}, v{sr1 if it == 1 else sr0} offset:{4096*it}")
    k(f"s_mul_i32 s{sW2}, s{sc5}, 54")
    k(f"s_add_u32 s{sW2}, s{sW2}, s{sw}")
    k(f"s_mul_i32 s{sW2}, s{sW2}, 5120")
    k(f"s_add_u32 s{sW2}, s{sW2}, {OFF_W2}")
    k(f"s_lshl_b32 s{sfl}, s{sG}, 8")
    k(f"s_add_u32 s{sfl}, s{sfl}, {OFF_FL}")
    for it in range(3):
        k(f"s_waitcnt lgkmcnt({2-it})")
        iS = vm(f"buffer_store_dwordx4 {vr(Z2+4*it,4)}, v{vda}, {sr(SC,4)}, {['0', 's%d' % st, 's%d' % su][it]} offen sc1")
    if not P.get('CLK'): k.stamp_mid(3)
    k.v.reset(vmark)
    W2V = [None]
    k.a(256)
    NORD = list(range(11)) + [13, 11, 12]
    def w2reg(i): return ar(4*i, 4) if i < 64 else vr(W2V[0] + 4*(i - 64), 4)
    w2next = [0]
    def w2issue(n):
        for z in range(n):
            i = w2next[0]
            if i >= 70: return
            s, b = divmod(i, 5)
            if b == 0 or z == 0: k(f"s_add_u32 s{sT}, s{sW2}, {NORD[s]*20480}")
            vm(f"buffer_load_dwordx4 {w2reg(i)}, v{vl16 if b < 4 else vl16b}, {sr(SWS,4)}, s{sT} offen offset:{1024*(b&3)}")
            w2next[0] += 1
    def dmaissue(n):
        for g in dma[:n]:
            for l in g: k(l)
            vm.n += 1
        del dma[:n]
    def seam(no, lastst, nA, nB, mid, filler):
        if no == 0: dmaissue(P['DMA_A'])
        w2issue(nA)
        vm.wait(lastst)
        k("s_barrier")
        if not P.get('CLK') or no: k.stamp_mid(mid)
        k(f"s_cmp_lg_u32 s{sw}, 0")
        k(f"s_cbranch_scc1 K3_nf{no}")
        k(f"s_lshl_b32 s{st}, s{sj}, 2")
        k(f"s_add_u32 s{st}, s{st}, s{sfl}")
        k(f"v_mov_b32 v{vP}, 1")
        k(f"v_mov_b32 v{vF}, 0")
        k("s_mov_b64 exec, 1")
        k(f"buffer_store_dword v{vP}, v{vF}, {sr(SWS,4)}, s{st} offen offset:{128*no} sc1")
        k.exec_all()
        k.label(f"K3_nf{no}")
        late = no == 0 and len(dma) > 0
        if no == 0: dmaissue(35)
        if no == 0 and P['TS1']: touch2()
        w2issue(nB)
        filler(late)
        if P.get('ST2') and no == 1: k.stamp_mid(0)
        k(f"v_lshlrev_b32 v{vF}, 2, v{vm_}")
        k(f"s_mov_b32 s{scnt}, 0")
        k.label(f"K3_p{no}")
        k(f"buffer_load_dword v{vP}, v{vF}, {sr(SWS,4)}, s{sfl} offen offset:{128*no} sc1")
        k(f"s_add_u32 s{scnt}, s{scnt}, 1")
        k(f"s_cmp_gt_u32 s{scnt}, {P['POLL_LIMIT']}")
        k("s_waitcnt vmcnt(0)")
        k(f"s_cbranch_scc1 K3_x{no}")
        k(f"v_cmp_ne_u32 vcc, 1, v{vP}")
        k(f"s_cbranch_vccnz K3_p{no}")
        k.label(f"K3_x{no}")
        if not P.get('CLK') or no: k.stamp_mid(mid + 1)
        return late
    RD = P['RD']; KM = P['KM']
    vlr = k.v(3); vln = k.v(); vs1 = k.v(); ACC = k.v(56, 4); Af = k.v(56, 4); Bf = k.v(8*RD, 4); O = BI
    items = [(ks, b) for ks in range(KM) for b in range(7)] + [(ks, b) for b in (6, 0, 1, 2, 3, 4, 5) for ks in range(KM, 20)]
    lg = []
    def rdA(u):
        if u >= len(items): return
        ks, b = items[u]
        if (ks, b) == (19, 6): return
        off = (ks*7 + b) * 1024
        k(f"ds_read_b128 {vr(Af + 4*(u % 14), 4)}, v{vlr + (off >> 16)} offset:{off & 0xffff}")
        lg.append(u)
    def fillD(late):
        for i in range(3): k(f"v_add_u32 v{vlr+i}, {65536*i + WB}, v{vl16}")
        if not late:
            for u in range(7): rdA(u)
        k(f"v_lshrrev_b32 v{vs1}, 3, v{vm_}")
        k(f"v_mul_u32_u24 v{vln}, 10240, v{vs1}")
        k(f"v_lshl_add_u32 v{vln}, v{vg}, 7, v{vln}")
        k(f"v_and_b32 v{vs1}, 7, v{vm_}")
        k(f"v_lshl_add_u32 v{vln}, v{vs1}, 4, v{vln}")
        k(f"v_and_b32 v{vs1}, 1, v{vg}")
        k(f"v_lshlrev_b32 v{vs1}, 10, v{vs1}")
        k(f"v_lshl_add_u32 v{vs1}, v{vm_}, 4, v{vs1}")
        k(f"v_lshrrev_b32 v{ACC+4}, 1, v{vg}")
        k(f"v_lshl_add_u32 v{vs1}, v{ACC+4}, 8, v{vs1}")
        for b in range(7):
            for q in range(2):
                k(f"v_lshlrev_b32 v{ACC+8*b+2*q}, 16, v{BI+2*b+q}")
                k(f"v_and_b32 v{ACC+8*b+2*q+1}, 0xffff0000, v{BI+2*b+q}")
        k(f"s_lshl_b32 s{st}, s{sG}, 2")
        k(f"s_add_u32 s{st}, s{st}, s{sw}")
        k(f"s_mul_i32 s{sl0}, s{st}, {4*10240}")
        k(f"s_add_u32 s{sl0}, s{sl0}, {OFF_LN2}")
        k(f"s_add_u32 s{sl1}, s{sl0}, {2*10240}")
        k(f"s_lshl_b32 s{st}, s{sG}, 1")
        k(f"s_add_u32 s{st}, s{st}, s{stt}")
        k(f"s_mul_i32 s{so}, s{st}, {54*4096}")
        k(f"s_lshl_b32 s{st}, s{stau}, 11")
        k(f"s_add_u32 s{so}, s{so}, s{st}")
        k(f"s_add_u32 s{so}, s{so}, {OFF_HP}")
        k(f"s_lshr_b32 s{st}, s{sj}, 1")
        k(f"s_add_u32 s{st}, s{st}, 48")
        k(f"s_lshl_b32 s{st}, s{st}, 12")
        k(f"s_add_u32 s{so2}, s{so}, s{st}")
        k(f"s_and_b32 s{st}, s{sj}, 1")
        k(f"s_lshl_b32 s{st}, s{st}, 9")
        k(f"s_add_u32 s{so2}, s{so2}, s{st}")
        k(f"s_mul_i32 s{st}, s{sj}, {3*4096}")
        k(f"s_add_u32 s{so}, s{so}, s{st}")
    late = seam(0, iS, P['S1A'], P['S1B'], 4, fillD)
    bidx = {}
    bq = [(ks, rho) for ks in range(20) for rho in range(2)]
    def ldB():
        ks, rho = bq.pop(0)
        if rho == 0 and ks in (8, 16):
            k(f"s_add_u32 s{sl0}, s{sl0}, 4096"); k(f"s_add_u32 s{sl1}, s{sl1}, 4096")
        bidx[(ks, rho)] = vm(f"buffer_load_dwordx4 {vr(Bf + 8*(ks % RD) + 4*rho, 4)}, v{vln}, {sr(SWS,4)}, s{sl0 if rho == 0 else sl1} offen offset:{512*(ks & 7)} sc1")
    if P['TD']:
        k(f"s_and_b32 s{st}, s{sj}, 7")
        k(f"s_lshl_b32 s{st}, s{st}, 2")
        k(f"s_add_u32 s{st}, s{st}, s{sw}")
        k(f"s_mul_i32 s{st}, s{st}, {40*128}")
        k(f"s_mul_i32 s{su}, s{sG}, {16*10240}")
        k(f"s_add_u32 s{st}, s{st}, s{su}")
        k(f"s_add_u32 s{st}, s{st}, {OFF_LN2}")
        k.exec_mask((1 << 40) - 1)
        vm(f"buffer_load_dword v{vP}, v{vtc}, {sr(SWS,4)}, s{st} offen sc1")
        k.exec_all()
    for _ in range(P['D0']): ldB()
    if late:
        k("s_barrier")
        for u in range(7): rdA(u)
    TCH = [P['TU0'], P['TU1'], P['TU2']][(1 if P['TS1'] else 0):]
    waited = set(); vq = []
    lastS = None
    def epi(b):
        ops = []
        ob = O + 8*((b >> 1) & 1) if b < 6 else O + 8
        for rho in range(2):
            a = ACC + 8*b + 4*rho
            oo = (ob + 4*rho + 2*(b & 1)) if b < 6 else ob + 2*rho
            for r in range(4): ops.append(f"v_mul_f32_e64 v{a+r}, v{a+r}, |v{a+r}|")
            for q in range(2): ops.append(f"v_cvt_pk_bf16_f32 v{oo+q}, v{a+2*q}, v{a+2*q+1}")
            for q in range(2): ops.append(f"v_pk_max_i16 v{oo+q}, v{oo+q}, 0")
        if b == 6:
            for q in range(2): ops.append(f"v_permlane16_swap_b32 v{ob+q}, v{ob+2+q}")
            ops.append(("single", ob))
        elif b & 1:
            ops.append(("pair", ob, b >> 1))
        return ops
    def emit(op):
        nonlocal lastS
        if isinstance(op, str): k(op)
        elif op[0] == "single":
            k(f"s_cmp_ge_u32 s{sj}, 12")
            k("s_cbranch_scc1 K3_ns")
            k(f"buffer_store_dwordx4 {vr(op[1],4)}, v{vs1}, {sr(SWS,4)}, s{so2} offen sc1")
            k.label("K3_ns")
        else:
            for rho in range(2):
                lastS = vm(f"buffer_store_dwordx4 {vr(op[1]+4*rho,4)}, v{vl16}, {sr(SWS,4)}, s{so} offen offset:{1024*rho} sc1")
            if op[2] < 2: k(f"s_add_u32 s{so}, s{so}, 4096")
    for u, (ks, b) in enumerate(items):
        if ks not in waited:
            vm.wait(bidx[(ks, 1)]); waited.add(ks)
            if u == 0:
                k.stamp_mid(6)
        if P.get('CLK') == 1 and u in (0, 14, 28, 56, 98, 122): k.stamp_clk([0, 14, 28, 56, 98, 122].index(u))
        if (ks, b) == (19, 6): a = A139
        else:
            a = Af + 4*(u % 14)
            k(f"s_waitcnt lgkmcnt({len(lg) - lg.index(u) - 1})")
        bb = Bf + 8*(ks % RD); d = ACC + 8*b
        def valu(n):
            for _ in range(n):
                if vq and vq[0][0] <= u: emit(vq.pop(0)[1])
        mfma(k, d + 4, a, bb + 4, d if ks == 0 else d + 4)
        valu(1)
        rdA(u + 7)
        mfma(k, d, a, bb, d)
        valu(2)
        done_ks = ks if u < 7*KM else KM
        if bq and b in (1, 3, 5) and bq[0][0] < done_ks + RD: ldB()
        if u in TCH: touch2()
        if P['DW'] and u % P['DW'] == P['DW'] - 1 and u >= P['DW0'] and u < 7*KM and w2next[0] < P['DWMAX']: w2issue(1)
        if u >= 7*KM and ks == 19:
            for op in epi(b): vq.append((u + 2, op))
    assert not bq
    while vq: emit(vq.pop(0)[1])
    k.stamp_mid(7)
    if P.get('CLK') == 1: k.stamp_clk(10)
    k.v.reset(emark)
    ED = 6
    vh = k.v(4); vq3 = k.v(3); vrr = k.v(); vo = k.v(); vhh = k.v(); vg8 = k.v(); t2 = k.v()
    W2V[0] = k.v(24, 4); ACC = k.v(80, 4); HR = k.v(16*ED, 4); HB = k.v(10, 2); BB = k.v(10, 2)
    srt = sl0; sho = sl1; sbo = so2
    def fillE(late):
        for q in range(4):
            k(f"s_add_u32 s{st}, s{sw}, {q}")
            k(f"s_and_b32 s{st}, s{st}, 3")
            k(f"s_lshl_b32 s{su}, s{st}, 10")
            k(f"v_add_u32 v{vh+q}, s{su}, v{vl16}")
            if q:
                k(f"s_mul_i32 s{su}, s{st}, {15*1024}")
                k(f"s_add_u32 s{su}, s{su}, {WB + (q-1)*5*1024}")
                k(f"v_add_u32 v{vq3+q-1}, s{su}, v{vl16}")
        k(f"s_mul_i32 s{su}, s{sw}, {15*1024}")
        k(f"s_add_u32 s{su}, s{su}, {WB}")
        k(f"v_add_u32 v{vrr}, s{su}, v{vl16}")
        k(f"s_bfe_u32 s{st}, s2, 0x10005")
        k(f"s_lshl_b32 s{srt}, s{sG}, 1")
        k(f"s_add_u32 s{srt}, s{srt}, s{st}")
        k(f"s_mul_i32 s{sH}, s{srt}, 54")
        k(f"s_add_u32 s{sH}, s{sH}, s{sw}")
        k(f"s_lshl_b32 s{sH}, s{sH}, 12")
        k(f"s_add_u32 s{sH}, s{sH}, {OFF_HP}")
        k.srd(SB, sb2, 640*2); k.srd(SC, sb2+2, 2048*1280)
        k(f"s_lshl_b32 s{st}, s{srt}, 2")
        k(f"s_add_u32 s{st}, s{st}, s{sw}")
        k(f"s_mul_i32 s{sho}, s{st}, {2*10240}")
        k(f"s_lshr_b32 s{su}, s{st}, 1")
        k(f"s_lshl_b32 s{su}, s{su}, 5")
        k(f"s_and_b32 s{st}, s{st}, 1")
        k(f"s_lshl_b32 s{st}, s{st}, 3")
        k(f"s_add_u32 s{su}, s{su}, s{st}")
        k(f"s_mul_i32 s{so}, s{su}, 1280")
        k(f"s_mul_i32 s{sbo}, s{sc5}, 160")
        k(f"s_add_u32 s{so}, s{so}, s{sbo}")
        k(f"s_mul_i32 s{st}, s{sc5}, 1280")
        k(f"s_add_u32 s{sho}, s{sho}, s{st}")
        k(f"s_add_u32 s{sho}, s{sho}, {OFF_H}")
        k(f"v_lshlrev_b32 v{vg8}, 3, v{vg}")
        k(f"v_and_b32 v{vo}, 3, v0")
        k(f"v_bfe_u32 v{t2}, v0, 2, 1")
        k(f"v_lshl_add_u32 v{vo}, v{t2}, 4, v{vo}")
        k(f"v_bfe_u32 v{t2}, v0, 3, 1")
        k(f"v_mul_u32_u24 v{vhh}, 10240, v{t2}")
        k(f"v_lshl_add_u32 v{vo}, v{t2}, 2, v{vo}")
        k(f"v_mul_u32_u24 v{vo}, 1280, v{vo}")
        k(f"v_add_u32 v{vo}, v{vo}, v{vg8}")
        k(f"v_and_b32 v{t2}, 7, v0")
        k(f"v_lshl_add_u32 v{vhh}, v{t2}, 4, v{vhh}")
        k(f"v_lshrrev_b32 v{t2}, 1, v{vg}")
        k(f"v_lshl_add_u32 v{vhh}, v{t2}, 7, v{vhh}")
        k(f"v_and_b32 v{t2}, 1, v{vg}")
        k(f"v_lshl_add_u32 v{vhh}, v{t2}, 3, v{vhh}")
    P['S2A'] = min(P['S2A'], 64 - w2next[0])
    sys.stderr.write(f'w2 issued before seam2: {w2next[0]}\n')
    seam(1, lastS, P['S2A'], 70, 8, fillE)
    hq = [(s, q) for s in range(14) for q in range(4)]
    hidx = {}
    def ldH():
        s, q = hq.pop(0)
        if q == 0: k(f"s_add_u32 s{sT}, s{sH}, {NORD[s]*16384}")
        hidx[(s, q)] = vm(f"buffer_load_dwordx4 {vr(HR + 16*(s % ED) + 4*q, 4)}, v{vh+q}, {sr(SWS,4)}, s{sT} offen sc1")
    if P['TE']:
        k(f"s_and_b32 s{st}, s{sj}, 3")
        k(f"s_lshl_b32 s{st}, s{st}, 2")
        k(f"s_add_u32 s{st}, s{st}, s{sw}")
        k(f"s_mul_i32 s{st}, s{st}, {108*128}")
        k(f"s_mul_i32 s{su}, s{srt}, {54*4096}")
        k(f"s_add_u32 s{st}, s{st}, s{su}")
        k(f"s_add_u32 s{st}, s{st}, {OFF_HP}")
        k.exec_mask((1 << 54) - 1)
        vm(f"buffer_load_dword v{vP}, v{vtc}, {sr(SWS,4)}, s{st} offen sc1")
        k(f"s_add_u32 s{st}, s{st}, {54*128}")
        vm(f"buffer_load_dword v{vP}, v{vtc}, {sr(SWS,4)}, s{st} offen sc1")
        k.exec_all()
    for _ in range(P['E0']): ldH()
    groups = [(s, q) for s in range(12) for q in range(4)] + [(s, q) for q in (1, 2, 3, 0) for s in (12, 13)]
    donegrp = set(); cnt = 0; wq = []; extra = []
    for b in range(5):
        extra.append(f"buffer_load_dwordx2 {vr(HB+2*b,2)}, v{vhh}, {sr(SWS,4)}, s{sho} offen offset:{256*b} sc1")
        extra.append(f"buffer_load_dwordx2 {vr(BB+2*b,2)}, v{vg8}, {sr(SB,4)}, s{sbo} offen offset:{32*b}")
    iE = None
    for gi, (s, q) in enumerate(groups):
        if (s, q) == (11, 0):
            assert not hq and not extra
            k(f"s_cmp_ge_u32 s{sw}, 2")
            k("s_cbranch_scc1 K3_sk")
        vm.wait(hidx[(s, q)])
        for b in range(5):
            d = ACC + 4*(5*q + b)
            cs = "0" if s == 0 else vr(d, 4)
            k(f"v_mfma_f32_16x16x32_bf16 {vr(d,4)}, {w2reg(5*s+b)}, {vr(HR + 16*(s % ED) + 4*q, 4)}, {cs}")
            cnt += 1
            if cnt % P['ERATE'] == 0 or (hq and hq[0][0] - s < 3):
                if hq:
                    s2, q2 = hq[0]
                    if s2 < ED or (s2 - ED, q2) in donegrp: ldH()
                elif extra: iE = vm(extra.pop(0))
            if wq and wq[0][0] <= cnt: k(wq.pop(0)[1])
        donegrp.add((s, q))
        if (s, q) == (11, 3): k.label("K3_sk")
        if s == 13 and q:
            for b in range(5): wq.append((cnt + 2 + 2*b, f"ds_write_b128 v{vq3+q-1}, {vr(ACC+4*(5*q+b),4)} offset:{1024*b}"))
    while wq: k(wq.pop(0)[1])
    if not P.get('CLK'): k.stamp_mid(10)
    F = HR + 60
    vm.wait(iE)
    for i in range(10):
        k(f"v_lshlrev_b32 v{F+2*i}, 16, v{HB+i}")
        k(f"v_and_b32 v{F+2*i+1}, 0xffff0000, v{HB+i}")
    k("s_waitcnt lgkmcnt(0)")
    k("s_barrier")
    k.stamp_mid(11)
    R = HR
    for i in range(15): k(f"ds_read_b128 {vr(R+4*i,4)}, v{vrr} offset:{1024*i}")
    for i in range(10): k(f"v_pk_add_f32 {vr(ACC+2*i,2)}, {vr(ACC+2*i,2)}, {vr(F+2*i,2)}")
    for i in range(10):
        k(f"v_lshlrev_b32 v{F+2*i}, 16, v{BB+i}")
        k(f"v_and_b32 v{F+2*i+1}, 0xffff0000, v{BB+i}")
    for i in range(10): k(f"v_pk_add_f32 {vr(ACC+2*i,2)}, {vr(ACC+2*i,2)}, {vr(F+2*i,2)}")
    for src in range(3):
        for b in range(5):
            if src < 2 and b == 0: k(f"s_waitcnt lgkmcnt({10 - 5*src})")
            if src == 2: k(f"s_waitcnt lgkmcnt({4 - b})")
            for q in range(2): k(f"v_pk_add_f32 {vr(ACC+4*b+2*q,2)}, {vr(ACC+4*b+2*q,2)}, {vr(R+20*src+4*b+2*q,2)}")
            if src == 2:
                for q in range(2): k(f"v_cvt_pk_bf16_f32 v{HB+2*b+q}, v{ACC+4*b+2*q}, v{ACC+4*b+2*q+1}")
                k(f"buffer_store_dwordx2 {vr(HB+2*b,2)}, v{vo}, {sr(SC,4)}, s{so} offen offset:{32*b}")
    k.stamp_end(sws)
    k.label("K3_done")
    k("s_endpgm")
    return k, 256, 256, 160 * 1024
```

```python
from g_base import *
NWG_W1, NWG_W2 = 140, 135
def weight_job(k, filt_first, kind, ws_s):
    m = k.v.mark(); sm = k.s.mark()
    ncol, ng, argoff, off, nfr = (1728, 28, 32, OFF_W1, 16*140) if kind == 'w1' else (640, 10, 48, OFF_W2, 8*270)
    njob = 560 if kind == 'w1' else 540
    sp = k.s(2, 2); S1 = k.s(4, 4); S2 = k.s(4, 4); sj = k.s(); sw = k.s(); sF = k.s(); sks = k.s(); st = k.s(); so = k.s(); ssel0 = k.s(); ssel1 = k.s(); sg = k.s(); sh = k.s()
    k(f"s_load_dwordx2 {sr(sp,2)}, s[0:1], {argoff}")
    vw = k.v(); vl = k.v(); vfq = k.v(); vg = k.v(); va = k.v(); vb = k.v(); vo = k.v(); vt = k.v(); vu = k.v()
    k(f"v_lshrrev_b32 v{vw}, 6, v0")
    k(f"v_and_b32 v{vl}, 63, v0")
    k(f"v_readfirstlane_b32 s{sw}, v{vw}")
    k(f"v_and_b32 v{vfq}, 15, v{vl}")
    k(f"v_lshrrev_b32 v{vg}, 4, v{vl}")
    k(f"s_sub_u32 s{sj}, s2, {filt_first}")
    k(f"s_lshl_b32 s{sj}, s{sj}, 2")
    k(f"s_add_u32 s{sj}, s{sj}, s{sw}")
    mul = (65536 + ng - 1)//ng
    k(f"s_mul_i32 s{sks}, s{sj}, {mul}")
    k(f"s_lshr_b32 s{sks}, s{sks}, 16")
    for j in range(njob): assert (j * mul) >> 16 == j // ng
    k(f"s_mul_i32 s{st}, s{sks}, {ng}")
    k(f"s_sub_u32 s{sF}, s{sj}, s{st}")
    rowb = ncol * 2
    k(f"v_lshrrev_b32 v{vt}, 2, v{vfq}")
    k(f"s_lshl_b32 s{st}, s{sF}, 2")
    k(f"v_add_u32 v{vt}, s{st}, v{vt}")
    if kind == 'w1':
        k(f"v_mul_u32_u24 v{vu}, 43, v{vt}")
        k(f"v_lshrrev_b32 v{vu}, 8, v{vu}")
        k(f"v_mul_u32_u24 v{vo}, 134, v{vu}")
        k(f"v_add_u32 v{vo}, v{vo}, v{vt}")
        k(f"v_mul_u32_u24 v{vu}, 140, v{vt}")
        k(f"v_subrev_u32 v{vu}, {96*140 - 6}, v{vu}")
        k(f"v_cmp_gt_u32 vcc, 96, v{vt}")
        k(f"v_cndmask_b32 v{vo}, v{vu}, v{vo}, vcc")
        k(f"s_mul_i32 s{so}, s{sks}, {7*1024}")
        k(f"s_cmp_eq_u32 s{sF}, 27")
        k(f"s_cselect_b32 s{sF}, 24, s{sF}")
        k(f"s_mov_b32 s{sg}, {8*rowb}")
        k(f"s_mov_b32 s{sh}, {4*rowb}")
    else:
        k(f"v_mul_u32_u24 v{vu}, 52, v{vt}")
        k(f"v_lshrrev_b32 v{vu}, 8, v{vu}")
        k(f"v_mul_u32_u24 v{vo}, 265, v{vu}")
        k(f"v_add_u32 v{vo}, v{vo}, v{vt}")
        k(f"s_mul_i32 s{so}, s{sks}, {5*1024}")
        k(f"s_cmp_ge_u32 s{sks}, 48")
        k(f"s_movk_i32 s{sg}, {4*rowb}")
        k(f"s_movk_i32 s{sh}, {16*rowb}")
        k(f"s_cselect_b32 s{sh}, s{sg}, s{sh}")
        k(f"s_cselect_b32 s{sg}, {8*rowb}, s{sg}")
    k(f"v_lshlrev_b32 v{vo}, 10, v{vo}")
    k(f"v_lshl_add_u32 v{vo}, v{vg}, 8, v{vo}")
    k(f"v_and_b32 v{vt}, 3, v{vfq}")
    k(f"v_lshl_add_u32 v{vo}, v{vt}, 6, v{vo}")
    k(f"v_mul_lo_u32 v{va}, v{vg}, s{sg}")
    k(f"v_lshl_add_u32 v{va}, v{vfq}, 3, v{va}")
    k(f"v_add_u32 v{vb}, s{sh}, v{va}")
    k(f"s_mul_i32 s{st}, s{sks}, {32*rowb}")
    k(f"s_lshl_b32 s{sF}, s{sF}, 7")
    k(f"s_add_u32 s{st}, s{st}, s{sF}")
    k(f"s_mov_b32 s{ssel0}, 0x05040100")
    k(f"s_mov_b32 s{ssel1}, 0x07060302")
    k("s_waitcnt lgkmcnt(0)")
    k.srd(S1, sp, 640*1728*2)
    k.srd(S2, ws_s, nfr*1024, off)
    X = k.v(16, 2); O = k.v(16, 4); vx = k.v(8)
    for j in range(8):
        base = va if j < 4 else vb
        byte = (j & 3) * rowb
        if byte < 4096:
            k(f"buffer_load_dwordx2 {vr(X+2*j,2)}, v{base}, {sr(S1,4)}, s{st} offen offset:{byte}")
        else:
            k(f"v_add_u32 v{vx+j}, {byte}, v{base}")
            k(f"buffer_load_dwordx2 {vr(X+2*j,2)}, v{vx+j}, {sr(S1,4)}, s{st} offen")
    k("s_waitcnt vmcnt(0)")
    for e in range(4):
        for p in range(4):
            sel = ssel0 if (e & 1) == 0 else ssel1
            lo = X + 2*(2*p) + (e >> 1); hi = X + 2*(2*p+1) + (e >> 1)
            k(f"v_perm_b32 v{O+4*e+p}, v{hi}, v{lo}, s{sel}")
        k(f"buffer_store_dwordx4 {vr(O+4*e,4)}, v{vo}, {sr(S2,4)}, s{so} offen offset:{16*e}")
    k.v.reset(m); k.s.reset(sm)
```

```python
from g_base import *
from g_k1 import gen_k1
from g_k2 import gen_k2
from g_k3 import gen_k3
def main():
    ks = [gen_k1(), gen_k2(), gen_k3()]
    hdr = open("cdna_kernels/" + NAME + ".s.ref").read().split("\n")
    hdr = [l for l in hdr if l.startswith(";") and "@launch" not in l and "Override launch" not in l and "grid=ceil" not in l]
    out = hdr[:]
    for k, g, b, lds in ks: out.append(f"; @launch kernel={k.name} grid=({g},1,1) block=({b},1,1) lds={lds}")
    out.append('.amdgcn_target "amdgcn-amd-amdhsa--gfx950"\n.text')
    for k, *_ in ks: out.append(k.text())
    out.append("text_end:")
    out.append('.section .rodata,"a"')
    for k, *_ in ks: out.append(k.desc())
    print("\n".join(out))
    for k, *_ in ks: sys.stderr.write(f"{k.name}: v {k.v.hi} a {k.a.hi} s {k.s.hi} lines {len(k.L)}\n")
main()
```

```python
import sys, struct
from asmlib import *

NAME = "sequential_preLN__spectral_gfnet__dense_activation_squared_relu__prompt"
MB = 1 << 20
OFF_T1, OFF_WT, OFF_T2, OFF_H, OFF_LN2, OFF_W1, OFF_W2, OFF_HP, OFF_FL = 0, 4*MB, 8*MB, 12*MB, 16*MB, 20*MB, 24*MB, 28*MB, 36*MB
T1_BYTES = 321 * 8192
T2_STRIDE = 10368
STAMP = "--stamp" in sys.argv
STAMP_OFF = 250 << 20
def arg(name, dflt):
    for a in sys.argv:
        if a.startswith(name + "="): return int(a.split("=")[1])
    return dflt

def f2u(f): return struct.unpack('<I', struct.pack('<f', f))[0]
def fl(f): return "0x%08x" % f2u(f)

class K:
    def __init__(self, name, idx):
        self.name = name; self.idx = idx; self.L = []
        self.v = Alloc(1, 256); self.a = Alloc(0, 256); self.s = Alloc(3, 64)
    def __call__(self, s): self.L.append("  " + s)
    def label(self, s): self.L.append(s + ":")
    def srd(self, dst, base, nbytes, off=0):
        if off:
            self(f"s_add_u32 s{dst}, s{base}, {off}")
            self(f"s_addc_u32 s{dst+1}, s{base+1}, 0")
        else:
            self(f"s_mov_b32 s{dst}, s{base}")
            self(f"s_mov_b32 s{dst+1}, s{base+1}")
        self(f"s_mov_b32 s{dst+2}, {nbytes}")
        self(f"s_mov_b32 s{dst+3}, 0x20000")
    def exec_mask(self, m):
        self(f"s_mov_b32 exec_lo, 0x{m & 0xffffffff:08x}")
        self(f"s_mov_b32 exec_hi, 0x{m >> 32:08x}")
    def exec_all(self): self("s_mov_b64 exec, -1")
    def stamp_start(self):
        if STAMP: self("s_memrealtime s[64:65]")
    def stamp_mid(self, i):
        if STAMP: self(f"s_memrealtime s[{68+2*i}:{69+2*i}]")
    def stamp_clk(self, i):
        if STAMP: self(f"s_memtime s[{68+2*i}:{69+2*i}]")
    def stamp_end(self, wsreg):
        if not STAMP: return
        self("s_waitcnt vmcnt(0) lgkmcnt(0)")
        self("s_memrealtime s[66:67]")
        self("s_getreg_b32 s96, hwreg(HW_REG_XCC_ID)")
        self(f"s_add_u32 s94, s{wsreg}, {STAMP_OFF + self.idx*2048*64}")
        self(f"s_addc_u32 s95, s{wsreg+1}, 0")
        self("s_lshl_b32 s97, s2, 6")
        self("s_add_u32 s94, s94, s97")
        self("s_addc_u32 s95, s95, 0")
        self("s_waitcnt lgkmcnt(0)")
        self("v_cmp_eq_u32 vcc, 0, v0")
        self("s_and_saveexec_b64 s[98:99], vcc")
        lab = f"Lst{self.idx}_{len(self.L)}"
        self(f"s_cbranch_execz {lab}")
        for i, s in enumerate([64, 65, 66, 96] + [68 + 2*j for j in range(12)]): self(f"v_mov_b32 v{4+i}, s{s}")
        self("v_mov_b32 v2, 0")
        for j in range(4): self(f"global_store_dwordx4 v2, v[{4+4*j}:{7+4*j}], s[94:95] offset:{16*j}")
        self.label(lab)
    def text(self):
        body = fix_hazards(self.L)
        return f".globl {self.name}\n.p2align 8\n.type {self.name},@function\n{self.name}:\n" + "\n".join(body) + "\n"
    def desc(self):
        nv = max(self.v.hi, 20); acc = (nv + 3) // 4 * 4
        tot = acc + self.a.hi if self.a.hi else nv
        return (f".p2align 6\n.amdhsa_kernel {self.name}\n  .amdhsa_next_free_vgpr {tot}\n  .amdhsa_next_free_sgpr 102\n"
                f"  .amdhsa_accum_offset {acc}\n  .amdhsa_group_segment_fixed_size 0\n  .amdhsa_kernarg_size 88\n"
                f"  .amdhsa_user_sgpr_count 2\n  .amdhsa_user_sgpr_kernarg_segment_ptr 1\n  .amdhsa_system_sgpr_workgroup_id_x 1\n"
                f"  .amdhsa_float_denorm_mode_32 3\n.end_amdhsa_kernel\n")

def code_touch(k, first, sreg, vt, lo="k1_kernel", n=8, hi="text_end"):
    lab = f"Lpc_{k.name}_{len(k.L)}"
    k(f"s_getpc_b64 s[{sreg}:{sreg+1}]")
    k.label(lab)
    k(f"s_add_u32 s{sreg}, s{sreg}, {lo}-{lab}")
    k(f"s_addc_u32 s{sreg+1}, s{sreg+1}, {-1 if lo == k.name else 0}")
    k(f"s_sub_u32 s{sreg+2}, s2, {first}")
    k(f"s_cmp_lt_u32 s{sreg+2}, {n}")
    k(f"s_cselect_b32 s{sreg+2}, {hi}-{lo}, 0")
    k(f"s_mov_b32 s{sreg+3}, 0x20000")
    k(f"v_lshlrev_b32 v{vt}, 7, v0")
    k(f"buffer_load_dword v{vt}, v{vt}, s[{sreg}:{sreg+3}], 0 offen")

def mfma(k, d, a, b, c=None, dp='v'):
    cs = "0" if c is None else vr(c, 4, dp)
    k(f"v_mfma_f32_16x16x32_bf16 {vr(d,4,dp)}, {vr(a,4)}, {vr(b,4)}, {cs}")

def gen_cs8(k, ang, C, S, tmp, negS=False):
    for p in range(4):
        k(f"v_cos_f32 v{tmp}, v{ang+2*p}")
        k(f"v_cos_f32 v{tmp+1}, v{ang+2*p+1}")
        n = "-" if negS else ""
        sfx = "_e64" if negS else ""
        k(f"v_sin_f32{sfx} v{tmp+2}, {n}v{ang+2*p}")
        k(f"v_sin_f32{sfx} v{tmp+3}, {n}v{ang+2*p+1}")
        k(f"v_cvt_pk_bf16_f32 v{C+p}, v{tmp}, v{tmp+1}")
        k(f"v_cvt_pk_bf16_f32 v{S+p}, v{tmp+2}, v{tmp+3}")

def bf16_round(k, d, s):
    k(f"v_cvt_pk_bf16_f32 v{d}, v{s}, v{s}")
    k(f"v_lshlrev_b32 v{d}, 16, v{d}")

def ln_stats(k, P, Q, rinv, nmr, t):
    k(f"v_mul_f32 v{P}, {fl(1/640)}, v{P}")
    k(f"v_mul_f32 v{Q}, {fl(1/640)}, v{Q}")
    k(f"v_fma_f32 v{Q}, -v{P}, v{P}, v{Q}")
    k(f"v_max_f32 v{Q}, 0, v{Q}")
    bf16_round(k, t, P)
    bf16_round(k, Q, Q)
    k(f"v_add_f32 v{Q}, {fl(1e-5)}, v{Q}")
    bf16_round(k, Q, Q)
    k(f"v_sqrt_f32 v{Q}, v{Q}")
    bf16_round(k, Q, Q)
    k(f"v_rcp_f32 v{rinv}, v{Q}")
    k(f"v_mul_f32_e64 v{nmr}, -v{t}, v{rinv}")

def cmul_pk(k, oR, oI, R, I, c, s, sign):
    k(f"v_pk_mul_f32 {vr(oR,2)}, {vr(R,2)}, {vr(c,2)}")
    k(f"v_pk_mul_f32 {vr(oI,2)}, {vr(I,2)}, {vr(c,2)}")
    ng = " neg_lo:[1,0,0] neg_hi:[1,0,0]"
    k(f"v_pk_fma_f32 {vr(oR,2)}, {vr(I,2)}, {vr(s,2)}, {vr(oR,2)}" + (ng if sign > 0 else ""))
    k(f"v_pk_fma_f32 {vr(oI,2)}, {vr(R,2)}, {vr(s,2)}, {vr(oI,2)}" + (ng if sign < 0 else ""))
```

```python
from g_base import *
from g_wj import *
def gen_k1():
    k = K("k1_kernel", 0)
    ROWB = 1280; OUTB = 8 * ROWB; REG = 2816
    sx = k.s(2, 2); sws = k.s(2, 2); swr = k.s(4, 4)
    k.stamp_start()
    k(f"s_load_dwordx2 {sr(sx,2)}, s[0:1], 0")
    k(f"s_load_dwordx2 {sr(sws,2)}, s[0:1], 80")
    k(f"s_load_dwordx4 {sr(swr,4)}, s[0:1], 8")
    TK1 = arg("TK1", 0); NT = arg("NT", 0); mod = {0: "", 1: " nt", 2: " sc1", 3: " sc0 sc1", 4: " sc1 nt", 5: " sc0 sc1 nt"}[arg("NTM", 1)]
    if TK1:
        k("s_load_dwordx2 s[52:53], s[0:1], 32")
        k("s_load_dwordx2 s[56:57], s[0:1], 48")
    def wtouch(first, nl, vt, vd):
        k(f"v_lshrrev_b32 v{vt}, 6, v0")
        k(f"s_sub_u32 s54, s2, {first}")
        k(f"s_lshl_b32 s54, s54, 2")
        k(f"v_add_u32 v{vt}, s54, v{vt}")
        k(f"v_mul_u32_u24 v{vt}, {nl}, v{vt}")
        k(f"v_and_b32 v{vd}, 63, v0")
        k(f"v_add_u32 v{vt}, v{vt}, v{vd}")
        k(f"v_lshlrev_b32 v{vt}, 7, v{vt}")
        for S in (52, 56):
            k(f"s_mov_b32 s{S+2}, {640*1728*2}")
            k(f"s_mov_b32 s{S+3}, 0x20000")
        k.exec_mask((1 << nl) - 1)
        k(f"buffer_load_dword v{vd}, v{vt}, s[52:55], 0 offen")
        k(f"buffer_load_dword v{vd}, v{vt}, s[56:59], 0 offen")
        k.exec_all()
    if "NOCT=1" not in sys.argv: code_touch(k, 0, 60, 160)
    k("s_cmp_ge_u32 s2, 256")
    k("s_cbranch_scc1 K1_side")
    SX = k.s(4, 4); ST = k.s(4, 4); sp2 = k.s(); sa = k.s(); st = k.s(); sxo = k.s(); sto = k.s(); sw = k.s(); s1m = k.s(); s2m = k.s()
    k(f"s_lshr_b32 s{st}, s2, 3")
    k(f"s_and_b32 s{sa}, s{st}, 3")
    k(f"s_lshr_b32 s{st}, s{st}, 2")
    k(f"s_and_b32 s{sp2}, s2, 7")
    k(f"s_lshl_b32 s{sp2}, s{sp2}, 2")
    k(f"s_and_b32 s{sxo}, s{st}, 3")
    k(f"s_add_u32 s{sp2}, s{sp2}, s{sxo}")
    k(f"s_lshr_b32 s{st}, s{st}, 2")
    k(f"s_lshl_b32 s{st}, s{st}, 2")
    k(f"s_add_u32 s{sa}, s{sa}, s{st}")
    k(f"s_lshl_b32 s{st}, s{sa}, 8")
    k(f"s_add_u32 s{st}, s{st}, s{sp2}")
    k(f"s_mul_i32 s{sxo}, s{st}, 1280")
    k(f"s_lshl_b32 s{sto}, s{sp2}, 8")
    k(f"s_lshl_b32 s{st}, s{sa}, 5")
    k(f"s_add_u32 s{sto}, s{sto}, s{st}")
    k(f"s_add_u32 s{s1m}, s{sto}, {1*MB}")
    k(f"s_add_u32 s{s2m}, s{sto}, {2*MB}")
    vi = k.v(); vl31 = k.v(); vxa = k.v(); vl = k.v(); vk1 = k.v(); vg = k.v(); vw = k.v()
    k(f"v_lshrrev_b32 v{vi}, 5, v0")
    k(f"v_and_b32 v{vl31}, 31, v0")
    k(f"v_mul_u32_u24 v{vxa}, 40960, v{vi}")
    k(f"v_lshl_add_u32 v{vxa}, v{vl31}, 3, v{vxa}")
    k(f"v_and_b32 v{vk1}, 15, v0")
    k(f"v_bfe_u32 v{vg}, v0, 4, 2")
    k(f"v_lshrrev_b32 v{vw}, 6, v0")
    X = k.v(10, 2)
    k("s_waitcnt lgkmcnt(0)")
    k.srd(SX, sx, 2048*1280)
    for it in range(5):
        k(f"buffer_load_dwordx2 {vr(X+2*it,2)}, v{vxa}, {sr(SX,4)}, s{sxo} offen offset:{256*it}" + (mod if NT & 1 else ""))
    k.srd(ST, sws, T1_BYTES, OFF_T1)
    BR = k.v(4, 4); BI = k.v(4, 4); TC = k.v(8, 2); TS = k.v(8, 2)
    C0 = k.v(4, 4); S0 = k.v(4, 4); nS0 = k.v(4, 4); C1 = k.v(4, 4); S1 = k.v(4, 4); nC1 = k.v(4, 4)
    ang = k.v(8, 2); tmp = k.v(4, 2); fk = k.v(); fg = k.v(); a0 = k.v()
    k(f"v_cvt_f32_u32 v{fk}, v{vk1}")
    k(f"v_cvt_f32_u32 v{fg}, v{vg}")
    k(f"v_mul_f32 v{fg}, 4.0, v{fg}")
    k(f"v_mul_f32 v{a0}, {fl(1/20)}, v{fk}")
    k(f"v_mul_f32 v{ang}, v{a0}, v{fg}")
    for j in range(1, 4): k(f"v_add_f32 v{ang+j}, v{ang+j-1}, v{a0}")
    k(f"v_mul_f32 v{ang+4}, {fl(16.0)}, v{a0}")
    for j in range(5, 8): k(f"v_add_f32 v{ang+j}, v{ang+j-1}, v{a0}")
    gen_cs8(k, ang, BR, BI, tmp, negS=True)
    k.exec_mask(0xFFFFFFFFFFFF0000)
    for r in (BR+2, BR+3, BI+2, BI+3): k(f"v_mov_b32 v{r}, 0")
    k.exec_all()
    k(f"v_mul_f32 v{a0}, {fl(1/640)}, v{fk}")
    k(f"v_mul_f32 v{ang}, v{a0}, v{fg}")
    for j in range(1, 4): k(f"v_add_f32 v{ang+j}, v{ang+j-1}, v{a0}")
    for j in range(4): k(f"v_fmamk_f32 v{ang+4+j}, v{a0}, {fl(16.0)}, v{ang+j}")
    for j in range(8):
        k(f"v_cos_f32 v{TC+j}, v{ang+j}")
        k(f"v_sin_f32 v{TS+j}, v{ang+j}")
    k(f"v_mul_f32 v{a0}, {fl(1/32)}, v{fk}")
    k(f"v_mul_f32 v{ang}, v{a0}, v{fg}")
    for j in range(1, 4): k(f"v_add_f32 v{ang+j}, v{ang+j-1}, v{a0}")
    for j in range(4): k(f"v_fmamk_f32 v{ang+4+j}, v{a0}, {fl(16.0)}, v{ang+j}")
    gen_cs8(k, ang, C0, S0, tmp)
    for p in range(4):
        k(f"v_xor_b32 v{nS0+p}, 0x80008000, v{S0+p}")
        k(f"v_xor_b32 v{C1+p}, 0x80000000, v{C0+p}")
        k(f"v_xor_b32 v{S1+p}, 0x80000000, v{S0+p}")
        k(f"v_xor_b32 v{nC1+p}, 0x00008000, v{C0+p}")
    vwr = k.v(); vt0 = k.v(); vt1 = k.v(); voA = k.v(); voB = k.v(); vrd = k.v(); vst = k.v(); t2 = k.v()
    k(f"v_mul_u32_u24 v{vwr}, {ROWB}, v{vi}")
    k(f"v_lshl_add_u32 v{vwr}, v{vl31}, 3, v{vwr}")
    k(f"v_mul_u32_u24 v{vt0}, {2*ROWB}, v{vw}")
    k(f"v_and_b32 v{t2}, 3, v0")
    k(f"v_lshl_add_u32 v{vt0}, v{t2}, 3, v{vt0}")
    k(f"v_bfe_u32 v{t2}, v0, 2, 2")
    k(f"v_lshl_add_u32 v{vt0}, v{t2}, 6, v{vt0}")
    k(f"v_add_u32 v{vt1}, 1024, v{vt0}")
    k(f"v_lshl_add_u32 v{vt0}, v{vg}, 8, v{vt0}")
    k(f"v_mul_u32_u24 v{voA}, {REG}, v{vw}")
    k(f"v_add_u32 v{voA}, {OUTB}, v{voA}")
    k(f"v_mad_u32_u24 v{t2}, v{vg}, 5, 0")
    k(f"v_lshl_add_u32 v{t2}, v{t2}, 4, v{vk1}")
    k(f"v_lshlrev_b32 v{t2}, 2, v{t2}")
    k(f"v_sub_u32 v{voB}, v{voA}, v{t2}")
    k(f"v_add_u32 v{voB}, {260*4}, v{voB}")
    k(f"v_add_u32 v{voA}, v{voA}, v{t2}")
    k(f"v_and_b32 v{t2}, 1, v0")
    k(f"v_lshrrev_b32 v{vrd}, 1, v0")
    k(f"v_lshlrev_b32 v{vst}, 13, v{vrd}")
    k(f"v_lshl_add_u32 v{vst}, v{t2}, 4, v{vst}")
    k(f"v_mul_u32_u24 v{t2}, 324, v{t2}")
    k(f"v_add_u32 v{vrd}, v{vrd}, v{t2}")
    k(f"v_lshlrev_b32 v{vrd}, 2, v{vrd}")
    k(f"v_add_u32 v{vrd}, {OUTB}, v{vrd}")
    P = k.v(); Q = k.v(); ones = k.v(); F = k.v(20, 4); sc = k.v(2, 2)
    k(f"v_mov_b32 v{ones}, 0x3f803f80")
    k(f"v_mov_b32 v{P}, 0")
    k(f"v_mov_b32 v{Q}, 0")
    k.stamp_mid(0)
    k("s_waitcnt vmcnt(0)")
    k.stamp_mid(1)
    if TK1 == 1: wtouch(0, 17, vxa, vl)
    for i in range(10):
        k(f"v_dot2c_f32_bf16 v{P}, v{X+i}, v{ones}")
        k(f"v_dot2c_f32_bf16 v{Q}, v{X+i}, v{X+i}")
    for i in range(2):
        k(f"v_lshlrev_b32 v{F+2*i}, 16, v{X+i}")
        k(f"v_and_b32 v{F+2*i+1}, 0xffff0000, v{X+i}")
    k(f"v_permlane16_swap_b32 v{P}, v{Q}")
    k(f"v_add_f32 v{P}, v{P}, v{Q}")
    nxt = 2
    for sh in (8, 4, 2, 1):
        for i in (nxt,):
            k(f"v_lshlrev_b32 v{F+2*i}, 16, v{X+i}")
            k(f"v_and_b32 v{F+2*i+1}, 0xffff0000, v{X+i}")
        nxt += 1
        k(f"v_add_f32_dpp v{P}, v{P}, v{P} row_ror:{sh} row_mask:0xf bank_mask:0xf")
    k(f"v_mov_b32 v{Q}, v{P}")
    for i in (6, 7):
        k(f"v_lshlrev_b32 v{F+2*i}, 16, v{X+i}")
        k(f"v_and_b32 v{F+2*i+1}, 0xffff0000, v{X+i}")
    k(f"v_permlane16_swap_b32 v{P}, v{Q}")
    for i in (8, 9):
        k(f"v_lshlrev_b32 v{F+2*i}, 16, v{X+i}")
        k(f"v_and_b32 v{F+2*i+1}, 0xffff0000, v{X+i}")
    ln_stats(k, P, Q, sc, sc+1, tmp)
    for i in range(10):
        k(f"v_pk_fma_f32 {vr(F+2*i,2)}, {vr(F+2*i,2)}, {vr(sc,2)}, {vr(sc,2)} op_sel:[0,0,1] op_sel_hi:[1,0,1]")
    for i in range(10):
        k(f"v_cvt_pk_bf16_f32 v{X+i}, v{F+2*i}, v{F+2*i+1}")
        if i & 1: k(f"ds_write_b64 v{vwr}, {vr(X+i-1,2)} offset:{256*(i>>1)}")
    A = F
    k.stamp_mid(2)
    k("s_waitcnt lgkmcnt(0)")
    for rho in range(2):
        for t in range(2):
            b = A + 8*rho + 4*t
            k(f"ds_read_b64_tr_b16 {vr(b,2)}, v{vt0} offset:{rho*ROWB + t*32}")
            k(f"ds_read_b64_tr_b16 {vr(b+2,2)}, v{vt1} offset:{rho*ROWB + t*32}")
    D1 = k.v(32, 4)
    for rho in range(2):
        k(f"s_waitcnt lgkmcnt({4 - 4*rho})")
        for t in range(2):
            mfma(k, D1 + 16*rho + 4*t, A + 8*rho + 4*t, BR)
            mfma(k, D1 + 16*rho + 8 + 4*t, A + 8*rho + 4*t, BI)
    E = k.v(16, 4); Bop = A; D2 = D1
    for rho in range(2):
        for h in range(4):
            cmul_pk(k, E + 2*h, E + 8 + 2*h, D1 + 16*rho + 2*h, D1 + 16*rho + 8 + 2*h, TC + 2*h, TS + 2*h, -1)
        for o in range(2):
            for p in range(4):
                k(f"v_cvt_pk_bf16_f32 v{Bop + 8*rho + 4*o + p}, v{E + 8*o + 2*p}, v{E + 8*o + 2*p + 1}")
        bR = Bop + 8*rho; bI = bR + 4; d = D2 + 16*rho
        mfma(k, d + 0, C0, bR); mfma(k, d + 4, C1, bR); mfma(k, d + 8, nS0, bR); mfma(k, d + 12, S1, bR)
        mfma(k, d + 0, S0, bI, d + 0); mfma(k, d + 4, S1, bI, d + 4); mfma(k, d + 8, C0, bI, d + 8); mfma(k, d + 12, nC1, bI, d + 12)
    O = E
    k.stamp_mid(3)
    for i in range(16): k(f"v_cvt_pk_bf16_f32 v{O+i}, v{D2+i}, v{D2+16+i}")
    k.exec_mask(0x07FF07FF07FF07FF)
    for o in range(2):
        for r in range(4): k(f"ds_write_b32 v{voA}, v{O + 8*o + r} offset:{o*1296 + r*80}")
    k.exec_mask(0x03FE03FE03FE03FF)
    for o in range(2): k(f"ds_write_b32 v{voB}, v{O + 8*o + 4} offset:{o*1296 + 3*80}")
    k.exec_mask(0x03FE03FE03FE03FE)
    for o in range(2):
        for r in range(1, 4): k(f"ds_write_b32 v{voB}, v{O + 8*o + 4 + r} offset:{o*1296 + (3-r)*80}")
    k.exec_all()
    k("s_waitcnt lgkmcnt(0)")
    k("s_barrier")
    Z = D2
    k.stamp_mid(4)
    for it in range(3):
        k(f"ds_read2st64_b32 {vr(Z+4*it,2)}, v{vrd} offset0:{2*it} offset1:{2*it+11}")
        k(f"ds_read2st64_b32 {vr(Z+4*it+2,2)}, v{vrd} offset0:{2*it+22} offset1:{2*it+33}")
    for it in range(3):
        k(f"s_waitcnt lgkmcnt({4 - 2*it})")
        k(f"buffer_store_dwordx4 {vr(Z+4*it,4)}, v{vst}, {sr(ST,4)}, s{[sto, s1m, s2m][it]} offen")
    k.stamp_mid(5)
    k.stamp_end(sws)
    k("s_endpgm")
    lds = OUTB + 4 * REG
    k.label("K1_side")
    k.v.reset(1); k.s.reset(swr + 4)
    SR = k.s(4, 4); SI = k.s(4, 4); SO = k.s(4, 4)
    sj = k.s(); sw = k.s(); skg = k.s(); ssg = k.s(); st = k.s(); su = k.s(); sb = k.s(4); so = k.s()
    k("s_cmp_ge_u32 s2, 448")
    k("s_cbranch_scc1 K1_side2")
    vw = k.v(); vkc = k.v(); va = k.v(); vo = k.v()
    k(f"v_lshrrev_b32 v{vw}, 6, v0")
    k(f"v_and_b32 v{vkc}, 63, v0")
    k(f"v_readfirstlane_b32 s{sw}, v{vw}")
    k(f"s_sub_u32 s{sj}, s2, 256")
    k(f"s_lshl_b32 s{sj}, s{sj}, 2")
    k(f"s_add_u32 s{sj}, s{sj}, s{sw}")
    k(f"s_lshr_b32 s{skg}, s{sj}, 7")
    k(f"s_and_b32 s{ssg}, s{sj}, 127")
    k(f"s_lshl_b32 s{skg}, s{skg}, 6")
    k(f"v_add_u32 v{vkc}, s{skg}, v{vkc}")
    k(f"v_lshlrev_b32 v{va}, 1, v{vkc}")
    vlw = k.v(); vlr = k.v(); vq = k.v()
    k(f"v_and_b32 v{vq}, 63, v0")
    k(f"v_lshlrev_b32 v{vlr}, 12, v{vw}")
    k(f"v_lshl_add_u32 v{vlw}, v{vq}, 6, v{vlr}")
    k(f"v_lshl_add_u32 v{vlr}, v{vq}, 4, v{vlr}")
    k(f"v_lshrrev_b32 v{vo}, 2, v{vq}")
    k(f"v_add_u32 v{vo}, s{skg}, v{vo}")
    k(f"v_lshlrev_b32 v{vo}, 13, v{vo}")
    k(f"v_and_b32 v{vq}, 3, v0")
    k(f"v_lshl_add_u32 v{vo}, v{vq}, 4, v{vo}")
    k(f"s_lshr_b32 s{st}, s{ssg}, 5")
    k(f"s_lshl_b32 s{st}, s{st}, 4")
    k(f"s_and_b32 s{su}, s{ssg}, 3")
    k(f"s_lshl_b32 s{su}, s{su}, 2")
    k(f"s_add_u32 s{st}, s{st}, s{su}")
    k(f"s_lshr_b32 s{su}, s{ssg}, 2")
    k(f"s_and_b32 s{su}, s{su}, 7")
    k(f"s_lshl_b32 s{su}, s{su}, 8")
    k(f"s_add_u32 s{st}, s{st}, s{su}")
    k(f"s_mul_i32 s{sb}, s{st}, 642")
    for r in range(1, 4): k(f"s_add_u32 s{sb+r}, s{sb+r-1}, {64*642}")
    k(f"s_lshl_b32 s{so}, s{ssg}, 6")
    k("s_waitcnt lgkmcnt(0)")
    k.srd(SR, swr, 2048*642); k.srd(SI, swr+2, 2048*642); k.srd(SO, sws, T1_BYTES, OFF_WT)
    R = k.v(16, 4); I = k.v(16, 4)
    k("s_cmp_lg_u32 s2, 256")
    k("s_cbranch_scc1 K1_nofl")
    SF = k.s(4, 4)
    k.srd(SF, sws, 4096, OFF_FL)
    for i in range(4): k(f"v_mov_b32 v{R+i}, 0")
    k(f"v_lshlrev_b32 v{I}, 4, v0")
    k(f"buffer_store_dwordx4 {vr(R,4)}, v{I}, {sr(SF,4)}, 0 offen")
    k("s_waitcnt vmcnt(0)")
    k.label("K1_nofl")
    for e in range(4):
        for r in range(4):
            k(f"buffer_load_ushort v{R+4*e+r}, v{va}, {sr(SR,4)}, s{sb+r} offen offset:{642*e}" + (mod if NT & 2 else ""))
            k(f"buffer_load_ushort v{I+4*e+r}, v{va}, {sr(SI,4)}, s{sb+r} offen offset:{642*e}" + (mod if NT & 2 else ""))
    if TK1 == 2: wtouch(256, 23, vkc, vq)
    for e in range(4):
        k(f"s_waitcnt vmcnt({24 - 8*e + (2 if TK1 == 2 else 0)})")
        for r in range(4): k(f"v_lshl_or_b32 v{R+4*e+r}, v{I+4*e+r}, 16, v{R+4*e+r}")
        k(f"ds_write_b128 v{vlw}, {vr(R+4*e,4)} offset:{16*e}")
    k("s_waitcnt lgkmcnt(0)")
    for e in range(4): k(f"ds_read_b128 {vr(R+4*e,4)}, v{vlr} offset:{1024*e}")
    for e in range(4):
        k(f"s_waitcnt lgkmcnt({3-e})")
        k(f"buffer_store_dwordx4 {vr(R+4*e,4)}, v{vo}, {sr(SO,4)}, s{so} offen" + (" sc1" if arg("SC1", 0) & 1 else ""))
        if e < 3: k(f"s_add_u32 s{so}, s{so}, {16*8192}")
    k.stamp_end(sws)
    k("s_endpgm")
    k.label("K1_side2")
    if W1_IN_K1:
        k.v.reset(1); k.s.reset(swr + 4)
        k(f"s_cmp_ge_u32 s2, {448 + NWG_W1}")
        k("s_cbranch_scc1 K1_done")
        weight_job(k, 448, 'w1', sws)
        k.stamp_end(sws)
        k.label("K1_done")
    k("s_endpgm")
    return k, 448 + (NWG_W1 if W1_IN_K1 else 0), 256, lds
```

```python
from g_base import *
from g_wj import *
def gen_k2():
    k = K("k2_kernel", 1)
    RS = 144
    sws = k.s(2, 2)
    k.stamp_start()
    k(f"s_load_dwordx2 {sr(sws,2)}, s[0:1], 80")
    k("s_cmp_ge_u32 s2, 321")
    k("s_cbranch_scc1 K2_side")
    S1 = k.s(4, 4); SW = k.s(4, 4); S2 = k.s(4, 4); skc = k.s(); st = k.s(); su = k.s(); so = k.s(); ssc = k.s()
    k(f"s_lshr_b32 s{st}, s2, 5")
    k(f"s_lshl_b32 s{st}, s{st}, 3")
    k(f"s_and_b32 s{su}, s2, 7")
    k(f"s_add_u32 s{st}, s{st}, s{su}")
    k(f"s_lshl_b32 s{st}, s{st}, 2")
    k(f"s_bfe_u32 s{su}, s2, 0x20003")
    k(f"s_add_u32 s{skc}, s{st}, s{su}")
    k(f"s_lshl_b32 s{so}, s{skc}, 13")
    vm = k.v(); vg = k.v(); vw = k.v(); vl = k.v(); vxa = k.v(); vwa = k.v(); t2 = k.v()
    k(f"v_and_b32 v{vm}, 15, v0")
    k(f"v_bfe_u32 v{vg}, v0, 4, 2")
    k(f"v_lshrrev_b32 v{vw}, 6, v0")
    XL = 64 * RS
    nt2 = " nt" if arg("NT2", 0) else ""
    sw = k.s()
    k(f"v_readfirstlane_b32 s{sw}, v{vw}")
    k(f"v_lshl_add_u32 v{vxa}, v{vw}, 3, v{vg}")
    k(f"v_and_b32 v{t2}, 15, v{vxa}")
    k(f"v_xor_b32 v{t2}, v{t2}, v{vm}")
    k(f"v_lshlrev_b32 v{t2}, 4, v{t2}")
    k(f"v_lshl_add_u32 v{vxa}, v{vxa}, 8, v{t2}")
    k(f"v_xor_b32 v{t2}, 64, v{vxa}")
    k(f"s_lshl_b32 s{sw}, s{sw}, 11")
    k(f"s_add_u32 m0, s{sw}, {XL}")
    k(f"v_and_b32 v{vl}, 63, v0")
    k(f"v_lshlrev_b32 v{vwa}, 4, v{vl}")
    k(f"v_lshl_add_u32 v{vwa}, v{vw}, 11, v{vwa}")
    X = k.v(32, 4)
    W = k.v(8, 4)
    k.stamp_mid(7)
    k("s_waitcnt lgkmcnt(0)")
    k.stamp_mid(6)
    k.srd(S1, sws, T1_BYTES, OFF_T1); k.srd(SW, sws, T1_BYTES, OFF_WT)
    k(f"buffer_load_dwordx4 v{vxa}, {sr(S1,4)}, s{so} offen" + nt2 + " lds")
    k(f"buffer_load_dwordx4 v{t2}, {sr(S1,4)}, s{so} offen offset:1024" + nt2 + " lds")
    for t in range(2):
        k(f"buffer_load_dwordx4 {vr(W+4*t,4)}, v{vwa}, {sr(SW,4)}, s{so} offen offset:{1024*t}" + nt2)
    k.srd(S2, sws, 256*T2_STRIDE, OFF_T2)
    sc = 2.0 / (2048 * 640)
    k(f"s_mov_b32 s{ssc}, {fl(sc)}")
    k(f"s_cmp_eq_u32 s{skc}, 0")
    k(f"s_cselect_b32 s{ssc}, {fl(sc/2)}, s{ssc}")
    k(f"s_cmp_eq_u32 s{skc}, 320")
    k(f"s_cselect_b32 s{ssc}, {fl(sc/2)}, s{ssc}")
    C64 = k.v(8, 4); S64 = k.v(8, 4); N64 = k.v(8, 4); C32 = k.v(8, 4); S32 = k.v(8, 4); N32 = k.v(8, 4)
    FC = k.v(8, 2); FS = k.v(8, 2); IC = k.v(8, 2); IS = k.v(8, 2)
    ang = k.v(8, 4); tmp = k.v(4, 2); fq = k.v(); fg = k.v(); a0 = k.v(); fm = k.v(); sg = k.v()
    ssel0 = k.s(); ssel1 = k.s()
    G = X
    k(f"v_cvt_f32_u32 v{a0}, v{vl}")
    k(f"v_mul_f32 v{a0}, {fl(1/64)}, v{a0}")
    k(f"v_cos_f32 v{tmp}, v{a0}")
    k(f"v_sin_f32 v{tmp+1}, v{a0}")
    k(f"v_lshl_add_u32 v{fq}, v{vw}, 4, v{vm}")
    k(f"v_lshlrev_b32 v{a0}, 2, v{fq}")
    k(f"v_mul_u32_u24 v{ang}, v{a0}, v{vg}")
    k(f"v_lshlrev_b32 v{ang}, 3, v{ang}")
    k(f"v_cvt_pk_bf16_f32 v{sg}, v{tmp}, v{tmp+1}")
    for j in range(1, 8): k(f"v_add_u32 v{ang+j}, v{ang+j-1}, v{a0}")
    for j in range(8): k(f"ds_bpermute_b32 v{G+j}, v{ang+j}, v{sg}")
    k(f"v_lshlrev_b32 v{a0}, 3, v{vm}")
    k(f"v_mul_u32_u24 v{G+16}, v{a0}, v{vg}")
    k(f"v_lshlrev_b32 v{G+16}, 2, v{G+16}")
    for j in range(1, 4): k(f"v_add_u32 v{G+16+j}, v{G+16+j-1}, v{a0}")
    for j in range(4): k(f"ds_bpermute_b32 v{G+8+j}, v{G+16+j}, v{sg}")
    k(f"s_mov_b32 s{ssel0}, 0x05040100")
    k(f"s_mov_b32 s{ssel1}, 0x07060302")
    k(f"v_cvt_f32_u32 v{fq}, v{fq}")
    k(f"v_cvt_f32_u32 v{fg}, v{vg}")
    k(f"v_cvt_f32_u32 v{fm}, v{vm}")
    k(f"v_mul_f32 v{fg}, 4.0, v{fg}")
    def rot(oC, oS, iC, iS, d):
        k(f"v_pk_mul_f32 {vr(oC,2)}, {vr(iC,2)}, {vr(d,2)} op_sel_hi:[1,0]")
        k(f"v_pk_mul_f32 {vr(oS,2)}, {vr(iS,2)}, {vr(d,2)} op_sel_hi:[1,0]")
        k(f"v_pk_fma_f32 {vr(oC,2)}, {vr(iS,2)}, {vr(d,2)}, {vr(oC,2)} op_sel:[0,1,0] neg_lo:[1,0,0] neg_hi:[1,0,0]")
        k(f"v_pk_fma_f32 {vr(oS,2)}, {vr(iC,2)}, {vr(d,2)}, {vr(oS,2)} op_sel:[0,1,0]")
    T = G + 20
    k(f"v_mul_f32 v{a0}, {fl(1/2048)}, v{fq}")
    k(f"v_mul_f32 v{T}, v{a0}, v{fg}")
    k(f"v_add_f32 v{T+1}, v{T}, v{a0}")
    k(f"v_add_f32 v{T+2}, v{a0}, v{a0}")
    k(f"v_mul_f32 v{T+3}, {fl(16.0)}, v{a0}")
    for j in range(2):
        k(f"v_cos_f32 v{FC+j}, v{T+j}")
        k(f"v_sin_f32 v{FS+j}, v{T+j}")
    for j in range(2):
        k(f"v_cos_f32 v{T+4+2*j}, v{T+2+j}")
        k(f"v_sin_f32 v{T+5+2*j}, v{T+2+j}")
    rot(FC+2, FS+2, FC, FS, T+4)
    rot(FC+4, FS+4, FC, FS, T+6)
    rot(FC+6, FS+6, FC+2, FS+2, T+6)
    k("s_waitcnt lgkmcnt(0)")
    k(f"v_and_b32 v{sg}, 1, v0")
    k(f"v_mul_u32_u24 v{sg}, 0x8000, v{sg}")
    k(f"v_lshl_or_b32 v{sg}, v{sg}, 16, v{sg}")
    for p in range(4):
        k(f"v_perm_b32 v{C64+p}, v{G+2*p+1}, v{G+2*p}, s{ssel0}")
        k(f"v_perm_b32 v{S64+p}, v{G+2*p+1}, v{G+2*p}, s{ssel1}")
    for p in range(4):
        k(f"v_xor_b32 v{C64+4+p}, v{sg}, v{C64+p}")
        k(f"v_xor_b32 v{S64+4+p}, v{sg}, v{S64+p}")
        k(f"v_xor_b32 v{N64+p}, 0x80008000, v{S64+p}")
        k(f"v_xor_b32 v{N64+4+p}, 0x80008000, v{S64+4+p}")
    for p in range(2):
        k(f"v_perm_b32 v{C32+p}, v{G+8+2*p+1}, v{G+8+2*p}, s{ssel0}")
        k(f"v_perm_b32 v{S32+p}, v{G+8+2*p+1}, v{G+8+2*p}, s{ssel1}")
    for p in range(2):
        k(f"v_xor_b32 v{C32+2+p}, v{sg}, v{C32+p}")
        k(f"v_xor_b32 v{S32+2+p}, v{sg}, v{S32+p}")
    for p in range(4):
        k(f"v_xor_b32 v{C32+4+p}, 0x80000000, v{C32+p}")
        k(f"v_xor_b32 v{S32+4+p}, 0x80000000, v{S32+p}")
        k(f"v_xor_b32 v{N32+p}, 0x80008000, v{S32+p}")
        k(f"v_xor_b32 v{N32+4+p}, 0x00008000, v{S32+p}")
    k(f"v_cvt_f32_u32 v{tmp}, v{vw}")
    k(f"v_fmamk_f32 v{tmp}, v{tmp}, {fl(16.0)}, v{fg}")
    k(f"v_mul_f32 v{a0}, {fl(1/2048)}, v{fm}")
    for tt in range(2):
        if tt: k(f"v_add_f32 v{a0}, {fl(16/2048)}, v{a0}")
        k(f"v_mul_f32 v{T}, v{a0}, v{tmp}")
        k(f"v_add_f32 v{T+1}, v{T}, v{a0}")
        k(f"v_add_f32 v{T+2}, v{a0}, v{a0}")
        for j in range(2):
            k(f"v_cos_f32 v{IC+4*tt+j}, v{T+j}")
            k(f"v_sin_f32 v{IS+4*tt+j}, v{T+j}")
        k(f"v_cos_f32 v{T+4}, v{T+2}")
        k(f"v_sin_f32 v{T+5}, v{T+2}")
        for j in range(2):
            k(f"v_mul_f32 v{IC+4*tt+j}, s{ssc}, v{IC+4*tt+j}")
            k(f"v_mul_f32 v{IS+4*tt+j}, s{ssc}, v{IS+4*tt+j}")
        rot(IC+4*tt+2, IS+4*tt+2, IC+4*tt, IS+4*tt, T+4)
    vlw = k.v(); vlr = k.v(); vst = k.v()
    k(f"v_mul_u32_u24 v{vlr}, {RS}, v{vm}")
    k(f"v_lshl_add_u32 v{vlw}, v{vg}, 3, v{vlr}")
    k(f"v_lshl_add_u32 v{vlw}, v{vw}, 5, v{vlw}")
    k(f"v_lshl_add_u32 v{vlr}, v{vg}, 4, v{vlr}")
    k(f"v_and_b32 v{vst}, 14, v0")
    k(f"v_lshl_add_u32 v{vst}, v{vw}, 4, v{vst}")
    k(f"v_lshl_add_u32 v{vst}, v{vst}, 2, v{vg}")
    k(f"v_mul_u32_u24 v{vst}, {T2_STRIDE}, v{vst}")
    k(f"v_and_b32 v{tmp}, 1, v0")
    k(f"v_lshl_add_u32 v{vst}, v{tmp}, 4, v{vst}")
    k(f"s_lshl_b32 s{st}, s{skc}, 5")
    k(f"s_add_u32 s{su}, s{st}, {4*T2_STRIDE}")
    RA = FC - 0 if False else k.v(4)
    k(f"v_lshlrev_b32 v{tmp}, 1, v{vg}")
    k(f"v_xor_b32 v{tmp}, v{tmp}, v{vm}")
    k(f"v_lshlrev_b32 v{tmp}, 4, v{tmp}")
    k(f"v_lshl_add_u32 v{RA}, v{vm}, 8, v{tmp}")
    k(f"v_xor_b32 v{RA+1}, 16, v{RA}")
    k(f"v_xor_b32 v{RA+2}, 128, v{RA}")
    k(f"v_xor_b32 v{RA+3}, 144, v{RA}")
    D = k.v(16, 4)
    E = X + 16; B = ang
    k.stamp_mid(0)
    k("s_waitcnt vmcnt(2)")
    k.stamp_mid(8)
    k("s_barrier")
    k.stamp_mid(9)
    for t in range(2):
        for kk in range(2):
            for o in range(2):
                k(f"ds_read_b128 {vr(X+16*o+8*t+4*kk,4)}, v{RA+2*kk+o} offset:{XL + 4096*t}")
    for t in range(2):
        for kk in range(2):
            k(f"s_waitcnt lgkmcnt({6 - 4*t - 2*kk})")
            xr = X + 8*t + 4*kk; xi = xr + 16
            mfma(k, D + 4*t, xr, C64 + 4*kk, None if kk == 0 else D + 4*t)
            mfma(k, D + 8 + 4*t, xr, N64 + 4*kk, None if kk == 0 else D + 8 + 4*t)
            mfma(k, D + 4*t, xi, S64 + 4*kk, D + 4*t)
            mfma(k, D + 8 + 4*t, xi, C64 + 4*kk, D + 8 + 4*t)
    k.stamp_mid(1)
    for h in range(4): cmul_pk(k, E + 2*h, E + 8 + 2*h, D + 2*h, D + 8 + 2*h, FC + 2*h, FS + 2*h, -1)
    for o in range(2):
        for p in range(4): k(f"v_cvt_pk_bf16_f32 v{B+4*o+p}, v{E+8*o+2*p}, v{E+8*o+2*p+1}")
    for T in range(2): mfma(k, D + 4*T, C32 + 4*T, B); mfma(k, D + 8 + 4*T, N32 + 4*T, B)
    for T in range(2): mfma(k, D + 4*T, S32 + 4*T, B + 4, D + 4*T); mfma(k, D + 8 + 4*T, C32 + 4*T, B + 4, D + 8 + 4*T)
    WR = X; WI = X + 8
    k.stamp_mid(2)
    k("s_waitcnt vmcnt(0)")
    for j in range(8):
        k(f"v_lshlrev_b32 v{WR+j}, 16, v{W+j}")
        k(f"v_and_b32 v{WI+j}, 0xffff0000, v{W+j}")
    for h in range(4): cmul_pk(k, E + 2*h, E + 8 + 2*h, D + 2*h, D + 8 + 2*h, WR + 2*h, WI + 2*h, +1)
    for o in range(2):
        for p in range(4): k(f"v_cvt_pk_bf16_f32 v{B+4*o+p}, v{E+8*o+2*p}, v{E+8*o+2*p+1}")
    for t in range(2): mfma(k, D + 4*t, B, C32 + 4*t); mfma(k, D + 8 + 4*t, B, S32 + 4*t)
    for t in range(2): mfma(k, D + 4*t, B + 4, N32 + 4*t, D + 4*t); mfma(k, D + 8 + 4*t, B + 4, C32 + 4*t, D + 8 + 4*t)
    for h in range(4): cmul_pk(k, E + 2*h, E + 8 + 2*h, D + 2*h, D + 8 + 2*h, IC + 2*h, IS + 2*h, +1)
    for o in range(2):
        for p in range(4): k(f"v_cvt_pk_bf16_f32 v{B+4*o+p}, v{E+8*o+2*p}, v{E+8*o+2*p+1}")
        for t in range(2): k(f"ds_write_b64 v{vlw}, {vr(B+4*o+2*t,2)} offset:{o*32*RS + t*16*RS}")
    k.stamp_mid(3)
    k("s_waitcnt lgkmcnt(0)")
    k("s_barrier")
    k.stamp_mid(4)
    for t in range(2):
        for kk in range(2):
            for o in range(2):
                k(f"ds_read_b128 {vr(X+16*o+8*t+4*kk,4)}, v{vlr} offset:{o*32*RS + t*16*RS + kk*64}")
    for t in range(2):
        for kk in range(2):
            k(f"s_waitcnt lgkmcnt({6 - 4*t - 2*kk})")
            xr = X + 8*t + 4*kk; xi = xr + 16
            mfma(k, D + 4*t, xr, C64 + 4*kk, None if kk == 0 else D + 4*t)
            mfma(k, D + 8 + 4*t, xr, S64 + 4*kk, None if kk == 0 else D + 8 + 4*t)
            mfma(k, D + 4*t, xi, N64 + 4*kk, D + 4*t)
            mfma(k, D + 8 + 4*t, xi, C64 + 4*kk, D + 8 + 4*t)
    k("s_mov_b32 vcc_lo, 0x55555555")
    k("s_mov_b32 vcc_hi, 0x55555555")
    for o in range(2):
        for p in range(4): k(f"v_cvt_pk_bf16_f32 v{B+4*o+p}, v{D+8*o+2*p}, v{D+8*o+2*p+1}")
    for p in range(4): k(f"v_cndmask_b32_dpp v{X+p}, v{B+4+p}, v{B+p}, vcc quad_perm:[1,0,3,2] row_mask:0xf bank_mask:0xf")
    k("s_not_b64 vcc, vcc")
    k(f"buffer_store_dwordx4 {vr(X,4)}, v{vst}, {sr(S2,4)}, s{st} offen")
    for p in range(4): k(f"v_cndmask_b32_dpp v{X+4+p}, v{B+p}, v{B+4+p}, vcc quad_perm:[1,0,3,2] row_mask:0xf bank_mask:0xf")
    k(f"buffer_store_dwordx4 {vr(X+4,4)}, v{vst}, {sr(S2,4)}, s{su} offen")
    k.stamp_mid(5)
    k.stamp_end(sws)
    k("s_endpgm")
    k.v.reset(1); k.s.reset(sws + 2)
    k.label("K2_side")
    if "NOCT=1" not in sys.argv: code_touch(k, 321, 60, 100, "k3_kernel")
    k(f"s_cmp_ge_u32 s2, {321 + NWG_W2}")
    k("s_cbranch_scc1 K2_side2")
    weight_job(k, 321, 'w2', sws)
    k.stamp_end(sws)
    k("s_endpgm")
    k.label("K2_side2")
    if not W1_IN_K1:
        k(f"s_cmp_ge_u32 s2, {321 + NWG_W2 + NWG_W1}")
        k("s_cbranch_scc1 K2_done")
        weight_job(k, 321 + NWG_W2, 'w1', sws)
        k.stamp_end(sws)
        k.label("K2_done")
    k("s_endpgm")
    return k, 321 + NWG_W2 + (0 if W1_IN_K1 else NWG_W1), 256, 64 * RS + 8192
```

```python
from g_base import *
P = dict(NPF1=0, NPF2=0, DMA_A=8, T1=1, TS1=0, TU0=0, TU1=35, TU2=70, S1A=0, S1B=0, S2A=14, KM=14, RD=12, D0=16, E0=16, ERATE=4, POLL_LIMIT=400000, TD=0, TE=0, DW=2, DW0=42, DWMAX=40, XNT=0)
for a in sys.argv:
    if '=' in a:
        n, v = a.split('='); P[n] = int(v)

class VM:
    def __init__(self, k): self.k = k; self.n = 0
    def __call__(self, line):
        self.k(line); self.n += 1; return self.n - 1
    def wait(self, idx, extra=""):
        c = min(63, self.n - idx - 1)
        self.k(f"s_waitcnt vmcnt({c})" + extra)

def interleave(k, start, groups):
    body = k.L[start:]; ok = []; full = True
    for i, l in enumerate(body):
        ok.append(full)
        t = l.strip()
        if t.startswith("s_mov_b32 exec"): full = False
        if t.startswith("s_mov_b64 exec, -1"): full = True
    pos = [i for i in range(len(body)) if ok[i]]
    out = []; n = len(groups); gi = 0
    step = len(pos) / (n + 0.5) if n else 1
    marks = {}
    for g in range(n): marks.setdefault(pos[int(g * step)], []).append(g)
    for i, l in enumerate(body):
        for g in marks.get(i, []): out += ["  " + x for x in groups[g]]
        out.append(l)
    k.L[start:] = out

def gen_k3():
    k = K("k3_kernel", 2); vm = VM(k)
    ZOFF = 322 * 32; STAT = 10368; STAGE = 10496; WB = 21504
    sws = k.s(2, 2); sx = k.s(2, 2); sb1 = k.s(2, 2); sb2 = k.s(4, 4)
    k.stamp_start()
    k(f"s_load_dwordx2 {sr(sws,2)}, s[0:1], 80")
    k(f"s_load_dwordx2 {sr(sx,2)}, s[0:1], 0")
    k(f"s_load_dwordx2 {sr(sb1,2)}, s[0:1], 40")
    k(f"s_load_dwordx4 {sr(sb2,4)}, s[0:1], 56")
    k("s_cmp_ge_u32 s2, 256")
    k("s_cbranch_scc1 K3_done")
    SWS = k.s(4, 4); SA = k.s(4, 4); SB = k.s(4, 4); SC = k.s(4, 4)
    sG = k.s(); sj = k.s(); sblk = k.s(); st = k.s(); su = k.s(); sw = k.s(); stau = k.s(); stt = k.s(); sxo = k.s(); sm = k.s(); sw1 = k.s(); sw1m = k.s()
    sfl = k.s(); scnt = k.s(); sT = k.s(); sW2 = k.s(); sl0 = k.s(); sl1 = k.s(); so = k.s(); so2 = k.s(); sH = k.s(); sc5 = k.s()
    k(f"s_bfe_u32 s{sG}, s2, 0x20001")
    k(f"s_lshl_b32 s{sG}, s{sG}, 2")
    k(f"s_lshr_b32 s{st}, s2, 6")
    k(f"s_add_u32 s{sG}, s{sG}, s{st}")
    k(f"s_and_b32 s{su}, s2, 1")
    k(f"s_lshl_b32 s{st}, s{su}, 3")
    k(f"s_bfe_u32 s{sj}, s2, 0x30003")
    k(f"s_add_u32 s{sj}, s{sj}, s{st}")
    k(f"s_lshl_b32 s{st}, s{su}, 2")
    k(f"s_bfe_u32 s{sc5}, s2, 0x20003")
    k(f"s_add_u32 s{sc5}, s{sc5}, s{st}")
    k(f"s_lshl_b32 s{sblk}, s{sG}, 4")
    k(f"s_add_u32 s{sblk}, s{sblk}, s{sj}")
    vl16 = k.v(); vl16b = k.v(); vm_ = k.v(); vg = k.v(); vF = k.v(); vP = k.v(); vtc = k.v(); emark = k.v.mark(); BI = k.v(16, 4); A139 = k.v(4, 4)
    vmark = k.v.mark()
    vw = k.v(); vda = k.v(); vxa = k.v(); vxl = k.v(); t2 = k.v(); t3 = k.v(); vb = k.v()
    k(f"v_lshrrev_b32 v{vw}, 6, v0")
    k(f"v_lshlrev_b32 v{vda}, 4, v0")
    k(f"v_readfirstlane_b32 s{sw}, v{vw}")
    k(f"v_and_b32 v{vm_}, 15, v0")
    k(f"v_bfe_u32 v{vg}, v0, 4, 2")
    k(f"v_and_b32 v{vl16}, 0x3f0, v{vda}")
    k(f"s_and_b32 s{stau}, s{sw}, 1")
    k(f"s_lshr_b32 s{stt}, s{sw}, 1")
    k(f"s_lshr_b32 s{st}, s{sblk}, 2")
    k(f"s_lshl_b32 s{st}, s{st}, 5")
    k(f"s_and_b32 s{su}, s{sblk}, 3")
    k(f"s_lshl_b32 s{su}, s{su}, 2")
    k(f"s_add_u32 s{st}, s{st}, s{su}")
    k(f"s_lshl_b32 s{su}, s{stau}, 4")
    k(f"s_add_u32 s{st}, s{st}, s{su}")
    k(f"s_mul_i32 s{sxo}, s{st}, 1280")
    k(f"s_lshl_b32 s{su}, s{stt}, 5")
    k(f"s_add_u32 s{sxo}, s{sxo}, s{su}")
    k(f"v_lshlrev_b32 v{vxa}, 6, v{vm_}")
    k(f"v_lshl_add_u32 v{vxa}, v{vg}, 3, v{vxa}")
    k(f"v_lshrrev_b32 v{t2}, 2, v{vm_}")
    k(f"v_mul_u32_u24 v{vxl}, 1280, v{t2}")
    k(f"v_and_b32 v{t3}, 3, v0")
    k(f"v_lshl_add_u32 v{vxl}, v{t3}, 6, v{vxl}")
    k(f"v_lshl_add_u32 v{vxl}, v{vg}, 3, v{vxl}")
    k(f"v_add_u32 v{vxl}, 1024, v{vxl}")
    k(f"v_lshlrev_b32 v{vb}, 3, v{vg}")
    k(f"s_mul_i32 s{st}, s{sblk}, {T2_STRIDE}")
    k(f"s_lshl_b32 s{sm}, s{sw}, 10")
    k(f"s_mul_i32 s{sw1m}, s{sw}, 35")
    k(f"s_min_u32 s{sw1m}, s{sw1m}, 104")
    k(f"s_lshl_b32 s{sw1m}, s{sw1m}, 10")
    k(f"s_mul_i32 s{sw1}, s{sj}, {140*1024}")
    k(f"s_add_u32 s{sw1}, s{sw1}, {OFF_W1}")
    k(f"s_add_u32 s{sT}, s{sw1}, {139*1024}")
    k(f"s_add_u32 s{sw1}, s{sw1}, s{sw1m}")
    k(f"s_add_u32 s{sw1m}, s{sw1m}, {WB}")
    XM = k.v(10, 2)
    k("s_waitcnt lgkmcnt(0)")
    k(f"s_add_u32 s{SA}, s{sws}, s{st}")
    k(f"s_addc_u32 s{SA+1}, s{sws+1}, 0")
    k(f"s_add_u32 s{SA}, s{SA}, {OFF_T2}")
    k(f"s_addc_u32 s{SA+1}, s{SA+1}, 0")
    k(f"s_mov_b32 s{SA+2}, {321*32}")
    k(f"s_mov_b32 s{SA+3}, 0x20000")
    for it in range(3):
        k(f"s_add_u32 m0, s{sm}, {4096*it}")
        k(f"s_movk_i32 s{su}, {4096*it}")
        iT2 = vm(f"buffer_load_dwordx4 v{vda}, {sr(SA,4)}, s{su} offen" + (" nt" if P['XNT'] & 2 else "") + " lds")
    k.srd(SB, sx, 2048*1280)
    for i in range(4): vm(f"buffer_load_dwordx2 {vr(XM+2*i,2)}, v{vxa}, {sr(SB,4)}, s{sxo} offen offset:{1280*i}" + (" nt" if P['XNT'] & 1 else ""))
    iX = vm(f"buffer_load_dwordx2 {vr(XM+8,2)}, v{vxl}, {sr(SB,4)}, s{sxo} offen" + (" nt" if P['XNT'] & 1 else ""))
    k.srd(SWS, sws, 40*MB); k.srd(SC, sb1, 1728*2)
    vm(f"buffer_load_dwordx4 {vr(A139,4)}, v{vl16}, {sr(SWS,4)}, s{sT} offen")
    k(f"s_mul_i32 s{st}, s{sj}, 192")
    for b in range(6): vm(f"buffer_load_dwordx2 {vr(BI+2*b,2)}, v{vb}, {sr(SC,4)}, s{st} offen offset:{32*b}" + (" nt" if P['XNT'] & 4 else ""))
    k(f"s_sub_u32 s{su}, s{sj}, 12")
    k(f"s_cmp_ge_u32 s{sj}, 12")
    k(f"s_cselect_b32 s{su}, s{su}, s{sj}")
    k(f"s_lshl_b32 s{su}, s{su}, 5")
    vm(f"buffer_load_dwordx2 {vr(BI+12,2)}, v{vb}, {sr(SC,4)}, s{su} offen offset:{96*32}" + (" nt" if P['XNT'] & 4 else ""))
    k(f"s_lshr_b32 s{st}, s2, 6")
    k(f"s_lshl_b32 s{st}, s{st}, 2")
    k(f"s_add_u32 s{scnt}, s{st}, s{sw}")
    k(f"s_mul_i32 s{st}, s{scnt}, {70*128}")
    k(f"s_mul_i32 s{su}, s{sj}, {140*1024}")
    k(f"s_add_u32 s{st}, s{st}, s{su}")
    k(f"s_add_u32 s{sH}, s{st}, {OFF_W1}")
    k(f"v_lshlrev_b32 v{vtc}, 3, v{vl16}")
    if P['T1']:
        k.exec_mask((1 << 35) - 1)
        for i in range(2):
            vm(f"buffer_load_dword v{vP}, v{vtc}, {sr(SWS,4)}, s{sH} offen")
            if i < 1: k(f"s_add_u32 s{sH}, s{sH}, {35*128}")
        k.exec_all()
    k(f"s_bfe_u32 s{st}, s2, 0x10005")
    k(f"s_lshl_b32 s{st}, s{st}, 4")
    k(f"s_add_u32 s{st}, s{st}, s{scnt}")
    k(f"s_mul_i32 s{st}, s{st}, {23*128}")
    k(f"s_mul_i32 s{su}, s{sc5}, {270*1024}")
    k(f"s_add_u32 s{st}, s{st}, s{su}")
    k(f"s_add_u32 s{sH}, s{st}, {OFF_W2}")
    def touch2():
        k.exec_mask((1 << 23) - 1)
        vm(f"buffer_load_dword v{vP}, v{vtc}, {sr(SWS,4)}, s{sH} offen")
        k.exec_all()
        k(f"s_add_u32 s{sH}, s{sH}, {90*1024}")
    dma = []
    for i in range(35):
        g = []
        if i % 4 == 0:
            g.append(f"s_add_u32 m0, s{sw1m}, {1024*i}")
            if i: g.append(f"s_add_u32 s{sw1}, s{sw1}, 4096")
        g.append(f"buffer_load_dwordx4 v{vl16}, {sr(SWS,4)}, s{sw1} offen offset:{1024*(i%4)} lds")
        dma.append(g)
    def pf(start, n):
        gs = dma[:n]; del dma[:n]
        interleave(k, start, gs); vm.n += len(gs)
    c0 = len(k.L)
    MC = k.v(4, 4); MS = k.v(4, 4); MsC = k.v(4, 4); MnsS = k.v(4, 4)
    TC = k.v(6, 2)
    BM = k.v(4, 4); BL = k.v(16, 4)
    ang = k.v(8, 2); tmp = k.v(4, 2); fn = k.v(); fg = k.v(); a0 = k.v(); fm = k.v(); sg = k.v()
    k(f"v_cvt_f32_u32 v{fm}, v{vm_}")
    k(f"v_cvt_f32_u32 v{fg}, v{vg}")
    k(f"s_lshl_b32 s{su}, s{stt}, 4")
    k(f"v_cvt_f32_u32 v{fn}, s{su}")
    k(f"v_add_f32 v{fn}, v{fn}, v{fm}")
    k(f"v_mul_f32 v{a0}, {fl(1/32)}, v{fn}")
    k(f"v_mul_f32 v{ang}, {fl(8.0)}, v{fg}")
    k(f"v_mul_f32 v{ang}, v{ang}, v{a0}")
    for j in range(1, 8): k(f"v_add_f32 v{ang+j}, v{ang+j-1}, v{a0}")
    gen_cs8(k, ang, MC, MS, tmp)
    k(f"v_bfe_u32 v{sg}, v0, 5, 1")
    k(f"v_mul_u32_u24 v{sg}, 0x8000, v{sg}")
    k(f"v_lshl_or_b32 v{sg}, v{sg}, 16, v{sg}")
    k(f"v_xor_b32 v{t2}, 0x80008000, v{sg}")
    for p in range(4):
        k(f"v_xor_b32 v{MsC+p}, v{sg}, v{MC+p}")
        k(f"v_xor_b32 v{MnsS+p}, v{t2}, v{MS+p}")
    k(f"v_mul_f32 v{a0}, {fl(1/640)}, v{fn}")
    k(f"v_mul_f32 v{ang}, v{a0}, v{fg}")
    for T in range(1, 3): k(f"v_fmamk_f32 v{ang+T}, v{a0}, {fl(4.0*T)}, v{ang}")
    for T in range(3):
        k(f"v_cos_f32 v{TC+2*T}, v{ang+T}")
        k(f"v_sin_f32 v{TC+2*T+1}, v{ang+T}")
    for which in range(2):
        if which == 0: k(f"v_mul_f32 v{a0}, {fl(1/20)}, v{fm}")
        else:
            k(f"v_cvt_f32_u32 v{a0}, v{t3}")
            k(f"v_add_f32 v{a0}, {fl(16.0)}, v{a0}")
            k(f"v_mul_f32 v{a0}, {fl(1/20)}, v{a0}")
        k(f"v_mul_f32 v{ang}, v{a0}, v{fg}")
        for T in range(1, 3): k(f"v_fmamk_f32 v{ang+T}, v{a0}, {fl(4.0*T)}, v{ang}")
        dst = BM if which == 0 else ang + 4
        for T in range(3):
            k(f"v_cos_f32 v{tmp}, v{ang+T}")
            k(f"v_sin_f32_e64 v{tmp+1}, -v{ang+T}")
            k(f"v_cvt_pk_bf16_f32 v{dst+T}, v{tmp}, v{tmp+1}")
    k(f"v_mov_b32 v{BM+3}, 0")
    for i in range(16): k(f"v_mov_b32 v{BL+i}, 0")
    k.exec_mask(0xFFFF000000000000)
    k(f"v_mov_b32 v{BM+2}, 0")
    k(f"v_mov_b32 v{ang+6}, 0")
    for i in range(4):
        k.exec_mask(0x000F000F000F000F << (4*i))
        for T in range(3): k(f"v_mov_b32 v{BL+4*i+T}, v{ang+4+T}")
    k.exec_all()
    AD = k.v(6); vsn = k.v()
    k(f"v_bfe_u32 v{t2}, v0, 2, 2")
    k(f"v_lshl_add_u32 v{t2}, v{vg}, 3, v{t2}")
    k(f"v_mad_u32_u24 v{t2}, v{t2}, 20, v{t3}")
    k(f"v_lshlrev_b32 v{t2}, 5, v{t2}")
    k(f"s_lshl_b32 s{su}, s{stau}, 3")
    k.exec_mask(0x00000000FFFFFFFF)
    k(f"v_add_u32 v{t2}, s{su}, v{t2}")
    for T in range(3):
        for jh in range(2): k(f"v_add_u32 v{AD+2*T+jh}, {(4*T + 80*jh)*32}, v{t2}")
    k.exec_mask(0xFFFFFFFF00000000)
    k(f"v_sub_u32 v{t2}, s{su}, v{t2}")
    for T in range(3):
        for jh in range(2): k(f"v_add_u32 v{AD+2*T+jh}, {(640 - 4*T - 80*jh)*32}, v{t2}")
    k.exec_mask(0x1111111000000000); k(f"v_mov_b32 v{AD+0}, {ZOFF}")
    k.exec_mask(0x1111111100000000); k(f"v_mov_b32 v{AD+1}, {ZOFF}")
    k.exec_mask(0x4444444400000000); k(f"v_mov_b32 v{AD+4}, {ZOFF}"); k(f"v_mov_b32 v{AD+5}, {ZOFF}")
    k.exec_all()
    SGA = k.v(4); sgl = k.v(); sr0 = k.v(); sr1 = k.v(); vsw = k.v(); vsr = k.v(); vsl = k.v()
    k(f"v_and_b32 v{t2}, 1, v{vg}")
    k(f"v_lshrrev_b32 v{vsn}, 1, v{vg}")
    k(f"s_lshl_b32 s{st}, s{stt}, 8")
    k(f"s_lshl_b32 s{su}, s{stau}, 6")
    k(f"s_add_u32 s{st}, s{st}, s{su}")
    k(f"v_lshl_add_u32 v{sgl}, v{vsn}, 7, s{st}")
    k(f"v_lshlrev_b32 v{SGA+1}, 4, v{vm_}")
    k(f"v_xor_b32 v{SGA}, v{sgl}, v{SGA+1}")
    k(f"v_lshl_add_u32 v{SGA}, v{vm_}, 9, v{SGA}")
    k(f"v_lshl_add_u32 v{SGA}, v{t2}, 3, v{SGA}")
    for i in range(1, 4): k(f"v_xor_b32 v{SGA+i}, {16*i}, v{SGA}")
    k(f"v_lshrrev_b32 v{sr0}, 2, v{vm_}")
    k(f"v_xor_b32 v{sr1}, v{sr0}, v{t3}")
    k(f"v_lshl_add_u32 v{sgl}, v{sr1}, 4, v{sgl}")
    k(f"v_lshl_add_u32 v{sgl}, v{t3}, 9, v{sgl}")
    k(f"v_lshl_add_u32 v{sgl}, v{t2}, 3, v{sgl}")
    k(f"v_add_u32 v{sgl}, {16*512}, v{sgl}")
    k(f"v_lshlrev_b32 v{vsw}, 4, v{t2}")
    k(f"v_lshl_add_u32 v{vsw}, v{vsn}, 3, v{vsw}")
    k(f"s_add_u32 s{st}, s{su}, {STAT}")
    k(f"v_mov_b32 v{vsr}, s{st}")
    k(f"s_lshl_b32 s{su}, s{stt}, 5")
    k(f"s_add_u32 s{su}, s{su}, s{st}")
    k(f"v_add_u32 v{vsw}, s{su}, v{vsw}")
    k(f"v_lshl_add_u32 v{vsl}, v{sr0}, 3, v{vsr}")
    k(f"v_lshrrev_b32 v{sr0}, 5, v0")
    k(f"v_lshlrev_b32 v{sr0}, 4, v{sr0}")
    k(f"v_xor_b32 v{sr0}, v{sr0}, v{vda}")
    k(f"v_xor_b32 v{sr1}, 128, v{sr0}")
    k(f"v_add_u32 v{vl16b}, 4096, v{vl16}")
    pf(c0, P['NPF1'])
    k(f"s_mul_i32 s{st}, s{sblk}, 10240")
    for S, off in ((SA, OFF_H), (SC, OFF_LN2)):
        k(f"s_add_u32 s{su}, s{st}, {off}")
        k(f"s_add_u32 s{S}, s{sws}, s{su}")
        k(f"s_addc_u32 s{S+1}, s{sws+1}, 0")
        k(f"s_mov_b32 s{S+2}, 10240")
    A = k.v(24, 4)
    if not P.get('CLK') and not P.get('ST2'): k.stamp_mid(0)
    vm.wait(iT2)
    k("s_barrier")
    if not P.get('CLK'): k.stamp_mid(1)
    c1 = len(k.L)
    for T in range(3):
        for o in range(2):
            for jh in range(2): k(f"ds_read_b64_tr_b16 {vr(A+8*T+4*o+2*jh,2)}, v{AD+2*T+jh} offset:{16*o}")
    DA = k.v(24, 4)
    for T in range(3):
        k(f"s_waitcnt lgkmcnt({8 - 4*T})")
        mfma(k, DA + 8*T, A + 8*T, MC); mfma(k, DA + 8*T + 4, A + 8*T, MS)
        mfma(k, DA + 8*T, A + 8*T + 4, MnsS, DA + 8*T); mfma(k, DA + 8*T + 4, A + 8*T + 4, MsC, DA + 8*T + 4)
    E = A; OP = k.v(16, 4)
    for i in range(4): k(f"v_mov_b32 v{OP+4*i+3}, 0")
    for T in range(3):
        for h in range(2):
            R = DA + 8*T + 2*h; I = R + 4; oR = E + 8*T + 2*h; oI = oR + 4; cs = TC + 2*T
            k(f"v_pk_mul_f32 {vr(oR,2)}, {vr(R,2)}, {vr(cs,2)} op_sel_hi:[1,0]")
            k(f"v_pk_mul_f32 {vr(oI,2)}, {vr(I,2)}, {vr(cs,2)} op_sel_hi:[1,0]")
            k(f"v_pk_fma_f32 {vr(oR,2)}, {vr(I,2)}, {vr(cs,2)}, {vr(oR,2)} op_sel:[0,1,0] neg_lo:[1,0,0] neg_hi:[1,0,0]")
            k(f"v_pk_fma_f32 {vr(oI,2)}, {vr(R,2)}, {vr(cs,2)}, {vr(oI,2)} op_sel:[0,1,0]")
        for i in range(4): k(f"v_cvt_pk_bf16_f32 v{OP+4*i+T}, v{E+8*T+i}, v{E+8*T+4+i}")
    Y = DA
    for i in range(4):
        mfma(k, Y + 4*i, OP + 4*i, BM)
    for i in range(4):
        mfma(k, Y + 16, OP + 4*i, BL + 4*i, None if i == 0 else Y + 16)
    pf(c1, P['NPF2'])
    XF = A
    vm.wait(iX)
    for i in range(10):
        k(f"v_lshlrev_b32 v{XF+2*i}, 16, v{XM+i}")
        k(f"v_and_b32 v{XF+2*i+1}, 0xffff0000, v{XM+i}")
    HP = XM
    for i in range(10):
        k(f"v_pk_add_f32 {vr(XF+2*i,2)}, {vr(XF+2*i,2)}, {vr(Y+2*i,2)}")
    for i in range(10): k(f"v_cvt_pk_bf16_f32 v{HP+i}, v{XF+2*i}, v{XF+2*i+1}")
    ones = tmp; ST = k.v(10, 2)
    k(f"v_mov_b32 v{ones}, 0x3f803f80")
    for i in range(5):
        k(f"v_dot2_f32_bf16 v{ST+2*i}, v{HP+2*i}, v{ones}, 0")
        k(f"v_dot2_f32_bf16 v{ST+2*i+1}, v{HP+2*i}, v{HP+2*i}, 0")
    for i in range(5):
        k(f"v_dot2_f32_bf16 v{ST+2*i}, v{HP+2*i+1}, v{ones}, v{ST+2*i}")
        k(f"v_dot2_f32_bf16 v{ST+2*i+1}, v{HP+2*i+1}, v{HP+2*i+1}, v{ST+2*i+1}")
    for i in range(5): k(f"ds_write_b64 v{SGA+i if i < 4 else sgl}, {vr(HP+2*i,2)} offset:{STAGE}")
    for i in range(4):
        k.exec_mask(0x000F000F000F000F << (4*i))
        k(f"v_pk_add_f32 {vr(ST+2*i,2)}, {vr(ST+2*i,2)}, {vr(ST+8,2)}")
    k.exec_all()
    for q in range(2):
        k(f"v_permlane32_swap_b32 v{ST+q}, v{ST+2+q}")
        k(f"v_permlane32_swap_b32 v{ST+4+q}, v{ST+6+q}")
    k(f"v_pk_add_f32 {vr(ST,2)}, {vr(ST,2)}, {vr(ST+2,2)}")
    k(f"v_pk_add_f32 {vr(ST+4,2)}, {vr(ST+4,2)}, {vr(ST+6,2)}")
    for q in range(2): k(f"v_permlane16_swap_b32 v{ST+q}, v{ST+4+q}")
    k(f"v_pk_add_f32 {vr(ST,2)}, {vr(ST,2)}, {vr(ST+4,2)}")
    un = 0
    for sh in (8, 4, 2, 1):
        for q in range(2): k(f"v_add_f32_dpp v{ST+q}, v{ST+q}, v{ST+q} row_ror:{sh} row_mask:0xf bank_mask:0xf")
        for i in (un,):
            k(f"v_lshlrev_b32 v{XF+2*i}, 16, v{HP+i}")
            k(f"v_and_b32 v{XF+2*i+1}, 0xffff0000, v{HP+i}")
        un += 1
    k.exec_mask(0x0001000100010001)
    k(f"ds_write_b64 v{vsw}, {vr(ST,2)}")
    k.exec_all()
    for i in range(un, 10):
        k(f"v_lshlrev_b32 v{XF+2*i}, 16, v{HP+i}")
        k(f"v_and_b32 v{XF+2*i+1}, 0xffff0000, v{HP+i}")
    if not P.get('CLK'): k.stamp_mid(2)
    k("s_waitcnt lgkmcnt(0)")
    k("s_barrier")
    G = k.v(20, 4); Z = OP
    for t in range(2):
        for hh in range(2): k(f"ds_read_b128 {vr(G+8*t+4*hh,4)}, v{vsr} offset:{32*t+16*hh}")
    for t in range(2): k(f"ds_read_b64 {vr(G+16+2*t,2)}, v{vsl} offset:{32*t}")
    for it in range(3): k(f"ds_read_b128 {vr(Z+4*it,4)}, v{sr1 if it == 1 else sr0} offset:{STAGE + 4096*it}")
    k(f"s_movk_i32 s{st}, 4096")
    k(f"s_movk_i32 s{su}, 8192")
    k("s_waitcnt lgkmcnt(3)")
    for i in range(4): k(f"v_pk_add_f32 {vr(ST+2*i,2)}, {vr(G+2*i,2)}, {vr(G+8+2*i,2)}")
    k(f"v_pk_add_f32 {vr(ST+8,2)}, {vr(G+16,2)}, {vr(G+18,2)}")
    k("s_waitcnt lgkmcnt(0)")
    for it in range(3): vm(f"buffer_store_dwordx4 {vr(Z+4*it,4)}, v{vda}, {sr(SA,4)}, {['0', 's%d' % st, 's%d' % su][it]} offen sc1")
    SCL = G
    chains = []
    for i in range(5):
        kk = K("tmp", 0); ln_stats(kk, ST+2*i, ST+2*i+1, SCL+2*i, SCL+2*i+1, Y + i); chains.append(kk.L)
    for j in range(len(chains[0])):
        for c in chains: k.L.append(c[j])
    LP = Y + 8
    for i in range(10):
        sc_ = SCL + 2*(i >> 1)
        k(f"v_pk_fma_f32 {vr(XF+2*i,2)}, {vr(XF+2*i,2)}, {vr(sc_,2)}, {vr(sc_,2)} op_sel:[0,0,1] op_sel_hi:[1,0,1]")
    for i in range(10):
        k(f"v_cvt_pk_bf16_f32 v{LP+i}, v{XF+2*i}, v{XF+2*i+1}")
        if i & 1: k(f"ds_write_b64 v{SGA+(i>>1) if i < 8 else sgl}, {vr(LP+i-1,2)}")
    k("s_waitcnt lgkmcnt(0)")
    k("s_barrier")
    Z2 = G
    for it in range(3): k(f"ds_read_b128 {vr(Z2+4*it,4)}, v{sr1 if it == 1 else sr0} offset:{4096*it}")
    k(f"s_mul_i32 s{sW2}, s{sc5}, 54")
    k(f"s_add_u32 s{sW2}, s{sW2}, s{sw}")
    k(f"s_mul_i32 s{sW2}, s{sW2}, 5120")
    k(f"s_add_u32 s{sW2}, s{sW2}, {OFF_W2}")
    k(f"s_lshl_b32 s{sfl}, s{sG}, 8")
    k(f"s_add_u32 s{sfl}, s{sfl}, {OFF_FL}")
    for it in range(3):
        k(f"s_waitcnt lgkmcnt({2-it})")
        iS = vm(f"buffer_store_dwordx4 {vr(Z2+4*it,4)}, v{vda}, {sr(SC,4)}, {['0', 's%d' % st, 's%d' % su][it]} offen sc1")
    if not P.get('CLK'): k.stamp_mid(3)
    k.v.reset(vmark)
    W2V = [None]
    k.a(256)
    NORD = list(range(11)) + [13, 11, 12]
    def w2reg(i): return ar(4*i, 4) if i < 64 else vr(W2V[0] + 4*(i - 64), 4)
    w2next = [0]
    def w2issue(n):
        for z in range(n):
            i = w2next[0]
            if i >= 70: return
            s, b = divmod(i, 5)
            if b == 0 or z == 0: k(f"s_add_u32 s{sT}, s{sW2}, {NORD[s]*20480}")
            vm(f"buffer_load_dwordx4 {w2reg(i)}, v{vl16 if b < 4 else vl16b}, {sr(SWS,4)}, s{sT} offen offset:{1024*(b&3)}")
            w2next[0] += 1
    def dmaissue(n):
        for g in dma[:n]:
            for l in g: k(l)
            vm.n += 1
        del dma[:n]
    def seam(no, lastst, nA, nB, mid, filler):
        if no == 0: dmaissue(P['DMA_A'])
        w2issue(nA)
        vm.wait(lastst)
        k("s_barrier")
        if not P.get('CLK') or no: k.stamp_mid(mid)
        k(f"s_cmp_lg_u32 s{sw}, 0")
        k(f"s_cbranch_scc1 K3_nf{no}")
        k(f"s_lshl_b32 s{st}, s{sj}, 2")
        k(f"s_add_u32 s{st}, s{st}, s{sfl}")
        k(f"v_mov_b32 v{vP}, 1")
        k(f"v_mov_b32 v{vF}, 0")
        k("s_mov_b64 exec, 1")
        k(f"buffer_store_dword v{vP}, v{vF}, {sr(SWS,4)}, s{st} offen offset:{128*no} sc1")
        k.exec_all()
        k.label(f"K3_nf{no}")
        late = no == 0 and len(dma) > 0
        if no == 0: dmaissue(35)
        if no == 0 and P['TS1']: touch2()
        w2issue(nB)
        filler(late)
        if P.get('ST2') and no == 1: k.stamp_mid(0)
        k(f"v_lshlrev_b32 v{vF}, 2, v{vm_}")
        k(f"s_mov_b32 s{scnt}, 0")
        k.label(f"K3_p{no}")
        k(f"buffer_load_dword v{vP}, v{vF}, {sr(SWS,4)}, s{sfl} offen offset:{128*no} sc1")
        k(f"s_add_u32 s{scnt}, s{scnt}, 1")
        k(f"s_cmp_gt_u32 s{scnt}, {P['POLL_LIMIT']}")
        k("s_waitcnt vmcnt(0)")
        k(f"s_cbranch_scc1 K3_x{no}")
        k(f"v_cmp_ne_u32 vcc, 1, v{vP}")
        k(f"s_cbranch_vccnz K3_p{no}")
        k.label(f"K3_x{no}")
        if not P.get('CLK') or no: k.stamp_mid(mid + 1)
        return late
    RD = P['RD']; KM = P['KM']
    vlr = k.v(3); vln = k.v(); vs1 = k.v(); ACC = k.v(56, 4); Af = k.v(56, 4); Bf = k.v(8*RD, 4); O = BI
    items = [(ks, b) for ks in range(KM) for b in range(7)] + [(ks, b) for b in (6, 0, 1, 2, 3, 4, 5) for ks in range(KM, 20)]
    lg = []
    def rdA(u):
        if u >= len(items): return
        ks, b = items[u]
        if (ks, b) == (19, 6): return
        off = (ks*7 + b) * 1024
        k(f"ds_read_b128 {vr(Af + 4*(u % 14), 4)}, v{vlr + (off >> 16)} offset:{off & 0xffff}")
        lg.append(u)
    def fillD(late):
        for i in range(3): k(f"v_add_u32 v{vlr+i}, {65536*i + WB}, v{vl16}")
        if not late:
            for u in range(7): rdA(u)
        k(f"v_lshrrev_b32 v{vs1}, 3, v{vm_}")
        k(f"v_mul_u32_u24 v{vln}, 10240, v{vs1}")
        k(f"v_lshl_add_u32 v{vln}, v{vg}, 7, v{vln}")
        k(f"v_and_b32 v{vs1}, 7, v{vm_}")
        k(f"v_lshl_add_u32 v{vln}, v{vs1}, 4, v{vln}")
        k(f"v_and_b32 v{vs1}, 1, v{vg}")
        k(f"v_lshlrev_b32 v{vs1}, 10, v{vs1}")
        k(f"v_lshl_add_u32 v{vs1}, v{vm_}, 4, v{vs1}")
        k(f"v_lshrrev_b32 v{ACC+4}, 1, v{vg}")
        k(f"v_lshl_add_u32 v{vs1}, v{ACC+4}, 8, v{vs1}")
        for b in range(7):
            for q in range(2):
                k(f"v_lshlrev_b32 v{ACC+8*b+2*q}, 16, v{BI+2*b+q}")
                k(f"v_and_b32 v{ACC+8*b+2*q+1}, 0xffff0000, v{BI+2*b+q}")
        k(f"s_lshl_b32 s{st}, s{sG}, 2")
        k(f"s_add_u32 s{st}, s{st}, s{sw}")
        k(f"s_mul_i32 s{sl0}, s{st}, {4*10240}")
        k(f"s_add_u32 s{sl0}, s{sl0}, {OFF_LN2}")
        k(f"s_add_u32 s{sl1}, s{sl0}, {2*10240}")
        k(f"s_lshl_b32 s{st}, s{sG}, 1")
        k(f"s_add_u32 s{st}, s{st}, s{stt}")
        k(f"s_mul_i32 s{so}, s{st}, {54*4096}")
        k(f"s_lshl_b32 s{st}, s{stau}, 11")
        k(f"s_add_u32 s{so}, s{so}, s{st}")
        k(f"s_add_u32 s{so}, s{so}, {OFF_HP}")
        k(f"s_lshr_b32 s{st}, s{sj}, 1")
        k(f"s_add_u32 s{st}, s{st}, 48")
        k(f"s_lshl_b32 s{st}, s{st}, 12")
        k(f"s_add_u32 s{so2}, s{so}, s{st}")
        k(f"s_and_b32 s{st}, s{sj}, 1")
        k(f"s_lshl_b32 s{st}, s{st}, 9")
        k(f"s_add_u32 s{so2}, s{so2}, s{st}")
        k(f"s_mul_i32 s{st}, s{sj}, {3*4096}")
        k(f"s_add_u32 s{so}, s{so}, s{st}")
    late = seam(0, iS, P['S1A'], P['S1B'], 4, fillD)
    bidx = {}
    bq = [(ks, rho) for ks in range(20) for rho in range(2)]
    def ldB():
        ks, rho = bq.pop(0)
        if rho == 0 and ks in (8, 16):
            k(f"s_add_u32 s{sl0}, s{sl0}, 4096"); k(f"s_add_u32 s{sl1}, s{sl1}, 4096")
        bidx[(ks, rho)] = vm(f"buffer_load_dwordx4 {vr(Bf + 8*(ks % RD) + 4*rho, 4)}, v{vln}, {sr(SWS,4)}, s{sl0 if rho == 0 else sl1} offen offset:{512*(ks & 7)} sc1")
    if P['TD']:
        k(f"s_and_b32 s{st}, s{sj}, 7")
        k(f"s_lshl_b32 s{st}, s{st}, 2")
        k(f"s_add_u32 s{st}, s{st}, s{sw}")
        k(f"s_mul_i32 s{st}, s{st}, {40*128}")
        k(f"s_mul_i32 s{su}, s{sG}, {16*10240}")
        k(f"s_add_u32 s{st}, s{st}, s{su}")
        k(f"s_add_u32 s{st}, s{st}, {OFF_LN2}")
        k.exec_mask((1 << 40) - 1)
        vm(f"buffer_load_dword v{vP}, v{vtc}, {sr(SWS,4)}, s{st} offen sc1")
        k.exec_all()
    for _ in range(P['D0']): ldB()
    if late:
        k("s_barrier")
        for u in range(7): rdA(u)
    TCH = [P['TU0'], P['TU1'], P['TU2']][(1 if P['TS1'] else 0):]
    waited = set(); vq = []
    lastS = None
    def epi(b):
        ops = []
        ob = O + 8*((b >> 1) & 1) if b < 6 else O + 8
        for rho in range(2):
            a = ACC + 8*b + 4*rho
            oo = (ob + 4*rho + 2*(b & 1)) if b < 6 else ob + 2*rho
            for r in range(4): ops.append(f"v_mul_f32_e64 v{a+r}, v{a+r}, |v{a+r}|")
            for q in range(2): ops.append(f"v_cvt_pk_bf16_f32 v{oo+q}, v{a+2*q}, v{a+2*q+1}")
            for q in range(2): ops.append(f"v_pk_max_i16 v{oo+q}, v{oo+q}, 0")
        if b == 6:
            for q in range(2): ops.append(f"v_permlane16_swap_b32 v{ob+q}, v{ob+2+q}")
            ops.append(("single", ob))
        elif b & 1:
            ops.append(("pair", ob, b >> 1))
        return ops
    def emit(op):
        nonlocal lastS
        if isinstance(op, str): k(op)
        elif op[0] == "single":
            k(f"s_cmp_ge_u32 s{sj}, 12")
            k("s_cbranch_scc1 K3_ns")
            k(f"buffer_store_dwordx4 {vr(op[1],4)}, v{vs1}, {sr(SWS,4)}, s{so2} offen sc1")
            k.label("K3_ns")
        else:
            for rho in range(2):
                lastS = vm(f"buffer_store_dwordx4 {vr(op[1]+4*rho,4)}, v{vl16}, {sr(SWS,4)}, s{so} offen offset:{1024*rho} sc1")
            if op[2] < 2: k(f"s_add_u32 s{so}, s{so}, 4096")
    for u, (ks, b) in enumerate(items):
        if ks not in waited:
            vm.wait(bidx[(ks, 1)]); waited.add(ks)
            if u == 0:
                k.stamp_mid(6)
        if P.get('CLK') == 1 and u in (0, 14, 28, 56, 98, 122): k.stamp_clk([0, 14, 28, 56, 98, 122].index(u))
        if (ks, b) == (19, 6): a = A139
        else:
            a = Af + 4*(u % 14)
            k(f"s_waitcnt lgkmcnt({len(lg) - lg.index(u) - 1})")
        bb = Bf + 8*(ks % RD); d = ACC + 8*b
        def valu(n):
            for _ in range(n):
                if vq and vq[0][0] <= u: emit(vq.pop(0)[1])
        mfma(k, d + 4, a, bb + 4, d if ks == 0 else d + 4)
        valu(1)
        rdA(u + 7)
        mfma(k, d, a, bb, d)
        valu(2)
        done_ks = ks if u < 7*KM else KM
        if bq and b in (1, 3, 5) and bq[0][0] < done_ks + RD: ldB()
        if u in TCH: touch2()
        if P['DW'] and u % P['DW'] == P['DW'] - 1 and u >= P['DW0'] and u < 7*KM and w2next[0] < P['DWMAX']: w2issue(1)
        if u >= 7*KM and ks == 19:
            for op in epi(b): vq.append((u + 2, op))
    assert not bq
    while vq: emit(vq.pop(0)[1])
    k.stamp_mid(7)
    if P.get('CLK') == 1: k.stamp_clk(10)
    k.v.reset(emark)
    ED = 6
    vh = k.v(4); vq3 = k.v(3); vrr = k.v(); vo = k.v(); vhh = k.v(); vg8 = k.v(); t2 = k.v()
    W2V[0] = k.v(24, 4); ACC = k.v(80, 4); HR = k.v(16*ED, 4); HB = k.v(10, 2); BB = k.v(10, 2)
    srt = sl0; sho = sl1; sbo = so2
    def fillE(late):
        for q in range(4):
            k(f"s_add_u32 s{st}, s{sw}, {q}")
            k(f"s_and_b32 s{st}, s{st}, 3")
            k(f"s_lshl_b32 s{su}, s{st}, 10")
            k(f"v_add_u32 v{vh+q}, s{su}, v{vl16}")
            if q:
                k(f"s_mul_i32 s{su}, s{st}, {15*1024}")
                k(f"s_add_u32 s{su}, s{su}, {WB + (q-1)*5*1024}")
                k(f"v_add_u32 v{vq3+q-1}, s{su}, v{vl16}")
        k(f"s_mul_i32 s{su}, s{sw}, {15*1024}")
        k(f"s_add_u32 s{su}, s{su}, {WB}")
        k(f"v_add_u32 v{vrr}, s{su}, v{vl16}")
        k(f"s_bfe_u32 s{st}, s2, 0x10005")
        k(f"s_lshl_b32 s{srt}, s{sG}, 1")
        k(f"s_add_u32 s{srt}, s{srt}, s{st}")
        k(f"s_mul_i32 s{sH}, s{srt}, 54")
        k(f"s_add_u32 s{sH}, s{sH}, s{sw}")
        k(f"s_lshl_b32 s{sH}, s{sH}, 12")
        k(f"s_add_u32 s{sH}, s{sH}, {OFF_HP}")
        k.srd(SB, sb2, 640*2); k.srd(SC, sb2+2, 2048*1280)
        k(f"s_lshl_b32 s{st}, s{srt}, 2")
        k(f"s_add_u32 s{st}, s{st}, s{sw}")
        k(f"s_mul_i32 s{sho}, s{st}, {2*10240}")
        k(f"s_lshr_b32 s{su}, s{st}, 1")
        k(f"s_lshl_b32 s{su}, s{su}, 5")
        k(f"s_and_b32 s{st}, s{st}, 1")
        k(f"s_lshl_b32 s{st}, s{st}, 3")
        k(f"s_add_u32 s{su}, s{su}, s{st}")
        k(f"s_mul_i32 s{so}, s{su}, 1280")
        k(f"s_mul_i32 s{sbo}, s{sc5}, 160")
        k(f"s_add_u32 s{so}, s{so}, s{sbo}")
        k(f"s_mul_i32 s{st}, s{sc5}, 1280")
        k(f"s_add_u32 s{sho}, s{sho}, s{st}")
        k(f"s_add_u32 s{sho}, s{sho}, {OFF_H}")
        k(f"v_lshlrev_b32 v{vg8}, 3, v{vg}")
        k(f"v_and_b32 v{vo}, 3, v0")
        k(f"v_bfe_u32 v{t2}, v0, 2, 1")
        k(f"v_lshl_add_u32 v{vo}, v{t2}, 4, v{vo}")
        k(f"v_bfe_u32 v{t2}, v0, 3, 1")
        k(f"v_mul_u32_u24 v{vhh}, 10240, v{t2}")
        k(f"v_lshl_add_u32 v{vo}, v{t2}, 2, v{vo}")
        k(f"v_mul_u32_u24 v{vo}, 1280, v{vo}")
        k(f"v_add_u32 v{vo}, v{vo}, v{vg8}")
        k(f"v_and_b32 v{t2}, 7, v0")
        k(f"v_lshl_add_u32 v{vhh}, v{t2}, 4, v{vhh}")
        k(f"v_lshrrev_b32 v{t2}, 1, v{vg}")
        k(f"v_lshl_add_u32 v{vhh}, v{t2}, 7, v{vhh}")
        k(f"v_and_b32 v{t2}, 1, v{vg}")
        k(f"v_lshl_add_u32 v{vhh}, v{t2}, 3, v{vhh}")
    P['S2A'] = min(P['S2A'], 64 - w2next[0])
    sys.stderr.write(f'w2 issued before seam2: {w2next[0]}\n')
    seam(1, lastS, P['S2A'], 70, 8, fillE)
    hq = [(s, q) for s in range(14) for q in range(4)]
    hidx = {}
    def ldH():
        s, q = hq.pop(0)
        if q == 0: k(f"s_add_u32 s{sT}, s{sH}, {NORD[s]*16384}")
        hidx[(s, q)] = vm(f"buffer_load_dwordx4 {vr(HR + 16*(s % ED) + 4*q, 4)}, v{vh+q}, {sr(SWS,4)}, s{sT} offen sc1")
    if P['TE']:
        k(f"s_and_b32 s{st}, s{sj}, 3")
        k(f"s_lshl_b32 s{st}, s{st}, 2")
        k(f"s_add_u32 s{st}, s{st}, s{sw}")
        k(f"s_mul_i32 s{st}, s{st}, {108*128}")
        k(f"s_mul_i32 s{su}, s{srt}, {54*4096}")
        k(f"s_add_u32 s{st}, s{st}, s{su}")
        k(f"s_add_u32 s{st}, s{st}, {OFF_HP}")
        k.exec_mask((1 << 54) - 1)
        vm(f"buffer_load_dword v{vP}, v{vtc}, {sr(SWS,4)}, s{st} offen sc1")
        k(f"s_add_u32 s{st}, s{st}, {54*128}")
        vm(f"buffer_load_dword v{vP}, v{vtc}, {sr(SWS,4)}, s{st} offen sc1")
        k.exec_all()
    for _ in range(P['E0']): ldH()
    groups = [(s, q) for s in range(12) for q in range(4)] + [(s, q) for q in (1, 2, 3, 0) for s in (12, 13)]
    donegrp = set(); cnt = 0; wq = []; extra = []
    for b in range(5):
        extra.append(f"buffer_load_dwordx2 {vr(HB+2*b,2)}, v{vhh}, {sr(SWS,4)}, s{sho} offen offset:{256*b} sc1")
        extra.append(f"buffer_load_dwordx2 {vr(BB+2*b,2)}, v{vg8}, {sr(SB,4)}, s{sbo} offen offset:{32*b}")
    iE = None
    for gi, (s, q) in enumerate(groups):
        if (s, q) == (11, 0):
            assert not hq and not extra
            k(f"s_cmp_ge_u32 s{sw}, 2")
            k("s_cbranch_scc1 K3_sk")
        vm.wait(hidx[(s, q)])
        for b in range(5):
            d = ACC + 4*(5*q + b)
            cs = "0" if s == 0 else vr(d, 4)
            k(f"v_mfma_f32_16x16x32_bf16 {vr(d,4)}, {w2reg(5*s+b)}, {vr(HR + 16*(s % ED) + 4*q, 4)}, {cs}")
            cnt += 1
            if cnt % P['ERATE'] == 0 or (hq and hq[0][0] - s < 3):
                if hq:
                    s2, q2 = hq[0]
                    if s2 < ED or (s2 - ED, q2) in donegrp: ldH()
                elif extra: iE = vm(extra.pop(0))
            if wq and wq[0][0] <= cnt: k(wq.pop(0)[1])
        donegrp.add((s, q))
        if (s, q) == (11, 3): k.label("K3_sk")
        if s == 13 and q:
            for b in range(5): wq.append((cnt + 2 + 2*b, f"ds_write_b128 v{vq3+q-1}, {vr(ACC+4*(5*q+b),4)} offset:{1024*b}"))
    while wq: k(wq.pop(0)[1])
    if not P.get('CLK'): k.stamp_mid(10)
    F = HR + 60
    vm.wait(iE)
    for i in range(10):
        k(f"v_lshlrev_b32 v{F+2*i}, 16, v{HB+i}")
        k(f"v_and_b32 v{F+2*i+1}, 0xffff0000, v{HB+i}")
    k("s_waitcnt lgkmcnt(0)")
    k("s_barrier")
    k.stamp_mid(11)
    R = HR
    for i in range(15): k(f"ds_read_b128 {vr(R+4*i,4)}, v{vrr} offset:{1024*i}")
    for i in range(10): k(f"v_pk_add_f32 {vr(ACC+2*i,2)}, {vr(ACC+2*i,2)}, {vr(F+2*i,2)}")
    for i in range(10):
        k(f"v_lshlrev_b32 v{F+2*i}, 16, v{BB+i}")
        k(f"v_and_b32 v{F+2*i+1}, 0xffff0000, v{BB+i}")
    for i in range(10): k(f"v_pk_add_f32 {vr(ACC+2*i,2)}, {vr(ACC+2*i,2)}, {vr(F+2*i,2)}")
    for src in range(3):
        for b in range(5):
            if src < 2 and b == 0: k(f"s_waitcnt lgkmcnt({10 - 5*src})")
            if src == 2: k(f"s_waitcnt lgkmcnt({4 - b})")
            for q in range(2): k(f"v_pk_add_f32 {vr(ACC+4*b+2*q,2)}, {vr(ACC+4*b+2*q,2)}, {vr(R+20*src+4*b+2*q,2)}")
            if src == 2:
                for q in range(2): k(f"v_cvt_pk_bf16_f32 v{HB+2*b+q}, v{ACC+4*b+2*q}, v{ACC+4*b+2*q+1}")
                k(f"buffer_store_dwordx2 {vr(HB+2*b,2)}, v{vo}, {sr(SC,4)}, s{so} offen offset:{32*b}")
    k.stamp_end(sws)
    k.label("K3_done")
    k("s_endpgm")
    return k, 256, 256, 160 * 1024
```

```python
from g_base import *
NWG_W1, NWG_W2 = 140, 135
W1_IN_K1 = "W1K1=1" in sys.argv
def weight_job(k, filt_first, kind, ws_s):
    m = k.v.mark(); sm = k.s.mark()
    ncol, ng, argoff, off, nfr = (1728, 28, 32, OFF_W1, 16*140) if kind == 'w1' else (640, 10, 48, OFF_W2, 8*270)
    njob = 560 if kind == 'w1' else 540
    sp = k.s(2, 2); S1 = k.s(4, 4); S2 = k.s(4, 4); sj = k.s(); sw = k.s(); sF = k.s(); sks = k.s(); st = k.s(); so = k.s(); ssel0 = k.s(); ssel1 = k.s(); sg = k.s(); sh = k.s()
    k(f"s_load_dwordx2 {sr(sp,2)}, s[0:1], {argoff}")
    vw = k.v(); vl = k.v(); vfq = k.v(); vg = k.v(); va = k.v(); vb = k.v(); vo = k.v(); vt = k.v(); vu = k.v()
    k(f"v_lshrrev_b32 v{vw}, 6, v0")
    k(f"v_and_b32 v{vl}, 63, v0")
    k(f"v_readfirstlane_b32 s{sw}, v{vw}")
    k(f"v_and_b32 v{vfq}, 15, v{vl}")
    k(f"v_lshrrev_b32 v{vg}, 4, v{vl}")
    k(f"s_sub_u32 s{sj}, s2, {filt_first}")
    k(f"s_lshl_b32 s{sj}, s{sj}, 2")
    k(f"s_add_u32 s{sj}, s{sj}, s{sw}")
    mul = (65536 + ng - 1)//ng
    k(f"s_mul_i32 s{sks}, s{sj}, {mul}")
    k(f"s_lshr_b32 s{sks}, s{sks}, 16")
    for j in range(njob): assert (j * mul) >> 16 == j // ng
    k(f"s_mul_i32 s{st}, s{sks}, {ng}")
    k(f"s_sub_u32 s{sF}, s{sj}, s{st}")
    rowb = ncol * 2
    sd = k.s(4); sb = k.s(); sq = k.s()
    for e in range(4):
        k(f"s_lshl_b32 s{sb}, s{sF}, 2")
        if e: k(f"s_add_u32 s{sb}, s{sb}, {e}")
        if kind == 'w1':
            k(f"s_mul_i32 s{sq}, s{sb}, 43")
            k(f"s_lshr_b32 s{sq}, s{sq}, 8")
            k(f"s_mul_i32 s{sq}, s{sq}, 134")
            k(f"s_add_u32 s{sq}, s{sq}, s{sb}")
            k(f"s_mul_i32 s{sd+e}, s{sb}, 140")
            k(f"s_sub_u32 s{sd+e}, s{sd+e}, {96*140 - 6}")
            k(f"s_cmp_lt_u32 s{sb}, 96")
            k(f"s_cselect_b32 s{sd+e}, s{sq}, s{sd+e}")
        else:
            k(f"s_mul_i32 s{sq}, s{sb}, 52")
            k(f"s_lshr_b32 s{sq}, s{sq}, 8")
            k(f"s_mul_i32 s{sq}, s{sq}, 265")
            k(f"s_add_u32 s{sd+e}, s{sq}, s{sb}")
        k(f"s_lshl_b32 s{sd+e}, s{sd+e}, 10")
    k(f"s_mul_i32 s{so}, s{sks}, {(7 if kind == 'w1' else 5)*1024}")
    for e in range(4): k(f"s_add_u32 s{sd+e}, s{sd+e}, s{so}")
    if kind == 'w1':
        k(f"s_cmp_eq_u32 s{sF}, 27")
        k(f"s_cselect_b32 s{sF}, 24, s{sF}")
        k(f"s_mov_b32 s{sg}, {8*rowb}")
        k(f"s_mov_b32 s{sh}, {4*rowb}")
    else:
        k(f"s_cmp_ge_u32 s{sks}, 48")
        k(f"s_movk_i32 s{sg}, {4*rowb}")
        k(f"s_movk_i32 s{sh}, {16*rowb}")
        k(f"s_cselect_b32 s{sh}, s{sg}, s{sh}")
        k(f"s_cselect_b32 s{sg}, {8*rowb}, s{sg}")
    k(f"v_lshrrev_b32 v{vt}, 2, v{vfq}")
    k(f"v_lshlrev_b32 v{vu}, 12, v{vw}")
    k(f"v_lshl_add_u32 v{vt}, v{vt}, 10, v{vu}")
    k(f"v_lshl_add_u32 v{vt}, v{vg}, 8, v{vt}")
    k(f"v_and_b32 v{vo}, 3, v{vfq}")
    k(f"v_lshl_add_u32 v{vt}, v{vo}, 6, v{vt}")
    k(f"v_lshlrev_b32 v{vo}, 4, v{vl}")
    k(f"v_add_u32 v{vu}, v{vo}, v{vu}")
    k(f"v_mul_lo_u32 v{va}, v{vg}, s{sg}")
    k(f"v_lshl_add_u32 v{va}, v{vfq}, 3, v{va}")
    k(f"v_add_u32 v{vb}, s{sh}, v{va}")
    k(f"s_mul_i32 s{st}, s{sks}, {32*rowb}")
    k(f"s_lshl_b32 s{sF}, s{sF}, 7")
    k(f"s_add_u32 s{st}, s{st}, s{sF}")
    k(f"s_mov_b32 s{ssel0}, 0x05040100")
    k(f"s_mov_b32 s{ssel1}, 0x07060302")
    k("s_waitcnt lgkmcnt(0)")
    k.srd(S1, sp, 640*1728*2)
    k.srd(S2, ws_s, nfr*1024, off)
    X = k.v(16, 2); O = k.v(16, 4); vx = k.v(8)
    mod = {0: "", 1: " nt", 2: " sc1", 3: " sc0 sc1", 4: " sc1 nt", 5: " sc0 sc1 nt"}[arg("NTM", 1)] if arg("NT", 0) & 4 else ""
    for j in range(8):
        base = va if j < 4 else vb
        byte = (j & 3) * rowb
        if byte < 4096:
            k(f"buffer_load_dwordx2 {vr(X+2*j,2)}, v{base}, {sr(S1,4)}, s{st} offen offset:{byte}" + mod)
        else:
            k(f"v_add_u32 v{vx+j}, {byte}, v{base}")
            k(f"buffer_load_dwordx2 {vr(X+2*j,2)}, v{vx+j}, {sr(S1,4)}, s{st} offen" + mod)
    k("s_waitcnt vmcnt(0)")
    for e in range(4):
        for p in range(4):
            sel = ssel0 if (e & 1) == 0 else ssel1
            lo = X + 2*(2*p) + (e >> 1); hi = X + 2*(2*p+1) + (e >> 1)
            k(f"v_perm_b32 v{O+4*e+p}, v{hi}, v{lo}, s{sel}")
        k(f"ds_write_b128 v{vt}, {vr(O+4*e,4)} offset:{16*e}")
    k("s_waitcnt lgkmcnt(0)")
    for e in range(4): k(f"ds_read_b128 {vr(O+4*e,4)}, v{vu} offset:{1024*e}")
    for e in range(4):
        k(f"s_waitcnt lgkmcnt({3-e})")
        k(f"buffer_store_dwordx4 {vr(O+4*e,4)}, v{vo}, {sr(S2,4)}, s{sd+e} offen" + (" sc1" if arg("SC1", 3) & 2 else ""))
    k.v.reset(m); k.s.reset(sm)
```

```python
from g_base import *
from g_wj import *
def gen_k1():
    k = K("k1_kernel", 0)
    ROWB = 1280; OUTB = 8 * ROWB; REG = 2816
    sx = k.s(2, 2); sws = k.s(2, 2); swr = k.s(4, 4)
    k.stamp_start()
    k(f"s_load_dwordx2 {sr(sx,2)}, s[0:1], 0")
    k(f"s_load_dwordx2 {sr(sws,2)}, s[0:1], 80")
    k(f"s_load_dwordx4 {sr(swr,4)}, s[0:1], 8")
    TK1 = arg("TK1", 0); NT = arg("NT", 0); mod = {0: "", 1: " nt", 2: " sc1", 3: " sc0 sc1", 4: " sc1 nt", 5: " sc0 sc1 nt"}[arg("NTM", 1)]
    if TK1:
        k("s_load_dwordx2 s[52:53], s[0:1], 32")
        k("s_load_dwordx2 s[56:57], s[0:1], 48")
    def wtouch(first, nl, vt, vd):
        k(f"v_lshrrev_b32 v{vt}, 6, v0")
        k(f"s_sub_u32 s54, s2, {first}")
        k(f"s_lshl_b32 s54, s54, 2")
        k(f"v_add_u32 v{vt}, s54, v{vt}")
        k(f"v_mul_u32_u24 v{vt}, {nl}, v{vt}")
        k(f"v_and_b32 v{vd}, 63, v0")
        k(f"v_add_u32 v{vt}, v{vt}, v{vd}")
        k(f"v_lshlrev_b32 v{vt}, 7, v{vt}")
        for S in (52, 56):
            k(f"s_mov_b32 s{S+2}, {640*1728*2}")
            k(f"s_mov_b32 s{S+3}, 0x20000")
        k.exec_mask((1 << nl) - 1)
        k(f"buffer_load_dword v{vd}, v{vt}, s[52:55], 0 offen")
        k(f"buffer_load_dword v{vd}, v{vt}, s[56:59], 0 offen")
        k.exec_all()
    if "NOCT=1" not in sys.argv: code_touch(k, 0, 60, 160)
    k("s_cmp_ge_u32 s2, 256")
    k("s_cbranch_scc1 K1_side")
    SX = k.s(4, 4); ST = k.s(4, 4); sp2 = k.s(); sa = k.s(); st = k.s(); sxo = k.s(); sto = k.s(); sw = k.s(); s1m = k.s(); s2m = k.s()
    k(f"s_lshr_b32 s{st}, s2, 3")
    k(f"s_and_b32 s{sa}, s{st}, 3")
    k(f"s_lshr_b32 s{st}, s{st}, 2")
    k(f"s_and_b32 s{sp2}, s2, 7")
    k(f"s_lshl_b32 s{sp2}, s{sp2}, 2")
    k(f"s_and_b32 s{sxo}, s{st}, 3")
    k(f"s_add_u32 s{sp2}, s{sp2}, s{sxo}")
    k(f"s_lshr_b32 s{st}, s{st}, 2")
    k(f"s_lshl_b32 s{st}, s{st}, 2")
    k(f"s_add_u32 s{sa}, s{sa}, s{st}")
    k(f"s_lshl_b32 s{st}, s{sa}, 8")
    k(f"s_add_u32 s{st}, s{st}, s{sp2}")
    k(f"s_mul_i32 s{sxo}, s{st}, 1280")
    k(f"s_lshl_b32 s{sto}, s{sp2}, 8")
    k(f"s_lshl_b32 s{st}, s{sa}, 5")
    k(f"s_add_u32 s{sto}, s{sto}, s{st}")
    k(f"s_add_u32 s{s1m}, s{sto}, {1*MB}")
    k(f"s_add_u32 s{s2m}, s{sto}, {2*MB}")
    vi = k.v(); vl31 = k.v(); vxa = k.v(); vl = k.v(); vk1 = k.v(); vg = k.v(); vw = k.v()
    k(f"v_lshrrev_b32 v{vi}, 5, v0")
    k(f"v_and_b32 v{vl31}, 31, v0")
    k(f"v_mul_u32_u24 v{vxa}, 40960, v{vi}")
    k(f"v_lshl_add_u32 v{vxa}, v{vl31}, 3, v{vxa}")
    k(f"v_and_b32 v{vk1}, 15, v0")
    k(f"v_bfe_u32 v{vg}, v0, 4, 2")
    k(f"v_lshrrev_b32 v{vw}, 6, v0")
    X = k.v(10, 2)
    k("s_waitcnt lgkmcnt(0)")
    k.srd(SX, sx, 2048*1280)
    for it in range(5):
        k(f"buffer_load_dwordx2 {vr(X+2*it,2)}, v{vxa}, {sr(SX,4)}, s{sxo} offen offset:{256*it}" + (mod if NT & 1 else ""))
    k.srd(ST, sws, T1_BYTES, OFF_T1)
    BR = k.v(4, 4); BI = k.v(4, 4); TC = k.v(8, 2); TS = k.v(8, 2)
    C0 = k.v(4, 4); S0 = k.v(4, 4); nS0 = k.v(4, 4); C1 = k.v(4, 4); S1 = k.v(4, 4); nC1 = k.v(4, 4)
    ang = k.v(8, 2); tmp = k.v(4, 2); fk = k.v(); fg = k.v(); a0 = k.v()
    k(f"v_cvt_f32_u32 v{fk}, v{vk1}")
    k(f"v_cvt_f32_u32 v{fg}, v{vg}")
    k(f"v_mul_f32 v{fg}, 4.0, v{fg}")
    k(f"v_mul_f32 v{a0}, {fl(1/20)}, v{fk}")
    k(f"v_mul_f32 v{ang}, v{a0}, v{fg}")
    for j in range(1, 4): k(f"v_add_f32 v{ang+j}, v{ang+j-1}, v{a0}")
    k(f"v_mul_f32 v{ang+4}, {fl(16.0)}, v{a0}")
    for j in range(5, 8): k(f"v_add_f32 v{ang+j}, v{ang+j-1}, v{a0}")
    gen_cs8(k, ang, BR, BI, tmp, negS=True)
    k.exec_mask(0xFFFFFFFFFFFF0000)
    for r in (BR+2, BR+3, BI+2, BI+3): k(f"v_mov_b32 v{r}, 0")
    k.exec_all()
    k(f"v_mul_f32 v{a0}, {fl(1/640)}, v{fk}")
    k(f"v_mul_f32 v{ang}, v{a0}, v{fg}")
    for j in range(1, 4): k(f"v_add_f32 v{ang+j}, v{ang+j-1}, v{a0}")
    for j in range(4): k(f"v_fmamk_f32 v{ang+4+j}, v{a0}, {fl(16.0)}, v{ang+j}")
    for j in range(8):
        k(f"v_cos_f32 v{TC+j}, v{ang+j}")
        k(f"v_sin_f32 v{TS+j}, v{ang+j}")
    k(f"v_mul_f32 v{a0}, {fl(1/32)}, v{fk}")
    k(f"v_mul_f32 v{ang}, v{a0}, v{fg}")
    for j in range(1, 4): k(f"v_add_f32 v{ang+j}, v{ang+j-1}, v{a0}")
    for j in range(4): k(f"v_fmamk_f32 v{ang+4+j}, v{a0}, {fl(16.0)}, v{ang+j}")
    gen_cs8(k, ang, C0, S0, tmp)
    for p in range(4):
        k(f"v_xor_b32 v{nS0+p}, 0x80008000, v{S0+p}")
        k(f"v_xor_b32 v{C1+p}, 0x80000000, v{C0+p}")
        k(f"v_xor_b32 v{S1+p}, 0x80000000, v{S0+p}")
        k(f"v_xor_b32 v{nC1+p}, 0x00008000, v{C0+p}")
    vwr = k.v(); vt0 = k.v(); vt1 = k.v(); voA = k.v(); voB = k.v(); vrd = k.v(); vst = k.v(); t2 = k.v()
    k(f"v_mul_u32_u24 v{vwr}, {ROWB}, v{vi}")
    k(f"v_lshl_add_u32 v{vwr}, v{vl31}, 3, v{vwr}")
    k(f"v_mul_u32_u24 v{vt0}, {2*ROWB}, v{vw}")
    k(f"v_and_b32 v{t2}, 3, v0")
    k(f"v_lshl_add_u32 v{vt0}, v{t2}, 3, v{vt0}")
    k(f"v_bfe_u32 v{t2}, v0, 2, 2")
    k(f"v_lshl_add_u32 v{vt0}, v{t2}, 6, v{vt0}")
    k(f"v_add_u32 v{vt1}, 1024, v{vt0}")
    k(f"v_lshl_add_u32 v{vt0}, v{vg}, 8, v{vt0}")
    k(f"v_mul_u32_u24 v{voA}, {REG}, v{vw}")
    k(f"v_add_u32 v{voA}, {OUTB}, v{voA}")
    k(f"v_mad_u32_u24 v{t2}, v{vg}, 5, 0")
    k(f"v_lshl_add_u32 v{t2}, v{t2}, 4, v{vk1}")
    k(f"v_lshlrev_b32 v{t2}, 2, v{t2}")
    k(f"v_sub_u32 v{voB}, v{voA}, v{t2}")
    k(f"v_add_u32 v{voB}, {260*4}, v{voB}")
    k(f"v_add_u32 v{voA}, v{voA}, v{t2}")
    k(f"v_and_b32 v{t2}, 1, v0")
    k(f"v_lshrrev_b32 v{vrd}, 1, v0")
    k(f"v_lshlrev_b32 v{vst}, 13, v{vrd}")
    k(f"v_lshl_add_u32 v{vst}, v{t2}, 4, v{vst}")
    k(f"v_mul_u32_u24 v{t2}, 324, v{t2}")
    k(f"v_add_u32 v{vrd}, v{vrd}, v{t2}")
    k(f"v_lshlrev_b32 v{vrd}, 2, v{vrd}")
    k(f"v_add_u32 v{vrd}, {OUTB}, v{vrd}")
    P = k.v(); Q = k.v(); ones = k.v(); F = k.v(20, 4); sc = k.v(2, 2)
    k(f"v_mov_b32 v{ones}, 0x3f803f80")
    k(f"v_mov_b32 v{P}, 0")
    k(f"v_mov_b32 v{Q}, 0")
    k.stamp_mid(0)
    k("s_waitcnt vmcnt(0)")
    k.stamp_mid(1)
    if TK1 == 1: wtouch(0, 17, vxa, vl)
    for i in range(10):
        k(f"v_dot2c_f32_bf16 v{P}, v{X+i}, v{ones}")
        k(f"v_dot2c_f32_bf16 v{Q}, v{X+i}, v{X+i}")
    for i in range(2):
        k(f"v_lshlrev_b32 v{F+2*i}, 16, v{X+i}")
        k(f"v_and_b32 v{F+2*i+1}, 0xffff0000, v{X+i}")
    k(f"v_permlane16_swap_b32 v{P}, v{Q}")
    k(f"v_add_f32 v{P}, v{P}, v{Q}")
    nxt = 2
    for sh in (8, 4, 2, 1):
        for i in (nxt,):
            k(f"v_lshlrev_b32 v{F+2*i}, 16, v{X+i}")
            k(f"v_and_b32 v{F+2*i+1}, 0xffff0000, v{X+i}")
        nxt += 1
        k(f"v_add_f32_dpp v{P}, v{P}, v{P} row_ror:{sh} row_mask:0xf bank_mask:0xf")
    k(f"v_mov_b32 v{Q}, v{P}")
    for i in (6, 7):
        k(f"v_lshlrev_b32 v{F+2*i}, 16, v{X+i}")
        k(f"v_and_b32 v{F+2*i+1}, 0xffff0000, v{X+i}")
    k(f"v_permlane16_swap_b32 v{P}, v{Q}")
    for i in (8, 9):
        k(f"v_lshlrev_b32 v{F+2*i}, 16, v{X+i}")
        k(f"v_and_b32 v{F+2*i+1}, 0xffff0000, v{X+i}")
    ln_stats(k, P, Q, sc, sc+1, tmp)
    for i in range(10):
        k(f"v_pk_fma_f32 {vr(F+2*i,2)}, {vr(F+2*i,2)}, {vr(sc,2)}, {vr(sc,2)} op_sel:[0,0,1] op_sel_hi:[1,0,1]")
    for i in range(10):
        k(f"v_cvt_pk_bf16_f32 v{X+i}, v{F+2*i}, v{F+2*i+1}")
        if i & 1: k(f"ds_write_b64 v{vwr}, {vr(X+i-1,2)} offset:{256*(i>>1)}")
    A = F
    k.stamp_mid(2)
    k("s_waitcnt lgkmcnt(0)")
    for rho in range(2):
        for t in range(2):
            b = A + 8*rho + 4*t
            k(f"ds_read_b64_tr_b16 {vr(b,2)}, v{vt0} offset:{rho*ROWB + t*32}")
            k(f"ds_read_b64_tr_b16 {vr(b+2,2)}, v{vt1} offset:{rho*ROWB + t*32}")
    D1 = k.v(32, 4)
    for rho in range(2):
        k(f"s_waitcnt lgkmcnt({4 - 4*rho})")
        for t in range(2):
            mfma(k, D1 + 16*rho + 4*t, A + 8*rho + 4*t, BR)
            mfma(k, D1 + 16*rho + 8 + 4*t, A + 8*rho + 4*t, BI)
    E = k.v(16, 4); Bop = A; D2 = D1
    for rho in range(2):
        for h in range(4):
            cmul_pk(k, E + 2*h, E + 8 + 2*h, D1 + 16*rho + 2*h, D1 + 16*rho + 8 + 2*h, TC + 2*h, TS + 2*h, -1)
        for o in range(2):
            for p in range(4):
                k(f"v_cvt_pk_bf16_f32 v{Bop + 8*rho + 4*o + p}, v{E + 8*o + 2*p}, v{E + 8*o + 2*p + 1}")
        bR = Bop + 8*rho; bI = bR + 4; d = D2 + 16*rho
        mfma(k, d + 0, C0, bR); mfma(k, d + 4, C1, bR); mfma(k, d + 8, nS0, bR); mfma(k, d + 12, S1, bR)
        mfma(k, d + 0, S0, bI, d + 0); mfma(k, d + 4, S1, bI, d + 4); mfma(k, d + 8, C0, bI, d + 8); mfma(k, d + 12, nC1, bI, d + 12)
    O = E
    k.stamp_mid(3)
    for i in range(16): k(f"v_cvt_pk_bf16_f32 v{O+i}, v{D2+i}, v{D2+16+i}")
    k.exec_mask(0x07FF07FF07FF07FF)
    for o in range(2):
        for r in range(4): k(f"ds_write_b32 v{voA}, v{O + 8*o + r} offset:{o*1296 + r*80}")
    k.exec_mask(0x03FE03FE03FE03FF)
    for o in range(2): k(f"ds_write_b32 v{voB}, v{O + 8*o + 4} offset:{o*1296 + 3*80}")
    k.exec_mask(0x03FE03FE03FE03FE)
    for o in range(2):
        for r in range(1, 4): k(f"ds_write_b32 v{voB}, v{O + 8*o + 4 + r} offset:{o*1296 + (3-r)*80}")
    k.exec_all()
    k("s_waitcnt lgkmcnt(0)")
    k("s_barrier")
    Z = D2
    k.stamp_mid(4)
    for it in range(3):
        k(f"ds_read2st64_b32 {vr(Z+4*it,2)}, v{vrd} offset0:{2*it} offset1:{2*it+11}")
        k(f"ds_read2st64_b32 {vr(Z+4*it+2,2)}, v{vrd} offset0:{2*it+22} offset1:{2*it+33}")
    for it in range(3):
        k(f"s_waitcnt lgkmcnt({4 - 2*it})")
        k(f"buffer_store_dwordx4 {vr(Z+4*it,4)}, v{vst}, {sr(ST,4)}, s{[sto, s1m, s2m][it]} offen")
    k.stamp_mid(5)
    k.stamp_end(sws)
    k("s_endpgm")
    lds = OUTB + 4 * REG
    k.label("K1_side")
    k.v.reset(1); k.s.reset(swr + 4)
    SR = k.s(4, 4); SI = k.s(4, 4); SO = k.s(4, 4)
    sj = k.s(); sw = k.s(); skg = k.s(); ssg = k.s(); st = k.s(); su = k.s(); sb = k.s(4); so = k.s()
    k("s_cmp_ge_u32 s2, 448")
    k("s_cbranch_scc1 K1_side2")
    vw = k.v(); vkc = k.v(); va = k.v(); vo = k.v()
    k(f"v_lshrrev_b32 v{vw}, 6, v0")
    k(f"v_and_b32 v{vkc}, 63, v0")
    k(f"v_readfirstlane_b32 s{sw}, v{vw}")
    k(f"s_sub_u32 s{sj}, s2, 256")
    k(f"s_lshl_b32 s{sj}, s{sj}, 2")
    k(f"s_add_u32 s{sj}, s{sj}, s{sw}")
    k(f"s_lshr_b32 s{skg}, s{sj}, 7")
    k(f"s_and_b32 s{ssg}, s{sj}, 127")
    k(f"s_lshl_b32 s{skg}, s{skg}, 6")
    k(f"v_add_u32 v{vkc}, s{skg}, v{vkc}")
    k(f"v_lshlrev_b32 v{va}, 1, v{vkc}")
    vlw = k.v(); vlr = k.v(); vq = k.v()
    k(f"v_and_b32 v{vq}, 63, v0")
    k(f"v_lshlrev_b32 v{vlr}, 12, v{vw}")
    k(f"v_lshl_add_u32 v{vlw}, v{vq}, 6, v{vlr}")
    k(f"v_lshl_add_u32 v{vlr}, v{vq}, 4, v{vlr}")
    k(f"v_lshrrev_b32 v{vo}, 2, v{vq}")
    k(f"v_add_u32 v{vo}, s{skg}, v{vo}")
    k(f"v_lshlrev_b32 v{vo}, 13, v{vo}")
    k(f"v_and_b32 v{vq}, 3, v0")
    k(f"v_lshl_add_u32 v{vo}, v{vq}, 4, v{vo}")
    k(f"s_lshr_b32 s{st}, s{ssg}, 5")
    k(f"s_lshl_b32 s{st}, s{st}, 4")
    k(f"s_and_b32 s{su}, s{ssg}, 3")
    k(f"s_lshl_b32 s{su}, s{su}, 2")
    k(f"s_add_u32 s{st}, s{st}, s{su}")
    k(f"s_lshr_b32 s{su}, s{ssg}, 2")
    k(f"s_and_b32 s{su}, s{su}, 7")
    k(f"s_lshl_b32 s{su}, s{su}, 8")
    k(f"s_add_u32 s{st}, s{st}, s{su}")
    k(f"s_mul_i32 s{sb}, s{st}, 642")
    for r in range(1, 4): k(f"s_add_u32 s{sb+r}, s{sb+r-1}, {64*642}")
    k(f"s_lshl_b32 s{so}, s{ssg}, 6")
    k("s_waitcnt lgkmcnt(0)")
    k.srd(SR, swr, 2048*642); k.srd(SI, swr+2, 2048*642); k.srd(SO, sws, T1_BYTES, OFF_WT)
    R = k.v(16, 4); I = k.v(16, 4)
    TLB = arg("TLB", 0)
    if TLB:
        k("s_cmp_ge_u32 s2, 264")
        k("s_cbranch_scc1 K1_notlb")
        k("s_load_dwordx2 s[52:53], s[0:1], 64")
        k.srd(56, sws, 37*MB)
        k(f"v_lshlrev_b32 v100, {TLB}, v0")
        for i in range((37*MB >> TLB) // 256 + 1):
            k(f"s_mov_b32 s48, {i * 256 << TLB}")
            k(f"buffer_load_dword v101, v100, s[56:59], s48 offen")
        k("s_waitcnt lgkmcnt(0)")
        k(f"s_mov_b32 s54, {2048*1280}")
        k(f"s_mov_b32 s55, 0x20000")
        k(f"buffer_load_dword v101, v100, s[52:55], 0 offen")
        k.label("K1_notlb")
    k("s_cmp_lg_u32 s2, 256")
    k("s_cbranch_scc1 K1_nofl")
    SF = k.s(4, 4)
    k.srd(SF, sws, 4096, OFF_FL)
    for i in range(4): k(f"v_mov_b32 v{R+i}, 0")
    k(f"v_lshlrev_b32 v{I}, 4, v0")
    k(f"buffer_store_dwordx4 {vr(R,4)}, v{I}, {sr(SF,4)}, 0 offen")
    k("s_waitcnt vmcnt(0)")
    k.label("K1_nofl")
    for e in range(4):
        for r in range(4):
            k(f"buffer_load_ushort v{R+4*e+r}, v{va}, {sr(SR,4)}, s{sb+r} offen offset:{642*e}" + (mod if NT & 2 else ""))
            k(f"buffer_load_ushort v{I+4*e+r}, v{va}, {sr(SI,4)}, s{sb+r} offen offset:{642*e}" + (mod if NT & 2 else ""))
    if TK1 == 2: wtouch(256, 23, vkc, vq)
    for e in range(4):
        k(f"s_waitcnt vmcnt({24 - 8*e + (2 if TK1 == 2 else 0)})")
        for r in range(4): k(f"v_lshl_or_b32 v{R+4*e+r}, v{I+4*e+r}, 16, v{R+4*e+r}")
        k(f"ds_write_b128 v{vlw}, {vr(R+4*e,4)} offset:{16*e}")
    k("s_waitcnt lgkmcnt(0)")
    for e in range(4): k(f"ds_read_b128 {vr(R+4*e,4)}, v{vlr} offset:{1024*e}")
    for e in range(4):
        k(f"s_waitcnt lgkmcnt({3-e})")
        k(f"buffer_store_dwordx4 {vr(R+4*e,4)}, v{vo}, {sr(SO,4)}, s{so} offen" + (" sc1" if arg("SC1", 3) & 1 else ""))
        if e < 3: k(f"s_add_u32 s{so}, s{so}, {16*8192}")
    k.stamp_end(sws)
    k("s_endpgm")
    k.label("K1_side2")
    if W1_IN_K1:
        k.v.reset(1); k.s.reset(swr + 4)
        k(f"s_cmp_ge_u32 s2, {448 + NWG_W1}")
        k("s_cbranch_scc1 K1_done")
        weight_job(k, 448, 'w1', sws)
        k.stamp_end(sws)
        k.label("K1_done")
    k("s_endpgm")
    return k, 448 + (NWG_W1 if W1_IN_K1 else 0), 256, lds
```

```python
from g_base import *
from g_wj import *
def gen_k2():
    k = K("k2_kernel", 1)
    RS = 144
    sws = k.s(2, 2)
    k.stamp_start()
    k(f"s_load_dwordx2 {sr(sws,2)}, s[0:1], 80")
    if arg("SELF2", 0): code_touch(k, arg("SELF2F", 0), 60, 167, "k2_kernel", arg("SELF2", 0), "k3_kernel")
    k("s_cmp_ge_u32 s2, 321")
    k("s_cbranch_scc1 K2_side")
    S1 = k.s(4, 4); SW = k.s(4, 4); S2 = k.s(4, 4); skc = k.s(); st = k.s(); su = k.s(); so = k.s(); ssc = k.s()
    k(f"s_lshr_b32 s{st}, s2, 5")
    k(f"s_lshl_b32 s{st}, s{st}, 3")
    k(f"s_and_b32 s{su}, s2, 7")
    k(f"s_add_u32 s{st}, s{st}, s{su}")
    k(f"s_lshl_b32 s{st}, s{st}, 2")
    k(f"s_bfe_u32 s{su}, s2, 0x20003")
    k(f"s_add_u32 s{skc}, s{st}, s{su}")
    k(f"s_lshl_b32 s{so}, s{skc}, 13")
    vm = k.v(); vg = k.v(); vw = k.v(); vl = k.v(); vxa = k.v(); vwa = k.v(); t2 = k.v()
    k(f"v_and_b32 v{vm}, 15, v0")
    k(f"v_bfe_u32 v{vg}, v0, 4, 2")
    k(f"v_lshrrev_b32 v{vw}, 6, v0")
    XL = 64 * RS
    nt2 = " nt" if arg("NT2", 0) else ""
    sw = k.s()
    k(f"v_readfirstlane_b32 s{sw}, v{vw}")
    k(f"v_lshl_add_u32 v{vxa}, v{vw}, 3, v{vg}")
    k(f"v_and_b32 v{t2}, 15, v{vxa}")
    k(f"v_xor_b32 v{t2}, v{t2}, v{vm}")
    k(f"v_lshlrev_b32 v{t2}, 4, v{t2}")
    k(f"v_lshl_add_u32 v{vxa}, v{vxa}, 8, v{t2}")
    k(f"v_xor_b32 v{t2}, 64, v{vxa}")
    k(f"s_lshl_b32 s{sw}, s{sw}, 11")
    k(f"s_add_u32 m0, s{sw}, {XL}")
    k(f"v_and_b32 v{vl}, 63, v0")
    k(f"v_lshlrev_b32 v{vwa}, 4, v{vl}")
    k(f"v_lshl_add_u32 v{vwa}, v{vw}, 11, v{vwa}")
    X = k.v(32, 4)
    W = k.v(8, 4)
    k.stamp_mid(7)
    k("s_waitcnt lgkmcnt(0)")
    k.stamp_mid(6)
    k.srd(S1, sws, T1_BYTES, OFF_T1); k.srd(SW, sws, T1_BYTES, OFF_WT)
    k(f"buffer_load_dwordx4 v{vxa}, {sr(S1,4)}, s{so} offen" + nt2 + " lds")
    k(f"buffer_load_dwordx4 v{t2}, {sr(S1,4)}, s{so} offen offset:1024" + nt2 + " lds")
    for t in range(2):
        k(f"buffer_load_dwordx4 {vr(W+4*t,4)}, v{vwa}, {sr(SW,4)}, s{so} offen offset:{1024*t}" + nt2)
    k.srd(S2, sws, 256*T2_STRIDE, OFF_T2)
    sc = 2.0 / (2048 * 640)
    k(f"s_mov_b32 s{ssc}, {fl(sc)}")
    k(f"s_cmp_eq_u32 s{skc}, 0")
    k(f"s_cselect_b32 s{ssc}, {fl(sc/2)}, s{ssc}")
    k(f"s_cmp_eq_u32 s{skc}, 320")
    k(f"s_cselect_b32 s{ssc}, {fl(sc/2)}, s{ssc}")
    C64 = k.v(8, 4); S64 = k.v(8, 4); N64 = k.v(8, 4); C32 = k.v(8, 4); S32 = k.v(8, 4); N32 = k.v(8, 4)
    FC = k.v(8, 2); FS = k.v(8, 2); IC = k.v(8, 2); IS = k.v(8, 2)
    ang = k.v(8, 4); tmp = k.v(4, 2); fq = k.v(); fg = k.v(); a0 = k.v(); fm = k.v(); sg = k.v()
    ssel0 = k.s(); ssel1 = k.s()
    G = X
    k(f"v_cvt_f32_u32 v{a0}, v{vl}")
    k(f"v_mul_f32 v{a0}, {fl(1/64)}, v{a0}")
    k(f"v_cos_f32 v{tmp}, v{a0}")
    k(f"v_sin_f32 v{tmp+1}, v{a0}")
    k(f"v_lshl_add_u32 v{fq}, v{vw}, 4, v{vm}")
    k(f"v_lshlrev_b32 v{a0}, 2, v{fq}")
    k(f"v_mul_u32_u24 v{ang}, v{a0}, v{vg}")
    k(f"v_lshlrev_b32 v{ang}, 3, v{ang}")
    k(f"v_cvt_pk_bf16_f32 v{sg}, v{tmp}, v{tmp+1}")
    for j in range(1, 8): k(f"v_add_u32 v{ang+j}, v{ang+j-1}, v{a0}")
    for j in range(8): k(f"ds_bpermute_b32 v{G+j}, v{ang+j}, v{sg}")
    k(f"v_lshlrev_b32 v{a0}, 3, v{vm}")
    k(f"v_mul_u32_u24 v{G+16}, v{a0}, v{vg}")
    k(f"v_lshlrev_b32 v{G+16}, 2, v{G+16}")
    for j in range(1, 4): k(f"v_add_u32 v{G+16+j}, v{G+16+j-1}, v{a0}")
    for j in range(4): k(f"ds_bpermute_b32 v{G+8+j}, v{G+16+j}, v{sg}")
    k(f"s_mov_b32 s{ssel0}, 0x05040100")
    k(f"s_mov_b32 s{ssel1}, 0x07060302")
    k(f"v_cvt_f32_u32 v{fq}, v{fq}")
    k(f"v_cvt_f32_u32 v{fg}, v{vg}")
    k(f"v_cvt_f32_u32 v{fm}, v{vm}")
    k(f"v_mul_f32 v{fg}, 4.0, v{fg}")
    def rot(oC, oS, iC, iS, d):
        k(f"v_pk_mul_f32 {vr(oC,2)}, {vr(iC,2)}, {vr(d,2)} op_sel_hi:[1,0]")
        k(f"v_pk_mul_f32 {vr(oS,2)}, {vr(iS,2)}, {vr(d,2)} op_sel_hi:[1,0]")
        k(f"v_pk_fma_f32 {vr(oC,2)}, {vr(iS,2)}, {vr(d,2)}, {vr(oC,2)} op_sel:[0,1,0] neg_lo:[1,0,0] neg_hi:[1,0,0]")
        k(f"v_pk_fma_f32 {vr(oS,2)}, {vr(iC,2)}, {vr(d,2)}, {vr(oS,2)} op_sel:[0,1,0]")
    T = G + 20
    k(f"v_mul_f32 v{a0}, {fl(1/2048)}, v{fq}")
    k(f"v_mul_f32 v{T}, v{a0}, v{fg}")
    k(f"v_add_f32 v{T+1}, v{T}, v{a0}")
    k(f"v_add_f32 v{T+2}, v{a0}, v{a0}")
    k(f"v_mul_f32 v{T+3}, {fl(16.0)}, v{a0}")
    for j in range(2):
        k(f"v_cos_f32 v{FC+j}, v{T+j}")
        k(f"v_sin_f32 v{FS+j}, v{T+j}")
    for j in range(2):
        k(f"v_cos_f32 v{T+4+2*j}, v{T+2+j}")
        k(f"v_sin_f32 v{T+5+2*j}, v{T+2+j}")
    rot(FC+2, FS+2, FC, FS, T+4)
    rot(FC+4, FS+4, FC, FS, T+6)
    rot(FC+6, FS+6, FC+2, FS+2, T+6)
    k("s_waitcnt lgkmcnt(0)")
    k(f"v_and_b32 v{sg}, 1, v0")
    k(f"v_mul_u32_u24 v{sg}, 0x8000, v{sg}")
    k(f"v_lshl_or_b32 v{sg}, v{sg}, 16, v{sg}")
    for p in range(4):
        k(f"v_perm_b32 v{C64+p}, v{G+2*p+1}, v{G+2*p}, s{ssel0}")
        k(f"v_perm_b32 v{S64+p}, v{G+2*p+1}, v{G+2*p}, s{ssel1}")
    for p in range(4):
        k(f"v_xor_b32 v{C64+4+p}, v{sg}, v{C64+p}")
        k(f"v_xor_b32 v{S64+4+p}, v{sg}, v{S64+p}")
        k(f"v_xor_b32 v{N64+p}, 0x80008000, v{S64+p}")
        k(f"v_xor_b32 v{N64+4+p}, 0x80008000, v{S64+4+p}")
    for p in range(2):
        k(f"v_perm_b32 v{C32+p}, v{G+8+2*p+1}, v{G+8+2*p}, s{ssel0}")
        k(f"v_perm_b32 v{S32+p}, v{G+8+2*p+1}, v{G+8+2*p}, s{ssel1}")
    for p in range(2):
        k(f"v_xor_b32 v{C32+2+p}, v{sg}, v{C32+p}")
        k(f"v_xor_b32 v{S32+2+p}, v{sg}, v{S32+p}")
    for p in range(4):
        k(f"v_xor_b32 v{C32+4+p}, 0x80000000, v{C32+p}")
        k(f"v_xor_b32 v{S32+4+p}, 0x80000000, v{S32+p}")
        k(f"v_xor_b32 v{N32+p}, 0x80008000, v{S32+p}")
        k(f"v_xor_b32 v{N32+4+p}, 0x00008000, v{S32+p}")
    k(f"v_cvt_f32_u32 v{tmp}, v{vw}")
    k(f"v_fmamk_f32 v{tmp}, v{tmp}, {fl(16.0)}, v{fg}")
    k(f"v_mul_f32 v{a0}, {fl(1/2048)}, v{fm}")
    for tt in range(2):
        if tt: k(f"v_add_f32 v{a0}, {fl(16/2048)}, v{a0}")
        k(f"v_mul_f32 v{T}, v{a0}, v{tmp}")
        k(f"v_add_f32 v{T+1}, v{T}, v{a0}")
        k(f"v_add_f32 v{T+2}, v{a0}, v{a0}")
        for j in range(2):
            k(f"v_cos_f32 v{IC+4*tt+j}, v{T+j}")
            k(f"v_sin_f32 v{IS+4*tt+j}, v{T+j}")
        k(f"v_cos_f32 v{T+4}, v{T+2}")
        k(f"v_sin_f32 v{T+5}, v{T+2}")
        for j in range(2):
            k(f"v_mul_f32 v{IC+4*tt+j}, s{ssc}, v{IC+4*tt+j}")
            k(f"v_mul_f32 v{IS+4*tt+j}, s{ssc}, v{IS+4*tt+j}")
        rot(IC+4*tt+2, IS+4*tt+2, IC+4*tt, IS+4*tt, T+4)
    vlw = k.v(); vlr = k.v(); vst = k.v()
    k(f"v_mul_u32_u24 v{vlr}, {RS}, v{vm}")
    k(f"v_lshl_add_u32 v{vlw}, v{vg}, 3, v{vlr}")
    k(f"v_lshl_add_u32 v{vlw}, v{vw}, 5, v{vlw}")
    k(f"v_lshl_add_u32 v{vlr}, v{vg}, 4, v{vlr}")
    k(f"v_and_b32 v{vst}, 14, v0")
    k(f"v_lshl_add_u32 v{vst}, v{vw}, 4, v{vst}")
    k(f"v_lshl_add_u32 v{vst}, v{vst}, 2, v{vg}")
    k(f"v_mul_u32_u24 v{vst}, {T2_STRIDE}, v{vst}")
    k(f"v_and_b32 v{tmp}, 1, v0")
    k(f"v_lshl_add_u32 v{vst}, v{tmp}, 4, v{vst}")
    k(f"s_lshl_b32 s{st}, s{skc}, 5")
    k(f"s_add_u32 s{su}, s{st}, {4*T2_STRIDE}")
    RA = FC - 0 if False else k.v(4)
    k(f"v_lshlrev_b32 v{tmp}, 1, v{vg}")
    k(f"v_xor_b32 v{tmp}, v{tmp}, v{vm}")
    k(f"v_lshlrev_b32 v{tmp}, 4, v{tmp}")
    k(f"v_lshl_add_u32 v{RA}, v{vm}, 8, v{tmp}")
    k(f"v_xor_b32 v{RA+1}, 16, v{RA}")
    k(f"v_xor_b32 v{RA+2}, 128, v{RA}")
    k(f"v_xor_b32 v{RA+3}, 144, v{RA}")
    D = k.v(16, 4)
    E = X + 16; B = ang
    k.stamp_mid(0)
    k("s_waitcnt vmcnt(2)")
    k.stamp_mid(8)
    k("s_barrier")
    k.stamp_mid(9)
    for t in range(2):
        for kk in range(2):
            for o in range(2):
                k(f"ds_read_b128 {vr(X+16*o+8*t+4*kk,4)}, v{RA+2*kk+o} offset:{XL + 4096*t}")
    for t in range(2):
        for kk in range(2):
            k(f"s_waitcnt lgkmcnt({6 - 4*t - 2*kk})")
            xr = X + 8*t + 4*kk; xi = xr + 16
            mfma(k, D + 4*t, xr, C64 + 4*kk, None if kk == 0 else D + 4*t)
            mfma(k, D + 8 + 4*t, xr, N64 + 4*kk, None if kk == 0 else D + 8 + 4*t)
            mfma(k, D + 4*t, xi, S64 + 4*kk, D + 4*t)
            mfma(k, D + 8 + 4*t, xi, C64 + 4*kk, D + 8 + 4*t)
    k.stamp_mid(1)
    for h in range(4): cmul_pk(k, E + 2*h, E + 8 + 2*h, D + 2*h, D + 8 + 2*h, FC + 2*h, FS + 2*h, -1)
    for o in range(2):
        for p in range(4): k(f"v_cvt_pk_bf16_f32 v{B+4*o+p}, v{E+8*o+2*p}, v{E+8*o+2*p+1}")
    for T in range(2): mfma(k, D + 4*T, C32 + 4*T, B); mfma(k, D + 8 + 4*T, N32 + 4*T, B)
    for T in range(2): mfma(k, D + 4*T, S32 + 4*T, B + 4, D + 4*T); mfma(k, D + 8 + 4*T, C32 + 4*T, B + 4, D + 8 + 4*T)
    WR = X; WI = X + 8
    k.stamp_mid(2)
    k("s_waitcnt vmcnt(0)")
    for j in range(8):
        k(f"v_lshlrev_b32 v{WR+j}, 16, v{W+j}")
        k(f"v_and_b32 v{WI+j}, 0xffff0000, v{W+j}")
    for h in range(4): cmul_pk(k, E + 2*h, E + 8 + 2*h, D + 2*h, D + 8 + 2*h, WR + 2*h, WI + 2*h, +1)
    for o in range(2):
        for p in range(4): k(f"v_cvt_pk_bf16_f32 v{B+4*o+p}, v{E+8*o+2*p}, v{E+8*o+2*p+1}")
    for t in range(2): mfma(k, D + 4*t, B, C32 + 4*t); mfma(k, D + 8 + 4*t, B, S32 + 4*t)
    for t in range(2): mfma(k, D + 4*t, B + 4, N32 + 4*t, D + 4*t); mfma(k, D + 8 + 4*t, B + 4, C32 + 4*t, D + 8 + 4*t)
    for h in range(4): cmul_pk(k, E + 2*h, E + 8 + 2*h, D + 2*h, D + 8 + 2*h, IC + 2*h, IS + 2*h, +1)
    for o in range(2):
        for p in range(4): k(f"v_cvt_pk_bf16_f32 v{B+4*o+p}, v{E+8*o+2*p}, v{E+8*o+2*p+1}")
        for t in range(2): k(f"ds_write_b64 v{vlw}, {vr(B+4*o+2*t,2)} offset:{o*32*RS + t*16*RS}")
    k.stamp_mid(3)
    k("s_waitcnt lgkmcnt(0)")
    k("s_barrier")
    k.stamp_mid(4)
    for t in range(2):
        for kk in range(2):
            for o in range(2):
                k(f"ds_read_b128 {vr(X+16*o+8*t+4*kk,4)}, v{vlr} offset:{o*32*RS + t*16*RS + kk*64}")
    for t in range(2):
        for kk in range(2):
            k(f"s_waitcnt lgkmcnt({6 - 4*t - 2*kk})")
            xr = X + 8*t + 4*kk; xi = xr + 16
            mfma(k, D + 4*t, xr, C64 + 4*kk, None if kk == 0 else D + 4*t)
            mfma(k, D + 8 + 4*t, xr, S64 + 4*kk, None if kk == 0 else D + 8 + 4*t)
            mfma(k, D + 4*t, xi, N64 + 4*kk, D + 4*t)
            mfma(k, D + 8 + 4*t, xi, C64 + 4*kk, D + 8 + 4*t)
    k("s_mov_b32 vcc_lo, 0x55555555")
    k("s_mov_b32 vcc_hi, 0x55555555")
    for o in range(2):
        for p in range(4): k(f"v_cvt_pk_bf16_f32 v{B+4*o+p}, v{D+8*o+2*p}, v{D+8*o+2*p+1}")
    for p in range(4): k(f"v_cndmask_b32_dpp v{X+p}, v{B+4+p}, v{B+p}, vcc quad_perm:[1,0,3,2] row_mask:0xf bank_mask:0xf")
    k("s_not_b64 vcc, vcc")
    k(f"buffer_store_dwordx4 {vr(X,4)}, v{vst}, {sr(S2,4)}, s{st} offen")
    for p in range(4): k(f"v_cndmask_b32_dpp v{X+4+p}, v{B+p}, v{B+4+p}, vcc quad_perm:[1,0,3,2] row_mask:0xf bank_mask:0xf")
    k(f"buffer_store_dwordx4 {vr(X+4,4)}, v{vst}, {sr(S2,4)}, s{su} offen")
    k.stamp_mid(5)
    k.stamp_end(sws)
    k("s_endpgm")
    k.v.reset(1); k.s.reset(sws + 2)
    k.label("K2_side")
    if "NOCT=1" not in sys.argv: code_touch(k, 321, 60, 100, "k3_kernel")
    k(f"s_cmp_ge_u32 s2, {321 + NWG_W2}")
    k("s_cbranch_scc1 K2_side2")
    weight_job(k, 321, 'w2', sws)
    k.stamp_end(sws)
    k("s_endpgm")
    k.label("K2_side2")
    if not W1_IN_K1:
        k(f"s_cmp_ge_u32 s2, {321 + NWG_W2 + NWG_W1}")
        k("s_cbranch_scc1 K2_done")
        weight_job(k, 321 + NWG_W2, 'w1', sws)
        k.stamp_end(sws)
        k.label("K2_done")
    NZ = 0
    if W1_IN_K1 and arg("ZT", 0):
        r = arg("ZR", 3); m = (8960 + 256*r - 1) // (256*r); NZ = 8 * m
        f0 = 321 + NWG_W2
        k(f"s_cmp_ge_u32 s2, {f0 + NZ}")
        k("s_cbranch_scc1 K2_done")
        k(f"s_sub_u32 s8, s2, {f0}")
        k(f"s_lshr_b32 s8, s8, 3")
        k(f"s_mul_i32 s8, s8, {256*r*128}")
        k(f"s_and_b32 s9, s2, 1")
        k(f"s_mul_i32 s9, s9, {8960*128}")
        k(f"v_lshlrev_b32 v1, 7, v0")
        k(f"v_add_u32 v1, s8, v1")
        k("s_waitcnt lgkmcnt(0)")
        k(f"s_add_u32 s12, s{sws}, s9")
        k(f"s_addc_u32 s13, s{sws+1}, 0")
        k(f"s_add_u32 s12, s12, {OFF_W1}")
        k(f"s_addc_u32 s13, s13, 0")
        k(f"s_mov_b32 s14, {8960*128}")
        k(f"s_mov_b32 s15, 0x20000")
        for i in range(r):
            k(f"buffer_load_dword v2, v1, s[12:15], 0 offen")
            if i < r - 1: k(f"v_add_u32 v1, {256*128}, v1")
        k.stamp_end(sws)
        k.label("K2_done")
    k("s_endpgm")
    return k, 321 + NWG_W2 + (NZ if W1_IN_K1 else NWG_W1), 256, 64 * RS + 8192
```

```python
from g_base import *
P = dict(NPF1=0, NPF2=0, DMA_A=8, T1=1, TS1=0, TU0=28, TU1=42, TU2=56, S1A=0, S1B=0, S2A=14, KM=12, RD=12, D0=16, E0=16, ERATE=4, POLL_LIMIT=400000, TD=0, TE=0, DW=3, DW0=70, DWMAX=40, XNT=0, WE=0, HA=4, T2S=0, T2M=0, HU=-2, DW1=140, VA=1, VB=1, NP=1, PSL=0, SUBF=0, BARP=1, HD=0, NPF3=0, SELF=0)
for a in sys.argv:
    if '=' in a:
        n, v = a.split('='); P[n] = int(v)

class VM:
    def __init__(self, k): self.k = k; self.n = 0
    def __call__(self, line):
        self.k(line); self.n += 1; return self.n - 1
    def wait(self, idx, extra=""):
        c = min(63, self.n - idx - 1)
        self.k(f"s_waitcnt vmcnt({c})" + extra)

def interleave(k, start, groups):
    body = k.L[start:]; ok = []; full = True
    for i, l in enumerate(body):
        ok.append(full)
        t = l.strip()
        if t.startswith("s_mov_b32 exec"): full = False
        if t.startswith("s_mov_b64 exec, -1"): full = True
    pos = [i for i in range(len(body)) if ok[i]]
    out = []; n = len(groups); gi = 0
    step = len(pos) / (n + 0.5) if n else 1
    marks = {}
    for g in range(n): marks.setdefault(pos[int(g * step)], []).append(g)
    for i, l in enumerate(body):
        for g in marks.get(i, []): out += ["  " + x for x in groups[g]]
        out.append(l)
    k.L[start:] = out

def gen_k3():
    k = K("k3_kernel", 2); vm = VM(k)
    ZOFF = 322 * 32; STAT = 10368; STAGE = 10496; WB = 21504; BIAS = 20736; XB = WB + 25*1024
    sws = k.s(2, 2); sx = k.s(2, 2); sb1 = k.s(2, 2); sb2 = k.s(4, 4)
    k.stamp_start()
    k(f"s_load_dwordx2 {sr(sws,2)}, s[0:1], 80")
    k(f"s_load_dwordx2 {sr(sx,2)}, s[0:1], 0")
    k(f"s_load_dwordx2 {sr(sb1,2)}, s[0:1], 40")
    k(f"s_load_dwordx4 {sr(sb2,4)}, s[0:1], 56")
    k("s_cmp_ge_u32 s2, 256")
    k("s_cbranch_scc1 K3_done")
    SWS = k.s(4, 4); SA = k.s(4, 4); SB = k.s(4, 4); SC = k.s(4, 4)
    sG = k.s(); sj = k.s(); sblk = k.s(); st = k.s(); su = k.s(); sw = k.s(); stau = k.s(); stt = k.s(); sxo = k.s(); sm = k.s(); sw1 = k.s(); sw1m = k.s()
    sfl = k.s(); scnt = k.s(); sT = k.s(); sW2 = k.s(); sl0 = k.s(); sl1 = k.s(); so = k.s(); so2 = k.s(); sH = k.s(); sc5 = k.s(); sW2t = k.s()
    k(f"s_bfe_u32 s{sG}, s2, 0x20001")
    k(f"s_lshl_b32 s{sG}, s{sG}, 2")
    k(f"s_lshr_b32 s{st}, s2, 6")
    k(f"s_add_u32 s{sG}, s{sG}, s{st}")
    k(f"s_and_b32 s{su}, s2, 1")
    k(f"s_lshl_b32 s{st}, s{su}, 3")
    k(f"s_bfe_u32 s{sj}, s2, 0x30003")
    k(f"s_add_u32 s{sj}, s{sj}, s{st}")
    k(f"s_lshl_b32 s{st}, s{su}, 2")
    k(f"s_bfe_u32 s{sc5}, s2, 0x20003")
    k(f"s_add_u32 s{sc5}, s{sc5}, s{st}")
    k(f"s_lshl_b32 s{sblk}, s{sG}, 4")
    k(f"s_add_u32 s{sblk}, s{sblk}, s{sj}")
    vl16 = k.v(); vl16b = k.v(); vm_ = k.v(); vg = k.v(); vF = k.v(); vP = k.v(); vtc = k.v(); PRG = [vP] + [k.v() for _ in range(P['NP'] - 1)]; emark = k.v.mark(); BI = k.v(16, 4); A139 = k.v(4, 4)
    vmark = k.v.mark()
    vw = k.v(); vda = k.v(); vxa = k.v(); vxl = k.v(); t2 = k.v(); t3 = k.v(); vb = k.v()
    s1280 = k.s()
    k(f"s_movk_i32 s{s1280}, 1280")
    k(f"v_lshrrev_b32 v{vw}, 6, v0")
    k(f"v_lshlrev_b32 v{vda}, 4, v0")
    k(f"v_readfirstlane_b32 s{sw}, v{vw}")
    k(f"v_and_b32 v{vm_}, 15, v0")
    k(f"v_bfe_u32 v{vg}, v0, 4, 2")
    k(f"v_and_b32 v{vl16}, 0x3f0, v{vda}")
    k(f"s_and_b32 s{stau}, s{sw}, 1")
    k(f"s_lshr_b32 s{stt}, s{sw}, 1")
    k(f"s_lshr_b32 s{st}, s{sblk}, 2")
    k(f"s_lshl_b32 s{st}, s{st}, 5")
    k(f"s_and_b32 s{su}, s{sblk}, 3")
    k(f"s_lshl_b32 s{su}, s{su}, 2")
    k(f"s_add_u32 s{st}, s{st}, s{su}")
    k(f"s_mul_i32 s{sxo}, s{st}, 1280")
    k(f"v_lshlrev_b32 v{t2}, 4, v{vg}")
    k(f"v_xor_b32 v{vxa}, v{t2}, v{vda}")
    k(f"s_cmp_ge_u32 s{sw}, 1")
    k(f"s_cselect_b32 s{so}, {12*1280}, 0")
    k(f"s_add_u32 s{so}, s{so}, s{sxo}")
    k(f"s_add_u32 s{so}, s{so}, 4096")
    k(f"s_add_u32 s{so2}, s{sxo}, {8192 + 12*1280}")
    k(f"v_and_b32 v{t3}, 3, v0")
    k(f"s_sub_u32 s{su}, s{sj}, 12")
    k(f"s_cmp_ge_u32 s{sj}, 12")
    k(f"s_cselect_b32 s{su}, s{su}, s{sj}")
    k(f"s_lshl_b32 s{su}, s{su}, 5")
    k(f"s_add_u32 s{su}, s{su}, {96*32 - 192}")
    k(f"s_mul_i32 s{st}, s{sj}, 192")
    k(f"v_lshrrev_b32 v{vb}, 2, v{vl16}")
    k(f"v_mov_b32 v{vxl}, s{su}")
    k(f"v_mov_b32 v{t2}, s{st}")
    k(f"v_cmp_eq_u32 vcc, 3, v{vg}")
    k(f"v_cndmask_b32 v{t2}, v{t2}, v{vxl}, vcc")
    k(f"v_add_u32 v{vb}, v{vb}, v{t2}")
    k(f"s_mul_i32 s{st}, s{sblk}, {T2_STRIDE}")
    k(f"s_lshl_b32 s{sm}, s{sw}, 10")
    k(f"s_mul_i32 s{sw1m}, s{sw}, 35")
    k(f"s_min_u32 s{sw1m}, s{sw1m}, 104")
    k(f"s_lshl_b32 s{sw1m}, s{sw1m}, 10")
    k(f"s_mul_i32 s{sw1}, s{sj}, {140*1024}")
    k(f"s_add_u32 s{sw1}, s{sw1}, {OFF_W1}")
    k(f"s_add_u32 s{sT}, s{sw1}, {139*1024}")
    k(f"s_add_u32 s{sw1}, s{sw1}, s{sw1m}")
    k(f"s_add_u32 s{sw1m}, s{sw1m}, {WB}")
    XM = k.v(10, 2)
    k("s_waitcnt lgkmcnt(0)")
    k(f"s_add_u32 s{SA}, s{sws}, s{st}")
    k(f"s_addc_u32 s{SA+1}, s{sws+1}, 0")
    k(f"s_add_u32 s{SA}, s{SA}, {OFF_T2}")
    k(f"s_addc_u32 s{SA+1}, s{SA+1}, 0")
    k(f"s_mov_b32 s{SA+2}, {321*32}")
    k(f"s_mov_b32 s{SA+3}, 0x20000")
    for it in range(3):
        k(f"s_add_u32 m0, s{sm}, {4096*it}")
        k(f"s_movk_i32 s{su}, {4096*it}")
        iT2 = vm(f"buffer_load_dwordx4 v{vda}, {sr(SA,4)}, s{su} offen" + (" nt" if P['XNT'] & 2 else "") + " lds")
    k.srd(SB, sx, 2048*1280)
    xnt = " nt" if P['XNT'] & 1 else ""
    k(f"s_add_u32 m0, s{sm}, {XB}")
    k("s_nop 0")
    vm(f"buffer_load_dwordx4 v{vxa}, {sr(SB,4)}, s{sxo} offen{xnt} lds")
    k(f"s_add_u32 m0, s{sm}, {XB + 4096}")
    k(f"s_cmp_ge_u32 s{sw}, 2")
    iX = vm(f"buffer_load_dwordx4 v{vxa}, {sr(SB,4)}, s{so} offen{xnt} lds")
    k("s_cbranch_scc1 K3_nx")
    k(f"s_add_u32 m0, s{sm}, {XB + 8192}")
    k("s_nop 0")
    k(f"buffer_load_dwordx4 v{vxa}, {sr(SB,4)}, s{so2} offen{xnt} lds")
    k.label("K3_nx")
    k.srd(SWS, sws, 40*MB); k.srd(SC, sb1, 1728*2)
    k(f"s_movk_i32 m0, {BIAS}")
    k("s_nop 0")
    vm(f"buffer_load_dword v{vb}, {sr(SC,4)}, 0 offen" + (" nt" if P['XNT'] & 4 else "") + " lds")
    vm(f"buffer_load_dwordx4 {vr(A139,4)}, v{vl16}, {sr(SWS,4)}, s{sT} offen")
    if P['SELF']:
        code_touch(k, 0, 60, vP, "k3_kernel", P['SELF']); vm.n += 1
    k(f"s_lshr_b32 s{st}, s2, 6")
    k(f"s_lshl_b32 s{st}, s{st}, 2")
    k(f"s_add_u32 s{scnt}, s{st}, s{sw}")
    k(f"s_mul_i32 s{st}, s{scnt}, {70*128}")
    k(f"s_mul_i32 s{su}, s{sj}, {140*1024}")
    k(f"s_add_u32 s{st}, s{st}, s{su}")
    k(f"s_add_u32 s{sH}, s{st}, {OFF_W1}")
    k(f"v_lshlrev_b32 v{vtc}, 3, v{vl16}")
    if P['T1']:
        k.exec_mask((1 << 35) - 1)
        for i in range(2):
            vm(f"buffer_load_dword v{vP}, v{vtc}, {sr(SWS,4)}, s{sH} offen")
            if i < 1: k(f"s_add_u32 s{sH}, s{sH}, {35*128}")
        k.exec_all()
    k(f"s_bfe_u32 s{st}, s2, 0x10005")
    k(f"s_lshl_b32 s{st}, s{st}, 4")
    k(f"s_add_u32 s{st}, s{st}, s{scnt}")
    k(f"s_mul_i32 s{st}, s{st}, {23*128}")
    k(f"s_mul_i32 s{su}, s{sc5}, {270*1024}")
    k(f"s_add_u32 s{st}, s{st}, s{su}")
    k(f"s_add_u32 s{sH}, s{st}, {OFF_W2}")
    def touch2():
        k.exec_mask((1 << 23) - 1)
        vm(f"buffer_load_dword v{vP}, v{vtc}, {sr(SWS,4)}, s{sH} offen")
        k.exec_all()
        k(f"s_add_u32 s{sH}, s{sH}, {90*1024}")
    ntouch = [0]
    def touchN(n):
        for _ in range(n):
            if ntouch[0] < 3: touch2(); ntouch[0] += 1
    touchN(P['T2S'])
    dma = []
    for i in range(35):
        g = []
        if i % 4 == 0:
            g.append(f"s_add_u32 m0, s{sw1m}, {1024*i}")
            if i: g.append(f"s_add_u32 s{sw1}, s{sw1}, 4096")
        g.append(f"buffer_load_dwordx4 v{vl16}, {sr(SWS,4)}, s{sw1} offen offset:{1024*(i%4)} lds")
        dma.append(g)
    def pf(start, n):
        gs = dma[:n]; del dma[:n]
        interleave(k, start, gs); vm.n += len(gs)
    c0 = len(k.L)
    MC = k.v(4, 4); MS = k.v(4, 4); MsC = k.v(4, 4); MnsS = k.v(4, 4)
    TC = k.v(6, 2)
    BM = k.v(4, 4); BL = k.v(16, 4)
    ang = k.v(8, 2); tmp = k.v(4, 2); fn = k.v(); fg = k.v(); a0 = k.v(); fm = k.v(); sg = k.v()
    k(f"v_cvt_f32_u32 v{fm}, v{vm_}")
    k(f"v_cvt_f32_u32 v{fg}, v{vg}")
    k(f"s_lshl_b32 s{su}, s{stt}, 4")
    k(f"v_cvt_f32_u32 v{fn}, s{su}")
    k(f"v_add_f32 v{fn}, v{fn}, v{fm}")
    k(f"v_mul_f32 v{a0}, {fl(1/32)}, v{fn}")
    k(f"v_mul_f32 v{ang}, {fl(8.0)}, v{fg}")
    k(f"v_mul_f32 v{ang}, v{ang}, v{a0}")
    for j in range(1, 8): k(f"v_add_f32 v{ang+j}, v{ang+j-1}, v{a0}")
    gen_cs8(k, ang, MC, MS, tmp)
    k(f"v_bfe_u32 v{sg}, v0, 5, 1")
    k(f"v_mul_u32_u24 v{sg}, 0x8000, v{sg}")
    k(f"v_lshl_or_b32 v{sg}, v{sg}, 16, v{sg}")
    k(f"v_xor_b32 v{t2}, 0x80008000, v{sg}")
    for p in range(4):
        k(f"v_xor_b32 v{MsC+p}, v{sg}, v{MC+p}")
        k(f"v_xor_b32 v{MnsS+p}, v{t2}, v{MS+p}")
    k(f"v_mul_f32 v{a0}, {fl(1/640)}, v{fn}")
    k(f"v_mul_f32 v{ang}, v{a0}, v{fg}")
    for T in range(1, 3): k(f"v_fmamk_f32 v{ang+T}, v{a0}, {fl(4.0*T)}, v{ang}")
    for T in range(3):
        k(f"v_cos_f32 v{TC+2*T}, v{ang+T}")
        k(f"v_sin_f32 v{TC+2*T+1}, v{ang+T}")
    for which in range(2):
        if which == 0: k(f"v_mul_f32 v{a0}, {fl(1/20)}, v{fm}")
        else:
            k(f"v_cvt_f32_u32 v{a0}, v{t3}")
            k(f"v_add_f32 v{a0}, {fl(16.0)}, v{a0}")
            k(f"v_mul_f32 v{a0}, {fl(1/20)}, v{a0}")
        k(f"v_mul_f32 v{ang}, v{a0}, v{fg}")
        for T in range(1, 3): k(f"v_fmamk_f32 v{ang+T}, v{a0}, {fl(4.0*T)}, v{ang}")
        dst = BM if which == 0 else ang + 4
        for T in range(3):
            k(f"v_cos_f32 v{tmp}, v{ang+T}")
            k(f"v_sin_f32_e64 v{tmp+1}, -v{ang+T}")
            k(f"v_cvt_pk_bf16_f32 v{dst+T}, v{tmp}, v{tmp+1}")
    k(f"v_mov_b32 v{BM+3}, 0")
    for i in range(16): k(f"v_mov_b32 v{BL+i}, 0")
    k.exec_mask(0xFFFF000000000000)
    k(f"v_mov_b32 v{BM+2}, 0")
    k(f"v_mov_b32 v{ang+6}, 0")
    for i in range(4):
        k.exec_mask(0x000F000F000F000F << (4*i))
        for T in range(3): k(f"v_mov_b32 v{BL+4*i+T}, v{ang+4+T}")
    k.exec_all()
    AD = k.v(6); vsn = k.v()
    k(f"v_bfe_u32 v{t2}, v0, 2, 2")
    k(f"v_lshl_add_u32 v{t2}, v{vg}, 3, v{t2}")
    k(f"v_mad_u32_u24 v{t2}, v{t2}, 20, v{t3}")
    k(f"v_lshlrev_b32 v{t2}, 5, v{t2}")
    k(f"s_lshl_b32 s{su}, s{stau}, 3")
    k.exec_mask(0x00000000FFFFFFFF)
    k(f"v_add_u32 v{t2}, s{su}, v{t2}")
    for T in range(3):
        for jh in range(2): k(f"v_add_u32 v{AD+2*T+jh}, {(4*T + 80*jh)*32}, v{t2}")
    k.exec_mask(0xFFFFFFFF00000000)
    k(f"v_sub_u32 v{t2}, s{su}, v{t2}")
    for T in range(3):
        for jh in range(2): k(f"v_add_u32 v{AD+2*T+jh}, {(640 - 4*T - 80*jh)*32}, v{t2}")
    k.exec_mask(0x1111111000000000); k(f"v_mov_b32 v{AD+0}, {ZOFF}")
    k.exec_mask(0x1111111100000000); k(f"v_mov_b32 v{AD+1}, {ZOFF}")
    k.exec_mask(0x4444444400000000); k(f"v_mov_b32 v{AD+4}, {ZOFF}"); k(f"v_mov_b32 v{AD+5}, {ZOFF}")
    k.exec_all()
    SGA = k.v(4); sgl = k.v(); sr0 = k.v(); sr1 = k.v(); vsw = k.v(); vsr = k.v(); vsl = k.v()
    k(f"v_and_b32 v{t2}, 1, v{vg}")
    k(f"v_lshrrev_b32 v{vsn}, 1, v{vg}")
    k(f"s_lshl_b32 s{st}, s{stt}, 8")
    k(f"s_lshl_b32 s{su}, s{stau}, 6")
    k(f"s_add_u32 s{st}, s{st}, s{su}")
    k(f"v_lshl_add_u32 v{sgl}, v{vsn}, 7, s{st}")
    k(f"v_lshlrev_b32 v{SGA+1}, 4, v{vm_}")
    k(f"v_xor_b32 v{SGA}, v{sgl}, v{SGA+1}")
    k(f"v_lshl_add_u32 v{SGA}, v{vm_}, 9, v{SGA}")
    k(f"v_lshl_add_u32 v{SGA}, v{t2}, 3, v{SGA}")
    for i in range(1, 4): k(f"v_xor_b32 v{SGA+i}, {16*i}, v{SGA}")
    k(f"v_lshrrev_b32 v{sr0}, 2, v{vm_}")
    k(f"v_xor_b32 v{sr1}, v{sr0}, v{t3}")
    k(f"v_lshl_add_u32 v{sgl}, v{sr1}, 4, v{sgl}")
    k(f"v_lshl_add_u32 v{sgl}, v{t3}, 9, v{sgl}")
    k(f"v_lshl_add_u32 v{sgl}, v{t2}, 3, v{sgl}")
    k(f"v_add_u32 v{sgl}, {16*512}, v{sgl}")
    k(f"v_lshlrev_b32 v{vsw}, 4, v{t2}")
    k(f"v_lshl_add_u32 v{vsw}, v{vsn}, 3, v{vsw}")
    k(f"s_add_u32 s{st}, s{su}, {STAT}")
    k(f"v_mov_b32 v{vsr}, s{st}")
    k(f"s_lshl_b32 s{su}, s{stt}, 5")
    k(f"s_add_u32 s{su}, s{su}, s{st}")
    k(f"v_add_u32 v{vsw}, s{su}, v{vsw}")
    k(f"v_lshl_add_u32 v{vsl}, v{sr0}, 3, v{vsr}")
    k(f"v_lshrrev_b32 v{sr0}, 5, v0")
    k(f"v_lshlrev_b32 v{sr0}, 4, v{sr0}")
    k(f"v_xor_b32 v{sr0}, v{sr0}, v{vda}")
    k(f"v_xor_b32 v{sr1}, 128, v{sr0}")
    k(f"v_add_u32 v{vl16b}, 4096, v{vl16}")
    XA = k.v(4)
    k(f"s_lshl_b32 s{st}, s{stt}, 1")
    k(f"v_add_u32 v{vsn}, s{st}, v{vsn}")
    k(f"s_mul_i32 s{st}, s{stau}, 5120")
    k(f"s_add_u32 s{st}, s{st}, {XB}")
    assert P['NPF1'] + P['NPF2'] <= 25
    k(f"v_lshl_add_u32 v{t2}, v{t2}, 3, s{st}")
    k(f"v_lshl_add_u32 v{vxa}, v{vm_}, 6, v{t2}")
    k(f"v_lshrrev_b32 v{vxl}, 2, v{vm_}")
    for i in range(4):
        k(f"v_add_u32 v{XA+i}, {i}, v{vxl}")
        k(f"v_and_b32 v{XA+i}, 3, v{XA+i}")
        k(f"v_xor_b32 v{XA+i}, v{XA+i}, v{vsn}")
        k(f"v_lshl_add_u32 v{XA+i}, v{XA+i}, 4, v{vxa}")
    k(f"v_xor_b32 v{vb}, v{vxl}, v{vsn}")
    k(f"v_lshl_add_u32 v{t2}, v{vb}, 4, v{t2}")
    k(f"v_mad_u32_u24 v{t2}, v{vxl}, s{s1280}, v{t2}")
    k(f"v_lshl_add_u32 v{vxl}, v{t3}, 6, v{t2}")
    pf(c0, P['NPF1'])
    k(f"s_mul_i32 s{st}, s{sblk}, 10240")
    for S, off in ((SA, OFF_H), (SC, OFF_LN2)):
        k(f"s_add_u32 s{su}, s{st}, {off}")
        k(f"s_add_u32 s{S}, s{sws}, s{su}")
        k(f"s_addc_u32 s{S+1}, s{sws+1}, 0")
        k(f"s_mov_b32 s{S+2}, 10240")
    A = k.v(24, 4)
    if not P.get('CLK') and not P.get('ST2'): k.stamp_mid(0)
    vm.wait(iX)
    k("s_barrier")
    if not P.get('CLK'): k.stamp_mid(1)
    touchN(P['T2M'])
    c1 = len(k.L)
    for T in range(3):
        for o in range(2):
            for jh in range(2): k(f"ds_read_b64_tr_b16 {vr(A+8*T+4*o+2*jh,2)}, v{AD+2*T+jh} offset:{16*o}")
    for i in range(4): k(f"ds_read_b64 {vr(XM+2*i,2)}, v{XA+i} offset:{1280*i}")
    k(f"ds_read_b64 {vr(XM+8,2)}, v{vxl} offset:1024")
    DA = k.v(24, 4)
    for T in range(3):
        k(f"s_waitcnt lgkmcnt({13 - 4*T})")
        mfma(k, DA + 8*T, A + 8*T, MC); mfma(k, DA + 8*T + 4, A + 8*T, MS)
        mfma(k, DA + 8*T, A + 8*T + 4, MnsS, DA + 8*T); mfma(k, DA + 8*T + 4, A + 8*T + 4, MsC, DA + 8*T + 4)
    E = A; OP = k.v(16, 4)
    for i in range(4): k(f"v_mov_b32 v{OP+4*i+3}, 0")
    for T in range(3):
        for h in range(2):
            R = DA + 8*T + 2*h; I = R + 4; oR = E + 8*T + 2*h; oI = oR + 4; cs = TC + 2*T
            k(f"v_pk_mul_f32 {vr(oR,2)}, {vr(R,2)}, {vr(cs,2)} op_sel_hi:[1,0]")
            k(f"v_pk_mul_f32 {vr(oI,2)}, {vr(I,2)}, {vr(cs,2)} op_sel_hi:[1,0]")
            k(f"v_pk_fma_f32 {vr(oR,2)}, {vr(I,2)}, {vr(cs,2)}, {vr(oR,2)} op_sel:[0,1,0] neg_lo:[1,0,0] neg_hi:[1,0,0]")
            k(f"v_pk_fma_f32 {vr(oI,2)}, {vr(R,2)}, {vr(cs,2)}, {vr(oI,2)} op_sel:[0,1,0]")
        for i in range(4): k(f"v_cvt_pk_bf16_f32 v{OP+4*i+T}, v{E+8*T+i}, v{E+8*T+4+i}")
    Y = DA
    for i in range(4):
        mfma(k, Y + 4*i, OP + 4*i, BM)
    for i in range(4):
        mfma(k, Y + 16, OP + 4*i, BL + 4*i, None if i == 0 else Y + 16)
    pf(c1, P['NPF2'])
    XF = A
    k("s_waitcnt lgkmcnt(0)")
    for i in range(10):
        k(f"v_lshlrev_b32 v{XF+2*i}, 16, v{XM+i}")
        k(f"v_and_b32 v{XF+2*i+1}, 0xffff0000, v{XM+i}")
    HP = XM
    for i in range(10):
        k(f"v_pk_add_f32 {vr(XF+2*i,2)}, {vr(XF+2*i,2)}, {vr(Y+2*i,2)}")
    for i in range(10): k(f"v_cvt_pk_bf16_f32 v{HP+i}, v{XF+2*i}, v{XF+2*i+1}")
    ones = tmp; ST = k.v(10, 2)
    k(f"v_mov_b32 v{ones}, 0x3f803f80")
    for i in range(5):
        k(f"v_dot2_f32_bf16 v{ST+2*i}, v{HP+2*i}, v{ones}, 0")
        k(f"v_dot2_f32_bf16 v{ST+2*i+1}, v{HP+2*i}, v{HP+2*i}, 0")
    for i in range(5):
        k(f"v_dot2_f32_bf16 v{ST+2*i}, v{HP+2*i+1}, v{ones}, v{ST+2*i}")
        k(f"v_dot2_f32_bf16 v{ST+2*i+1}, v{HP+2*i+1}, v{HP+2*i+1}, v{ST+2*i+1}")
    for i in range(5): k(f"ds_write_b64 v{SGA+i if i < 4 else sgl}, {vr(HP+2*i,2)} offset:{STAGE}")
    for i in range(4):
        k.exec_mask(0x000F000F000F000F << (4*i))
        k(f"v_pk_add_f32 {vr(ST+2*i,2)}, {vr(ST+2*i,2)}, {vr(ST+8,2)}")
    k.exec_all()
    for q in range(2):
        k(f"v_permlane32_swap_b32 v{ST+q}, v{ST+2+q}")
        k(f"v_permlane32_swap_b32 v{ST+4+q}, v{ST+6+q}")
    k(f"v_pk_add_f32 {vr(ST,2)}, {vr(ST,2)}, {vr(ST+2,2)}")
    k(f"v_pk_add_f32 {vr(ST+4,2)}, {vr(ST+4,2)}, {vr(ST+6,2)}")
    for q in range(2): k(f"v_permlane16_swap_b32 v{ST+q}, v{ST+4+q}")
    k(f"v_pk_add_f32 {vr(ST,2)}, {vr(ST,2)}, {vr(ST+4,2)}")
    un = 0
    for sh in (8, 4, 2, 1):
        for q in range(2): k(f"v_add_f32_dpp v{ST+q}, v{ST+q}, v{ST+q} row_ror:{sh} row_mask:0xf bank_mask:0xf")
        for i in (un,):
            k(f"v_lshlrev_b32 v{XF+2*i}, 16, v{HP+i}")
            k(f"v_and_b32 v{XF+2*i+1}, 0xffff0000, v{HP+i}")
        un += 1
    k.exec_mask(0x0001000100010001)
    k(f"ds_write_b64 v{vsw}, {vr(ST,2)}")
    k.exec_all()
    for i in range(un, 10):
        k(f"v_lshlrev_b32 v{XF+2*i}, 16, v{HP+i}")
        k(f"v_and_b32 v{XF+2*i+1}, 0xffff0000, v{HP+i}")
    if not P.get('CLK'): k.stamp_mid(2)
    k("s_waitcnt lgkmcnt(0)")
    k("s_barrier")
    G = k.v(20, 4); Z = OP
    for t in range(2):
        for hh in range(2): k(f"ds_read_b128 {vr(G+8*t+4*hh,4)}, v{vsr} offset:{32*t+16*hh}")
    for t in range(2): k(f"ds_read_b64 {vr(G+16+2*t,2)}, v{vsl} offset:{32*t}")
    c2 = len(k.L)
    if not P['HD']:
        for it in range(3): k(f"ds_read_b128 {vr(Z+4*it,4)}, v{sr1 if it == 1 else sr0} offset:{STAGE + 4096*it}")
    k(f"s_movk_i32 s{st}, 4096")
    k(f"s_movk_i32 s{su}, 8192")
    k(f"s_waitcnt lgkmcnt({0 if P['HD'] else 3})")
    for i in range(4): k(f"v_pk_add_f32 {vr(ST+2*i,2)}, {vr(G+2*i,2)}, {vr(G+8+2*i,2)}")
    k(f"v_pk_add_f32 {vr(ST+8,2)}, {vr(G+16,2)}, {vr(G+18,2)}")
    if not P['HD']:
        k("s_waitcnt lgkmcnt(0)")
        for it in range(3): vm(f"buffer_store_dwordx4 {vr(Z+4*it,4)}, v{vda}, {sr(SA,4)}, {['0', 's%d' % st, 's%d' % su][it]} offen sc1")
    SCL = G
    chains = []
    for i in range(5):
        kk = K("tmp", 0); ln_stats(kk, ST+2*i, ST+2*i+1, SCL+2*i, SCL+2*i+1, Y + i); chains.append(kk.L)
    for j in range(len(chains[0])):
        for c in chains: k.L.append(c[j])
    LP = Y + 8
    for i in range(10):
        sc_ = SCL + 2*(i >> 1)
        k(f"v_pk_fma_f32 {vr(XF+2*i,2)}, {vr(XF+2*i,2)}, {vr(sc_,2)}, {vr(sc_,2)} op_sel:[0,0,1] op_sel_hi:[1,0,1]")
    for i in range(10):
        k(f"v_cvt_pk_bf16_f32 v{LP+i}, v{XF+2*i}, v{XF+2*i+1}")
        if i & 1: k(f"ds_write_b64 v{SGA+(i>>1) if i < 8 else sgl}, {vr(LP+i-1,2)}")
    pf(c2, P['NPF3'])
    k("s_waitcnt lgkmcnt(0)")
    k("s_barrier")
    Z2 = G
    for it in range(3): k(f"ds_read_b128 {vr(Z2+4*it,4)}, v{sr1 if it == 1 else sr0} offset:{4096*it}")
    k(f"s_mul_i32 s{sW2}, s{sc5}, 54")
    k(f"s_add_u32 s{sW2}, s{sW2}, s{sw}")
    k(f"s_mul_i32 s{sW2}, s{sW2}, 5120")
    k(f"s_add_u32 s{sW2}, s{sW2}, {OFF_W2}")
    k(f"s_lshl_b32 s{sfl}, s{sG}, 8")
    k(f"s_add_u32 s{sfl}, s{sfl}, {OFF_FL}")
    for it in range(3):
        k(f"s_waitcnt lgkmcnt({2-it})")
        iS = vm(f"buffer_store_dwordx4 {vr(Z2+4*it,4)}, v{vda}, {sr(SC,4)}, {['0', 's%d' % st, 's%d' % su][it]} offen sc1")
    if not P.get('CLK'): k.stamp_mid(3)
    if P['HD']:
        for it in range(3): k(f"ds_read_b128 {vr(Z+4*it,4)}, v{sr1 if it == 1 else sr0} offset:{STAGE + 4096*it}")
    def hstore():
        k(f"s_movk_i32 s{st}, 4096")
        k("s_waitcnt lgkmcnt(0)")
        for it in range(3): vm(f"buffer_store_dwordx4 {vr(Z+4*it,4)}, v{vda}, {sr(SA,4)}, {['0', 's%d' % st, 's%d' % su][it]} offen sc1")
    k.v.reset(vmark)
    W2V = [None]
    k.a(256)
    NORD = list(range(11)) + [13, 11, 12]
    def w2reg(i): return ar(4*i, 4) if i < 64 else vr(W2V[0] + 4*(i - 64), 4)
    w2next = [0]; w2idx = {}
    def w2issue(n):
        for z in range(n):
            i = w2next[0]
            if i >= 70: return
            s, b = divmod(i, 5)
            if b == 0: k(f"s_add_u32 s{sW2t}, s{sW2}, {NORD[s]*20480}")
            w2idx[i] = vm(f"buffer_load_dwordx4 {w2reg(i)}, v{vl16 if b < 4 else vl16b}, {sr(SWS,4)}, s{sW2t} offen offset:{1024*(b&3)}")
            w2next[0] += 1
    def dmaissue(n):
        for g in dma[:n]:
            for l in g: k(l)
            vm.n += 1
        del dma[:n]
    def seam(no, lastst, nA, nB, mid, filler, pregs):
        if no == 0: dmaissue(P['DMA_A'])
        w2issue(nA)
        vm.wait(lastst)
        k("s_barrier")
        if not P.get('CLK') or no: k.stamp_mid(mid)
        k(f"s_cmp_lg_u32 s{sw}, 0")
        k(f"s_cbranch_scc1 K3_nf{no}")
        k(f"s_lshl_b32 s{st}, s{sj}, 2")
        k(f"s_add_u32 s{st}, s{st}, s{sfl}")
        k(f"v_mov_b32 v{vP}, 1")
        k(f"v_mov_b32 v{vF}, 0")
        k("s_mov_b64 exec, 1")
        k(f"buffer_store_dword v{vP}, v{vF}, {sr(SWS,4)}, s{st} offen offset:{128*no} sc1")
        k.exec_all()
        k.label(f"K3_nf{no}")
        late = no == 0
        if no == 0 and P['HD']: hstore()
        if no == 0: dmaissue(35)
        if no == 0: touchN(P['TS1'])
        w2issue(nB)
        f0 = len(k.L); filler(late)
        if no == 1 and P['HU'] >= 0: hread()
        fill = k.L[f0:]; del k.L[f0:]
        NP = P['NP']; PR = pregs
        def poll(i): k(f"buffer_load_dword v{PR[i]}, v{vF}, {sr(SWS,4)}, s{sfl} offen offset:{128*no} sc1")
        if no == 0 and P['SUBF']:
            k(f"v_and_b32 v{vF}, 3, v0")
            k(f"s_lshl_b32 s{scnt}, s{sw}, 2")
            k(f"v_add_lshl_u32 v{vF}, v{vF}, s{scnt}, 2")
        else: k(f"v_lshlrev_b32 v{vF}, 2, v{vm_}")
        k(f"s_mov_b32 s{scnt}, 0")
        nch = max(NP - 1, 1); ch = (len(fill) + nch - 1) // nch
        for i in range(nch):
            if NP > 1: poll(i)
            k.L += fill[i*ch:(i+1)*ch]
            if P['PSL']: k(f"s_sleep {P['PSL']}")
        if no == 0 and late and not P['BARP']:
            k(f"s_waitcnt vmcnt({NP - 1})")
            k("s_barrier")
            for u in range(7): rdA(u)
        k.label(f"K3_p{no}")
        for i in range(NP):
            poll((i + NP - 1) % NP)
            if i == 0:
                k(f"s_add_u32 s{scnt}, s{scnt}, 1")
                k(f"s_cmp_gt_u32 s{scnt}, {P['POLL_LIMIT']}")
            k(f"s_waitcnt vmcnt({NP - 1})")
            if i == 0: k(f"s_cbranch_scc1 K3_x{no}")
            k(f"v_cmp_ne_u32 vcc, 1, v{PR[i]}")
            if i < NP - 1: k(f"s_cbranch_vccz K3_x{no}")
            else: k(f"s_cbranch_vccnz K3_p{no}")
        k.label(f"K3_x{no}")
        if not P.get('CLK') or no: k.stamp_mid(mid + 1)
        return late
    RD = P['RD']; KM = P['KM']
    vlr = k.v(3); vln = k.v(); vs1 = k.v(); ACC = k.v(56, 4); Af = k.v(56, 4); Bf = k.v(8*RD, 4); O = BI
    items = [(ks, b) for ks in range(KM) for b in range(7)] + [(ks, b) for b in (6, 0, 1, 2, 3, 4, 5) for ks in range(KM, 20)]
    lg = []
    def rdA(u):
        if u >= len(items): return
        ks, b = items[u]
        if (ks, b) == (19, 6): return
        off = (ks*7 + b) * 1024
        k(f"ds_read_b128 {vr(Af + 4*(u % 14), 4)}, v{vlr + (off >> 16)} offset:{off & 0xffff}")
        lg.append(u)
    def fillD(late):
        k(f"v_lshlrev_b32 v{vs1}, 3, v{vg}")
        for b in range(7): k(f"ds_read_b64 {vr(BI+2*b,2)}, v{vs1} offset:{BIAS + 32*b}")
        for i in range(3): k(f"v_add_u32 v{vlr+i}, {65536*i + WB}, v{vl16}")
        if not late:
            for u in range(7): rdA(u)
        k(f"v_lshrrev_b32 v{vs1}, 3, v{vm_}")
        k(f"v_mul_u32_u24 v{vln}, 10240, v{vs1}")
        k(f"v_lshl_add_u32 v{vln}, v{vg}, 7, v{vln}")
        k(f"v_and_b32 v{vs1}, 7, v{vm_}")
        k(f"v_lshl_add_u32 v{vln}, v{vs1}, 4, v{vln}")
        k(f"v_and_b32 v{vs1}, 1, v{vg}")
        k(f"v_lshlrev_b32 v{vs1}, 10, v{vs1}")
        k(f"v_lshl_add_u32 v{vs1}, v{vm_}, 4, v{vs1}")
        k(f"v_lshrrev_b32 v{ACC+4}, 1, v{vg}")
        k(f"v_lshl_add_u32 v{vs1}, v{ACC+4}, 8, v{vs1}")
        assert late
        k("s_waitcnt lgkmcnt(0)")
        for b in range(7):
            for q in range(2):
                k(f"v_lshlrev_b32 v{ACC+8*b+2*q}, 16, v{BI+2*b+q}")
                k(f"v_and_b32 v{ACC+8*b+2*q+1}, 0xffff0000, v{BI+2*b+q}")
        k(f"s_lshl_b32 s{st}, s{sG}, 2")
        k(f"s_add_u32 s{st}, s{st}, s{sw}")
        k(f"s_mul_i32 s{sl0}, s{st}, {4*10240}")
        k(f"s_add_u32 s{sl0}, s{sl0}, {OFF_LN2}")
        k(f"s_add_u32 s{sl1}, s{sl0}, {2*10240}")
        k(f"s_lshl_b32 s{st}, s{sG}, 1")
        k(f"s_add_u32 s{st}, s{st}, s{stt}")
        k(f"s_mul_i32 s{so}, s{st}, {54*4096}")
        k(f"s_lshl_b32 s{st}, s{stau}, 11")
        k(f"s_add_u32 s{so}, s{so}, s{st}")
        k(f"s_add_u32 s{so}, s{so}, {OFF_HP}")
        k(f"s_lshr_b32 s{st}, s{sj}, 1")
        k(f"s_add_u32 s{st}, s{st}, 48")
        k(f"s_lshl_b32 s{st}, s{st}, 12")
        k(f"s_add_u32 s{so2}, s{so}, s{st}")
        k(f"s_and_b32 s{st}, s{sj}, 1")
        k(f"s_lshl_b32 s{st}, s{st}, 9")
        k(f"s_add_u32 s{so2}, s{so2}, s{st}")
        k(f"s_mul_i32 s{st}, s{sj}, {3*4096}")
        k(f"s_add_u32 s{so}, s{so}, s{st}")
    B2L = 11264
    def hdma():
        t0 = t1 = vF
        k(f"s_bfe_u32 s{st}, s2, 0x10005")
        k(f"s_lshl_b32 s{su}, s{sG}, 1")
        k(f"s_add_u32 s{su}, s{su}, s{st}")
        k(f"s_lshl_b32 s{st}, s{su}, 2")
        k(f"s_add_u32 s{st}, s{st}, s{sw}")
        k(f"s_mul_i32 s{st}, s{st}, {2*10240}")
        k(f"s_mul_i32 s{su}, s{sc5}, 1280")
        k(f"s_add_u32 s{st}, s{st}, s{su}")
        k(f"s_add_u32 s{st}, s{st}, {OFF_H}")
        k(f"s_mul_i32 m0, s{sw}, 2816")
        k(f"v_cmp_gt_u32 vcc, 256, v{vl16}")
        vm(f"buffer_load_dwordx4 v{vl16}, {sr(SWS,4)}, s{st} offen sc1 lds")
        k(f"v_add_u32 v{t1}, {10240 - 1280}, v{vl16}")
        k(f"v_cndmask_b32 v{t1}, v{t1}, v{vl16}, vcc")
        vm(f"buffer_load_dwordx4 v{t1}, {sr(SWS,4)}, s{st} offen offset:1024 sc1 lds")
        k(f"s_add_u32 s{st}, s{st}, {10240 - 1280}")
        k.exec_mask(0xFFFFFFFF)
        vm(f"buffer_load_dwordx4 v{vl16}, {sr(SWS,4)}, s{st} offen offset:2048 sc1 lds")
        k.exec_all()
        k.srd(SB, sb2, 640*2)
        k(f"s_mul_i32 s{su}, s{sc5}, 160")
        k(f"s_movk_i32 m0, {B2L}")
        k(f"v_lshrrev_b32 v{t0}, 2, v{vl16}")
        vm(f"buffer_load_dword v{t0}, {sr(SB,4)}, s{su} offen lds")
    late = seam(0, iS, P['S1A'], P['S1B'], 4, fillD, PRG)
    bidx = {}
    bq = [(ks, rho) for ks in range(20) for rho in range(2)]
    def ldB():
        ks, rho = bq.pop(0)
        if rho == 0 and ks in (8, 16):
            k(f"s_add_u32 s{sl0}, s{sl0}, 4096"); k(f"s_add_u32 s{sl1}, s{sl1}, 4096")
        bidx[(ks, rho)] = vm(f"buffer_load_dwordx4 {vr(Bf + 8*(ks % RD) + 4*rho, 4)}, v{vln}, {sr(SWS,4)}, s{sl0 if rho == 0 else sl1} offen offset:{512*(ks & 7)} sc1")
    if P['TD']:
        k(f"s_and_b32 s{st}, s{sj}, 7")
        k(f"s_lshl_b32 s{st}, s{st}, 2")
        k(f"s_add_u32 s{st}, s{st}, s{sw}")
        k(f"s_mul_i32 s{st}, s{st}, {40*128}")
        k(f"s_mul_i32 s{su}, s{sG}, {16*10240}")
        k(f"s_add_u32 s{st}, s{st}, s{su}")
        k(f"s_add_u32 s{st}, s{st}, {OFF_LN2}")
        k.exec_mask((1 << 40) - 1)
        vm(f"buffer_load_dword v{vP}, v{vtc}, {sr(SWS,4)}, s{st} offen sc1")
        k.exec_all()
    for _ in range(P['D0']): ldB()
    if late and P['BARP']:
        k("s_barrier")
        for u in range(7): rdA(u)
    TCH = [P['TU0'], P['TU1'], P['TU2']][ntouch[0]:]
    waited = set(); vq = []
    lastS = None
    def epi(b):
        ops = []
        ob = O + 8*((b >> 1) & 1) if b < 6 else O + 8
        for rho in range(2):
            a = ACC + 8*b + 4*rho
            oo = (ob + 4*rho + 2*(b & 1)) if b < 6 else ob + 2*rho
            for r in range(4): ops.append(f"v_mul_f32_e64 v{a+r}, v{a+r}, |v{a+r}|")
            for q in range(2): ops.append(f"v_cvt_pk_bf16_f32 v{oo+q}, v{a+2*q}, v{a+2*q+1}")
            for q in range(2): ops.append(f"v_pk_max_i16 v{oo+q}, v{oo+q}, 0")
        if b == 6:
            for q in range(2): ops.append(f"v_permlane16_swap_b32 v{ob+q}, v{ob+2+q}")
            ops.append(("single", ob))
        elif b & 1:
            ops.append(("pair", ob, b >> 1))
        return ops
    def emit(op):
        nonlocal lastS
        if isinstance(op, str): k(op)
        elif op[0] == "single":
            k(f"s_cmp_ge_u32 s{sj}, 12")
            k("s_cbranch_scc1 K3_ns")
            k(f"buffer_store_dwordx4 {vr(op[1],4)}, v{vs1}, {sr(SWS,4)}, s{so2} offen sc1")
            k.label("K3_ns")
        else:
            for rho in range(2):
                lastS = vm(f"buffer_store_dwordx4 {vr(op[1]+4*rho,4)}, v{vl16}, {sr(SWS,4)}, s{so} offen offset:{1024*rho} sc1")
            if op[2] < 2: k(f"s_add_u32 s{so}, s{so}, 4096")
    for u, (ks, b) in enumerate(items):
        if ks not in waited:
            vm.wait(bidx[(ks, 1)]); waited.add(ks)
            if u == 0:
                k.stamp_mid(6)
        if P.get('CLK') == 1 and u in (0, 14, 28, 56, 98, 122): k.stamp_clk([0, 14, 28, 56, 98, 122].index(u))
        if (ks, b) == (19, 6): a = A139
        else:
            a = Af + 4*(u % 14)
            k(f"s_waitcnt lgkmcnt({len(lg) - lg.index(u) - 1})")
        bb = Bf + 8*(ks % RD); d = ACC + 8*b
        def valu(n):
            for _ in range(n):
                if vq and vq[0][0] <= u: emit(vq.pop(0)[1])
        mfma(k, d + 4, a, bb + 4, d if ks == 0 else d + 4)
        valu(P['VA'])
        rdA(u + 7)
        mfma(k, d, a, bb, d)
        valu(P['VB'])
        done_ks = ks if u < 7*KM else KM
        if bq and b in (1, 3, 5) and bq[0][0] < done_ks + RD: ldB()
        if u in TCH: touch2()
        if u == P['HU']: hdma()
        if P['DW'] and u % P['DW'] == P['DW'] - 1 and u >= P['DW0'] and u < P['DW1'] and w2next[0] < P['DWMAX']: w2issue(1)
        if u >= 7*KM and ks == 19:
            for op in epi(b): vq.append((u + 2, op))
    assert not bq
    while vq: emit(vq.pop(0)[1])
    k.stamp_mid(7)
    if P.get('CLK') == 1: k.stamp_clk(10)
    k.v.reset(emark)
    ED = 6
    vh = k.v(4); vq3 = k.v(3); vrr = k.v(); vo = k.v(3); vor = k.v(3); vow = k.v(); vhh = k.v(); vg8 = k.v(); t2 = k.v()
    W2V[0] = k.v(24, 4); ACC = k.v(80, 4); HR = k.v(16*ED, 4); HB = k.v(10, 2); BB = k.v(10, 2)
    srt = sl0; sho = sl1; sbo = so2
    def hread():
        for b in range(5):
            k(f"ds_read_b64 {vr(HB+2*b,2)}, v{vhh} offset:{256*b}")
            k(f"ds_read_b64 {vr(BB+2*b,2)}, v{vg8} offset:{B2L + 32*b}")
    def fillE(late):
        for q in range(4):
            k(f"s_add_u32 s{st}, s{sw}, {q}")
            k(f"s_and_b32 s{st}, s{st}, 3")
            k(f"s_lshl_b32 s{su}, s{st}, 10")
            k(f"v_add_u32 v{vh+q}, s{su}, v{vl16}")
            if q:
                k(f"s_mul_i32 s{su}, s{st}, {15*1024}")
                k(f"s_add_u32 s{su}, s{su}, {WB + (q-1)*5*1024}")
                k(f"v_add_u32 v{vq3+q-1}, s{su}, v{vl16}")
        k(f"s_mul_i32 s{su}, s{sw}, {15*1024}")
        k(f"s_add_u32 s{su}, s{su}, {WB}")
        k(f"v_add_u32 v{vrr}, s{su}, v{vl16}")
        k(f"s_bfe_u32 s{st}, s2, 0x10005")
        k(f"s_lshl_b32 s{srt}, s{sG}, 1")
        k(f"s_add_u32 s{srt}, s{srt}, s{st}")
        k(f"s_mul_i32 s{sH}, s{srt}, 54")
        k(f"s_add_u32 s{sH}, s{sH}, s{sw}")
        k(f"s_lshl_b32 s{sH}, s{sH}, 12")
        k(f"s_add_u32 s{sH}, s{sH}, {OFF_HP}")
        k.srd(SC, sb2+2, 2048*1280)
        k(f"s_lshl_b32 s{st}, s{srt}, 2")
        k(f"s_add_u32 s{st}, s{st}, s{sw}")
        k(f"s_lshr_b32 s{su}, s{st}, 1")
        k(f"s_lshl_b32 s{su}, s{su}, 5")
        k(f"s_and_b32 s{st}, s{st}, 1")
        k(f"s_lshl_b32 s{st}, s{st}, 3")
        k(f"s_add_u32 s{su}, s{su}, s{st}")
        k(f"s_mul_i32 s{so}, s{su}, 1280")
        k(f"s_mul_i32 s{sbo}, s{sc5}, 160")
        k(f"s_add_u32 s{so}, s{so}, s{sbo}")
        k(f"v_lshlrev_b32 v{vg8}, 3, v{vg}")
        k(f"s_mul_i32 s{su}, s{sw}, {16*176}")
        k(f"v_mul_u32_u24 v{vow}, 176, v{vm_}")
        k(f"v_add3_u32 v{vow}, v{vow}, v{vg8}, s{su}")
        for i in range(3):
            k(f"v_lshrrev_b32 v{t2}, 4, v{vl16}")
            if i: k(f"v_add_u32 v{t2}, {64*i}, v{t2}")
            k(f"v_mul_u32_u24 v{vhh}, 205, v{t2}")
            k(f"v_lshrrev_b32 v{vhh}, 11, v{vhh}")
            k(f"v_mul_u32_u24 v{vor+i}, 10, v{vhh}")
            k(f"v_sub_u32 v{t2}, v{t2}, v{vor+i}")
            k(f"v_lshlrev_b32 v{t2}, 4, v{t2}")
            k(f"v_mul_u32_u24 v{vor+i}, 176, v{vhh}")
            k(f"v_add3_u32 v{vor+i}, v{vor+i}, v{t2}, s{su}")
            k(f"v_and_b32 v{vo+i}, 3, v{vhh}")
            k(f"v_and_b32 v{HR}, 4, v{vhh}")
            k(f"v_lshl_add_u32 v{vo+i}, v{HR}, 2, v{vo+i}")
            k(f"v_and_b32 v{HR}, 8, v{vhh}")
            k(f"v_lshrrev_b32 v{HR}, 1, v{HR}")
            k(f"v_add_u32 v{vo+i}, v{vo+i}, v{HR}")
            k(f"v_mad_u32_u24 v{vo+i}, v{vo+i}, s{s1280}, v{t2}")
        k(f"v_bfe_u32 v{t2}, v0, 3, 1")
        if P['HU'] == -2:
            k(f"v_mul_u32_u24 v{vhh}, 10240, v{t2}")
            k.srd(SB, sb2, 640*2)
            k(f"s_lshl_b32 s{st}, s{srt}, 2")
            k(f"s_add_u32 s{st}, s{st}, s{sw}")
            k(f"s_mul_i32 s{sho}, s{st}, {2*10240}")
            k(f"s_mul_i32 s{st}, s{sc5}, 1280")
            k(f"s_add_u32 s{sho}, s{sho}, s{st}")
            k(f"s_add_u32 s{sho}, s{sho}, {OFF_H}")
        else:
            k(f"v_mov_b32 v{vhh}, s{su}")
            k(f"v_mad_u32_u24 v{vhh}, v{t2}, s{s1280}, v{vhh}")
        k(f"v_and_b32 v{t2}, 7, v0")
        k(f"v_lshl_add_u32 v{vhh}, v{t2}, 4, v{vhh}")
        k(f"v_lshrrev_b32 v{t2}, 1, v{vg}")
        k(f"v_lshl_add_u32 v{vhh}, v{t2}, 7, v{vhh}")
        k(f"v_and_b32 v{t2}, 1, v{vg}")
        k(f"v_lshl_add_u32 v{vhh}, v{t2}, 3, v{vhh}")
    P['S2A'] = min(P['S2A'], 64 - w2next[0])
    sys.stderr.write(f'w2 issued before seam2: {w2next[0]}\n')
    seam(1, lastS, P['S2A'], 70 - P['WE'] - P['S2A'] - w2next[0], 8, fillE, PRG)
    ndef = w2next[0]
    hq = [(s, q) for s in range(14) for q in range(4)]
    hidx = {}
    def ldH():
        s, q = hq.pop(0)
        if q == 0: k(f"s_add_u32 s{sT}, s{sH}, {NORD[s]*16384}")
        hidx[(s, q)] = vm(f"buffer_load_dwordx4 {vr(HR + 16*(s % ED) + 4*q, 4)}, v{vh+q}, {sr(SWS,4)}, s{sT} offen sc1")
    if P['TE']:
        k(f"s_and_b32 s{st}, s{sj}, 3")
        k(f"s_lshl_b32 s{st}, s{st}, 2")
        k(f"s_add_u32 s{st}, s{st}, s{sw}")
        k(f"s_mul_i32 s{st}, s{st}, {108*128}")
        k(f"s_mul_i32 s{su}, s{srt}, {54*4096}")
        k(f"s_add_u32 s{st}, s{st}, s{su}")
        k(f"s_add_u32 s{st}, s{st}, {OFF_HP}")
        k.exec_mask((1 << 54) - 1)
        vm(f"buffer_load_dword v{vP}, v{vtc}, {sr(SWS,4)}, s{st} offen sc1")
        k(f"s_add_u32 s{st}, s{st}, {54*128}")
        vm(f"buffer_load_dword v{vP}, v{vtc}, {sr(SWS,4)}, s{st} offen sc1")
        k.exec_all()
    for _ in range(P['E0']): ldH()
    groups = [(s, q) for s in range(12) for q in range(4)] + [(s, q) for q in (1, 2, 3, 0) for s in (12, 13)]
    donegrp = set(); cnt = 0; wq = []; extra = []
    iE = None
    if P['HU'] == -2:
        for b in range(5):
            extra.append(f"buffer_load_dwordx2 {vr(HB+2*b,2)}, v{vhh}, {sr(SWS,4)}, s{sho} offen offset:{256*b} sc1")
            extra.append(f"buffer_load_dwordx2 {vr(BB+2*b,2)}, v{vg8}, {sr(SB,4)}, s{sbo} offen offset:{32*b}")
    for gi, (s, q) in enumerate(groups):
        if (s, q) == (11, 0):
            assert not hq and w2next[0] == 70 and (P['HU'] >= 0 or iE is not None) and not extra, (hq, w2next)
            k(f"s_cmp_ge_u32 s{sw}, 2")
            k("s_cbranch_scc1 K3_sk")
        vm.wait(max(hidx[(s, q)], w2idx[5*s+4] if 5*s+4 >= ndef else 0))
        for b in range(5):
            d = ACC + 4*(5*q + b)
            cs = "0" if s == 0 else vr(d, 4)
            k(f"v_mfma_f32_16x16x32_bf16 {vr(d,4)}, {w2reg(5*s+b)}, {vr(HR + 16*(s % ED) + 4*q, 4)}, {cs}")
            cnt += 1
            if cnt % P['ERATE'] == 0 or (hq and hq[0][0] - s < 3):
                okH = hq and (hq[0][0] < ED or (hq[0][0] - ED, hq[0][1]) in donegrp)
                if okH and (hq[0][0] - s <= P['HA'] or w2next[0] == 70): ldH()
                elif w2next[0] < 70: w2issue(1)
                elif not hq and P['HU'] == -1 and iE is None:
                    hdma(); iE = vm.n - 1
                elif not hq and extra: iE = vm(extra.pop(0))
            if wq and wq[0][0] <= cnt: k(wq.pop(0)[1])
        donegrp.add((s, q))
        if (s, q) == (11, 3): k.label("K3_sk")
        if (s, q) == (13, 1) and P['HU'] == -1:
            vm.wait(iE); hread()
        if s == 13 and q:
            for b in range(5): wq.append((cnt + 2 + 2*b, f"ds_write_b128 v{vq3+q-1}, {vr(ACC+4*(5*q+b),4)} offset:{1024*b}"))
    while wq: k(wq.pop(0)[1])
    if not P.get('CLK'): k.stamp_mid(10)
    F = HR + 60
    if P['HU'] == -2: vm.wait(iE)
    else: k("s_waitcnt lgkmcnt(15)")
    for i in range(10):
        k(f"v_lshlrev_b32 v{F+2*i}, 16, v{HB+i}")
        k(f"v_and_b32 v{F+2*i+1}, 0xffff0000, v{HB+i}")
    k("s_waitcnt lgkmcnt(0)")
    k("s_barrier")
    k.stamp_mid(11)
    R = HR
    for i in range(15): k(f"ds_read_b128 {vr(R+4*i,4)}, v{vrr} offset:{1024*i}")
    for i in range(10): k(f"v_pk_add_f32 {vr(ACC+2*i,2)}, {vr(ACC+2*i,2)}, {vr(F+2*i,2)}")
    for i in range(10):
        k(f"v_lshlrev_b32 v{F+2*i}, 16, v{BB+i}")
        k(f"v_and_b32 v{F+2*i+1}, 0xffff0000, v{BB+i}")
    for i in range(10): k(f"v_pk_add_f32 {vr(ACC+2*i,2)}, {vr(ACC+2*i,2)}, {vr(F+2*i,2)}")
    OS = 176
    for src in range(3):
        for b in range(5):
            if src < 2 and b == 0: k(f"s_waitcnt lgkmcnt({10 - 5*src})")
            if src == 2: k(f"s_waitcnt lgkmcnt(4)")
            for q in range(2): k(f"v_pk_add_f32 {vr(ACC+4*b+2*q,2)}, {vr(ACC+4*b+2*q,2)}, {vr(R+20*src+4*b+2*q,2)}")
            if src == 2:
                for q in range(2): k(f"v_cvt_pk_bf16_f32 v{HB+2*b+q}, v{ACC+4*b+2*q}, v{ACC+4*b+2*q+1}")
                k(f"ds_write_b64 v{vow}, {vr(HB+2*b,2)} offset:{32*b}")
    k("s_waitcnt lgkmcnt(0)")
    for i in range(3): k(f"ds_read_b128 {vr(R+4*i,4)}, v{vor+i}")
    for i in range(3):
        k(f"s_waitcnt lgkmcnt({2-i})")
        if i == 2: k.exec_mask(0xFFFFFFFF)
        k(f"buffer_store_dwordx4 {vr(R+4*i,4)}, v{vo+i}, {sr(SC,4)}, s{so} offen" + (" nt" if P['XNT'] & 8 else ""))
    k.stamp_end(sws)
    k.label("K3_done")
    k("s_endpgm")
    return k, 256, 256, 160 * 1024
```

```python
import sys, struct
from asmlib import *

NAME = "sequential_preLN__spectral_gfnet__dense_activation_squared_relu__prompt"
MB = 1 << 20
OFF_T1, OFF_WT, OFF_T2, OFF_H, OFF_LN2, OFF_W1, OFF_W2, OFF_HP, OFF_FL = 0, 4*MB, 8*MB, 12*MB, 16*MB, 20*MB, 24*MB, 28*MB, 36*MB
T1_BYTES = 321 * 8192
T2_STRIDE = 10368
STAMP = "--stamp" in sys.argv
STAMP_OFF = 250 << 20
def arg(name, dflt):
    for a in sys.argv:
        if a.startswith(name + "="): return int(a.split("=")[1])
    return dflt

def f2u(f): return struct.unpack('<I', struct.pack('<f', f))[0]
def fl(f): return "0x%08x" % f2u(f)

class K:
    def __init__(self, name, idx):
        self.name = name; self.idx = idx; self.L = []
        self.v = Alloc(1, 256); self.a = Alloc(0, 256); self.s = Alloc(3, 64)
    def __call__(self, s): self.L.append("  " + s)
    def label(self, s): self.L.append(s + ":")
    def srd(self, dst, base, nbytes, off=0):
        if off:
            self(f"s_add_u32 s{dst}, s{base}, {off}")
            self(f"s_addc_u32 s{dst+1}, s{base+1}, 0")
        else:
            self(f"s_mov_b32 s{dst}, s{base}")
            self(f"s_mov_b32 s{dst+1}, s{base+1}")
        self(f"s_mov_b32 s{dst+2}, {nbytes}")
        self(f"s_mov_b32 s{dst+3}, 0x20000")
    def exec_mask(self, m):
        self(f"s_mov_b32 exec_lo, 0x{m & 0xffffffff:08x}")
        self(f"s_mov_b32 exec_hi, 0x{m >> 32:08x}")
    def exec_all(self): self("s_mov_b64 exec, -1")
    def stamp_start(self):
        if STAMP: self("s_memrealtime s[64:65]")
    def stamp_mid(self, i):
        if STAMP: self(f"s_memrealtime s[{68+2*i}:{69+2*i}]")
    def stamp_clk(self, i):
        if STAMP: self(f"s_memtime s[{68+2*i}:{69+2*i}]")
    def stamp_end(self, wsreg):
        if not STAMP: return
        self("s_waitcnt vmcnt(0) lgkmcnt(0)")
        self("s_memrealtime s[66:67]")
        self("s_getreg_b32 s96, hwreg(HW_REG_XCC_ID)")
        self(f"s_add_u32 s94, s{wsreg}, {STAMP_OFF + self.idx*2048*64}")
        self(f"s_addc_u32 s95, s{wsreg+1}, 0")
        self("s_lshl_b32 s97, s2, 6")
        self("s_add_u32 s94, s94, s97")
        self("s_addc_u32 s95, s95, 0")
        self("s_waitcnt lgkmcnt(0)")
        self("v_cmp_eq_u32 vcc, 0, v0")
        self("s_and_saveexec_b64 s[98:99], vcc")
        lab = f"Lst{self.idx}_{len(self.L)}"
        self(f"s_cbranch_execz {lab}")
        for i, s in enumerate([64, 65, 66, 96] + [68 + 2*j for j in range(12)]): self(f"v_mov_b32 v{4+i}, s{s}")
        self("v_mov_b32 v2, 0")
        for j in range(4): self(f"global_store_dwordx4 v2, v[{4+4*j}:{7+4*j}], s[94:95] offset:{16*j}")
        self.label(lab)
    def text(self):
        body = fix_hazards(self.L)
        return f".globl {self.name}\n.p2align 8\n.type {self.name},@function\n{self.name}:\n" + "\n".join(body) + "\n"
    def desc(self):
        nv = max(self.v.hi, 20); acc = (nv + 3) // 4 * 4
        tot = acc + self.a.hi if self.a.hi else nv
        return (f".p2align 6\n.amdhsa_kernel {self.name}\n  .amdhsa_next_free_vgpr {tot}\n  .amdhsa_next_free_sgpr 102\n"
                f"  .amdhsa_accum_offset {acc}\n  .amdhsa_group_segment_fixed_size 0\n  .amdhsa_kernarg_size 88\n"
                f"  .amdhsa_user_sgpr_count 2\n  .amdhsa_user_sgpr_kernarg_segment_ptr 1\n  .amdhsa_system_sgpr_workgroup_id_x 1\n"
                f"  .amdhsa_float_denorm_mode_32 3\n.end_amdhsa_kernel\n")

def code_touch(k, first, sreg, vt, lo="k1_kernel", n=8, hi="text_end"):
    lab = f"Lpc_{k.name}_{len(k.L)}"
    k(f"s_getpc_b64 s[{sreg}:{sreg+1}]")
    k.label(lab)
    k(f"s_add_u32 s{sreg}, s{sreg}, {lo}-{lab}")
    k(f"s_addc_u32 s{sreg+1}, s{sreg+1}, {-1 if lo == k.name else 0}")
    k(f"s_sub_u32 s{sreg+2}, s2, {first}")
    k(f"s_cmp_lt_u32 s{sreg+2}, {n}")
    k(f"s_cselect_b32 s{sreg+2}, {hi}-{lo}, 0")
    k(f"s_mov_b32 s{sreg+3}, 0x20000")
    k(f"v_lshlrev_b32 v{vt}, 7, v0")
    k(f"buffer_load_dword v{vt}, v{vt}, s[{sreg}:{sreg+3}], 0 offen")

def hoist(k, iw, ie, n):
    blk = [Ins(l) for l in k.L[iw:ie]]; mv = [Ins(l) for l in k.L[ie:ie+n]]
    br = set().union(*[i.r for i in blk]); bw = set().union(*[i.w for i in blk])
    for i in mv:
        assert not i.label and 'exec' not in i.line and 'waitcnt' not in i.line and 'scc' not in i.line and 'cselect' not in i.line, i.line
        assert not (i.w & (br | bw)) and not (i.r & bw), ("hoist conflict", i.line)
    k.L[iw:ie+n] = k.L[ie:ie+n] + k.L[iw:ie]

def mfma(k, d, a, b, c=None, dp='v'):
    cs = "0" if c is None else vr(c, 4, dp)
    k(f"v_mfma_f32_16x16x32_bf16 {vr(d,4,dp)}, {vr(a,4)}, {vr(b,4)}, {cs}")

def gen_cs8(k, ang, C, S, tmp, negS=False):
    for p in range(4):
        k(f"v_cos_f32 v{tmp}, v{ang+2*p}")
        k(f"v_cos_f32 v{tmp+1}, v{ang+2*p+1}")
        n = "-" if negS else ""
        sfx = "_e64" if negS else ""
        k(f"v_sin_f32{sfx} v{tmp+2}, {n}v{ang+2*p}")
        k(f"v_sin_f32{sfx} v{tmp+3}, {n}v{ang+2*p+1}")
        k(f"v_cvt_pk_bf16_f32 v{C+p}, v{tmp}, v{tmp+1}")
        k(f"v_cvt_pk_bf16_f32 v{S+p}, v{tmp+2}, v{tmp+3}")

def bf16_round(k, d, s):
    k(f"v_cvt_pk_bf16_f32 v{d}, v{s}, v{s}")
    k(f"v_lshlrev_b32 v{d}, 16, v{d}")

def ln_stats(k, P, Q, rinv, nmr, t):
    k(f"v_mul_f32 v{P}, {fl(1/640)}, v{P}")
    k(f"v_mul_f32 v{Q}, {fl(1/640)}, v{Q}")
    k(f"v_fma_f32 v{Q}, -v{P}, v{P}, v{Q}")
    k(f"v_max_f32 v{Q}, 0, v{Q}")
    bf16_round(k, t, P)
    bf16_round(k, Q, Q)
    k(f"v_add_f32 v{Q}, {fl(1e-5)}, v{Q}")
    bf16_round(k, Q, Q)
    k(f"v_sqrt_f32 v{Q}, v{Q}")
    bf16_round(k, Q, Q)
    k(f"v_rcp_f32 v{rinv}, v{Q}")
    k(f"v_mul_f32_e64 v{nmr}, -v{t}, v{rinv}")

def cmul_pk(k, oR, oI, R, I, c, s, sign):
    k(f"v_pk_mul_f32 {vr(oR,2)}, {vr(R,2)}, {vr(c,2)}")
    k(f"v_pk_mul_f32 {vr(oI,2)}, {vr(I,2)}, {vr(c,2)}")
    ng = " neg_lo:[1,0,0] neg_hi:[1,0,0]"
    k(f"v_pk_fma_f32 {vr(oR,2)}, {vr(I,2)}, {vr(s,2)}, {vr(oR,2)}" + (ng if sign > 0 else ""))
    k(f"v_pk_fma_f32 {vr(oI,2)}, {vr(R,2)}, {vr(s,2)}, {vr(oI,2)}" + (ng if sign < 0 else ""))
```

```python
from g_base import *
from g_wj import *
def gen_k1():
    k = K("k1_kernel", 0)
    ROWB = 1280; OUTB = 8 * ROWB; REG = 2816
    sx = k.s(2, 2); sws = k.s(2, 2); swr = k.s(4, 4)
    k.stamp_start()
    k(f"s_load_dwordx2 {sr(sx,2)}, s[0:1], 0")
    k(f"s_load_dwordx2 {sr(sws,2)}, s[0:1], 80")
    k(f"s_load_dwordx4 {sr(swr,4)}, s[0:1], 8")
    TK1 = arg("TK1", 0); NT = arg("NT", 0); mod = {0: "", 1: " nt", 2: " sc1", 3: " sc0 sc1", 4: " sc1 nt", 5: " sc0 sc1 nt"}[arg("NTM", 1)]
    if TK1:
        k("s_load_dwordx2 s[52:53], s[0:1], 32")
        k("s_load_dwordx2 s[56:57], s[0:1], 48")
    def wtouch(first, nl, vt, vd):
        k(f"v_lshrrev_b32 v{vt}, 6, v0")
        k(f"s_sub_u32 s54, s2, {first}")
        k(f"s_lshl_b32 s54, s54, 2")
        k(f"v_add_u32 v{vt}, s54, v{vt}")
        k(f"v_mul_u32_u24 v{vt}, {nl}, v{vt}")
        k(f"v_and_b32 v{vd}, 63, v0")
        k(f"v_add_u32 v{vt}, v{vt}, v{vd}")
        k(f"v_lshlrev_b32 v{vt}, 7, v{vt}")
        for S in (52, 56):
            k(f"s_mov_b32 s{S+2}, {640*1728*2}")
            k(f"s_mov_b32 s{S+3}, 0x20000")
        k.exec_mask((1 << nl) - 1)
        k(f"buffer_load_dword v{vd}, v{vt}, s[52:55], 0 offen")
        k(f"buffer_load_dword v{vd}, v{vt}, s[56:59], 0 offen")
        k.exec_all()
    if "NOCT=1" not in sys.argv: code_touch(k, 0, 60, 160)
    k("s_cmp_ge_u32 s2, 256")
    k("s_cbranch_scc1 K1_side")
    SX = k.s(4, 4); ST = k.s(4, 4); sp2 = k.s(); sa = k.s(); st = k.s(); sxo = k.s(); sto = k.s(); sw = k.s(); s1m = k.s(); s2m = k.s()
    k(f"s_lshr_b32 s{st}, s2, 3")
    k(f"s_and_b32 s{sa}, s{st}, 3")
    k(f"s_lshr_b32 s{st}, s{st}, 2")
    k(f"s_and_b32 s{sp2}, s2, 7")
    k(f"s_lshl_b32 s{sp2}, s{sp2}, 2")
    k(f"s_and_b32 s{sxo}, s{st}, 3")
    k(f"s_add_u32 s{sp2}, s{sp2}, s{sxo}")
    k(f"s_lshr_b32 s{st}, s{st}, 2")
    k(f"s_lshl_b32 s{st}, s{st}, 2")
    k(f"s_add_u32 s{sa}, s{sa}, s{st}")
    k(f"s_lshl_b32 s{st}, s{sa}, 8")
    k(f"s_add_u32 s{st}, s{st}, s{sp2}")
    k(f"s_mul_i32 s{sxo}, s{st}, 1280")
    k(f"s_lshl_b32 s{sto}, s{sp2}, 8")
    k(f"s_lshl_b32 s{st}, s{sa}, 5")
    k(f"s_add_u32 s{sto}, s{sto}, s{st}")
    k(f"s_add_u32 s{s1m}, s{sto}, {1*MB}")
    k(f"s_add_u32 s{s2m}, s{sto}, {2*MB}")
    vi = k.v(); vl31 = k.v(); vxa = k.v(); vl = k.v(); vk1 = k.v(); vg = k.v(); vw = k.v()
    k(f"v_lshrrev_b32 v{vi}, 5, v0")
    k(f"v_and_b32 v{vl31}, 31, v0")
    k(f"v_mul_u32_u24 v{vxa}, 40960, v{vi}")
    k(f"v_lshl_add_u32 v{vxa}, v{vl31}, 3, v{vxa}")
    k(f"v_and_b32 v{vk1}, 15, v0")
    k(f"v_bfe_u32 v{vg}, v0, 4, 2")
    k(f"v_lshrrev_b32 v{vw}, 6, v0")
    X = k.v(10, 2)
    iw = len(k.L)
    k("s_waitcnt lgkmcnt(0)")
    k.srd(SX, sx, 2048*1280)
    for it in range(5):
        k(f"buffer_load_dwordx2 {vr(X+2*it,2)}, v{vxa}, {sr(SX,4)}, s{sxo} offen offset:{256*it}" + (mod if NT & 1 else ""))
    k.srd(ST, sws, T1_BYTES, OFF_T1)
    ie = len(k.L)
    BR = k.v(4, 4); BI = k.v(4, 4); TC = k.v(8, 2); TS = k.v(8, 2)
    C0 = k.v(4, 4); S0 = k.v(4, 4); nS0 = k.v(4, 4); C1 = k.v(4, 4); S1 = k.v(4, 4); nC1 = k.v(4, 4)
    ang = k.v(8, 2); tmp = k.v(4, 2); fk = k.v(); fg = k.v(); a0 = k.v()
    k(f"v_cvt_f32_u32 v{fk}, v{vk1}")
    k(f"v_cvt_f32_u32 v{fg}, v{vg}")
    k(f"v_mul_f32 v{fg}, 4.0, v{fg}")
    k(f"v_mul_f32 v{a0}, {fl(1/20)}, v{fk}")
    k(f"v_mul_f32 v{ang}, v{a0}, v{fg}")
    for j in range(1, 4): k(f"v_add_f32 v{ang+j}, v{ang+j-1}, v{a0}")
    k(f"v_mul_f32 v{ang+4}, {fl(16.0)}, v{a0}")
    for j in range(5, 8): k(f"v_add_f32 v{ang+j}, v{ang+j-1}, v{a0}")
    gen_cs8(k, ang, BR, BI, tmp, negS=True)
    hoist(k, iw, ie, arg("H1", len(k.L) - ie))
    k.exec_mask(0xFFFFFFFFFFFF0000)
    for r in (BR+2, BR+3, BI+2, BI+3): k(f"v_mov_b32 v{r}, 0")
    k.exec_all()
    k(f"v_mul_f32 v{a0}, {fl(1/640)}, v{fk}")
    k(f"v_mul_f32 v{ang}, v{a0}, v{fg}")
    for j in range(1, 4): k(f"v_add_f32 v{ang+j}, v{ang+j-1}, v{a0}")
    for j in range(4): k(f"v_fmamk_f32 v{ang+4+j}, v{a0}, {fl(16.0)}, v{ang+j}")
    for j in range(8):
        k(f"v_cos_f32 v{TC+j}, v{ang+j}")
        k(f"v_sin_f32 v{TS+j}, v{ang+j}")
    k(f"v_mul_f32 v{a0}, {fl(1/32)}, v{fk}")
    k(f"v_mul_f32 v{ang}, v{a0}, v{fg}")
    for j in range(1, 4): k(f"v_add_f32 v{ang+j}, v{ang+j-1}, v{a0}")
    for j in range(4): k(f"v_fmamk_f32 v{ang+4+j}, v{a0}, {fl(16.0)}, v{ang+j}")
    gen_cs8(k, ang, C0, S0, tmp)
    for p in range(4):
        k(f"v_xor_b32 v{nS0+p}, 0x80008000, v{S0+p}")
        k(f"v_xor_b32 v{C1+p}, 0x80000000, v{C0+p}")
        k(f"v_xor_b32 v{S1+p}, 0x80000000, v{S0+p}")
        k(f"v_xor_b32 v{nC1+p}, 0x00008000, v{C0+p}")
    vwr = k.v(); vt0 = k.v(); vt1 = k.v(); voA = k.v(); voB = k.v(); vrd = k.v(); vst = k.v(); t2 = k.v()
    k(f"v_mul_u32_u24 v{vwr}, {ROWB}, v{vi}")
    k(f"v_lshl_add_u32 v{vwr}, v{vl31}, 3, v{vwr}")
    k(f"v_mul_u32_u24 v{vt0}, {2*ROWB}, v{vw}")
    k(f"v_and_b32 v{t2}, 3, v0")
    k(f"v_lshl_add_u32 v{vt0}, v{t2}, 3, v{vt0}")
    k(f"v_bfe_u32 v{t2}, v0, 2, 2")
    k(f"v_lshl_add_u32 v{vt0}, v{t2}, 6, v{vt0}")
    k(f"v_add_u32 v{vt1}, 1024, v{vt0}")
    k(f"v_lshl_add_u32 v{vt0}, v{vg}, 8, v{vt0}")
    k(f"v_mul_u32_u24 v{voA}, {REG}, v{vw}")
    k(f"v_add_u32 v{voA}, {OUTB}, v{voA}")
    k(f"v_mad_u32_u24 v{t2}, v{vg}, 5, 0")
    k(f"v_lshl_add_u32 v{t2}, v{t2}, 4, v{vk1}")
    k(f"v_lshlrev_b32 v{t2}, 2, v{t2}")
    k(f"v_sub_u32 v{voB}, v{voA}, v{t2}")
    k(f"v_add_u32 v{voB}, {260*4}, v{voB}")
    k(f"v_add_u32 v{voA}, v{voA}, v{t2}")
    k(f"v_and_b32 v{t2}, 1, v0")
    k(f"v_lshrrev_b32 v{vrd}, 1, v0")
    k(f"v_lshlrev_b32 v{vst}, 13, v{vrd}")
    k(f"v_lshl_add_u32 v{vst}, v{t2}, 4, v{vst}")
    k(f"v_mul_u32_u24 v{t2}, 324, v{t2}")
    k(f"v_add_u32 v{vrd}, v{vrd}, v{t2}")
    k(f"v_lshlrev_b32 v{vrd}, 2, v{vrd}")
    k(f"v_add_u32 v{vrd}, {OUTB}, v{vrd}")
    P = k.v(); Q = k.v(); ones = k.v(); F = k.v(20, 4); sc = k.v(2, 2)
    k(f"v_mov_b32 v{ones}, 0x3f803f80")
    k(f"v_mov_b32 v{P}, 0")
    k(f"v_mov_b32 v{Q}, 0")
    k.stamp_mid(0)
    k("s_waitcnt vmcnt(0)")
    k.stamp_mid(1)
    if TK1 == 1: wtouch(0, 17, vxa, vl)
    for i in range(10):
        k(f"v_dot2c_f32_bf16 v{P}, v{X+i}, v{ones}")
        k(f"v_dot2c_f32_bf16 v{Q}, v{X+i}, v{X+i}")
    for i in range(2):
        k(f"v_lshlrev_b32 v{F+2*i}, 16, v{X+i}")
        k(f"v_and_b32 v{F+2*i+1}, 0xffff0000, v{X+i}")
    k(f"v_permlane16_swap_b32 v{P}, v{Q}")
    k(f"v_add_f32 v{P}, v{P}, v{Q}")
    nxt = 2
    for sh in (8, 4, 2, 1):
        for i in (nxt,):
            k(f"v_lshlrev_b32 v{F+2*i}, 16, v{X+i}")
            k(f"v_and_b32 v{F+2*i+1}, 0xffff0000, v{X+i}")
        nxt += 1
        k(f"v_add_f32_dpp v{P}, v{P}, v{P} row_ror:{sh} row_mask:0xf bank_mask:0xf")
    k(f"v_mov_b32 v{Q}, v{P}")
    for i in (6, 7):
        k(f"v_lshlrev_b32 v{F+2*i}, 16, v{X+i}")
        k(f"v_and_b32 v{F+2*i+1}, 0xffff0000, v{X+i}")
    k(f"v_permlane16_swap_b32 v{P}, v{Q}")
    for i in (8, 9):
        k(f"v_lshlrev_b32 v{F+2*i}, 16, v{X+i}")
        k(f"v_and_b32 v{F+2*i+1}, 0xffff0000, v{X+i}")
    ln_stats(k, P, Q, sc, sc+1, tmp)
    for i in range(10):
        k(f"v_pk_fma_f32 {vr(F+2*i,2)}, {vr(F+2*i,2)}, {vr(sc,2)}, {vr(sc,2)} op_sel:[0,0,1] op_sel_hi:[1,0,1]")
    for i in range(10):
        k(f"v_cvt_pk_bf16_f32 v{X+i}, v{F+2*i}, v{F+2*i+1}")
        if i & 1: k(f"ds_write_b64 v{vwr}, {vr(X+i-1,2)} offset:{256*(i>>1)}")
    A = F
    k.stamp_mid(2)
    k("s_waitcnt lgkmcnt(0)")
    for rho in range(2):
        for t in range(2):
            b = A + 8*rho + 4*t
            k(f"ds_read_b64_tr_b16 {vr(b,2)}, v{vt0} offset:{rho*ROWB + t*32}")
            k(f"ds_read_b64_tr_b16 {vr(b+2,2)}, v{vt1} offset:{rho*ROWB + t*32}")
    D1 = k.v(32, 4)
    for rho in range(2):
        k(f"s_waitcnt lgkmcnt({4 - 4*rho})")
        for t in range(2):
            mfma(k, D1 + 16*rho + 4*t, A + 8*rho + 4*t, BR)
            mfma(k, D1 + 16*rho + 8 + 4*t, A + 8*rho + 4*t, BI)
    E = k.v(16, 4); Bop = A; D2 = D1
    for rho in range(2):
        for h in range(4):
            cmul_pk(k, E + 2*h, E + 8 + 2*h, D1 + 16*rho + 2*h, D1 + 16*rho + 8 + 2*h, TC + 2*h, TS + 2*h, -1)
        for o in range(2):
            for p in range(4):
                k(f"v_cvt_pk_bf16_f32 v{Bop + 8*rho + 4*o + p}, v{E + 8*o + 2*p}, v{E + 8*o + 2*p + 1}")
        bR = Bop + 8*rho; bI = bR + 4; d = D2 + 16*rho
        mfma(k, d + 0, C0, bR); mfma(k, d + 4, C1, bR); mfma(k, d + 8, nS0, bR); mfma(k, d + 12, S1, bR)
        mfma(k, d + 0, S0, bI, d + 0); mfma(k, d + 4, S1, bI, d + 4); mfma(k, d + 8, C0, bI, d + 8); mfma(k, d + 12, nC1, bI, d + 12)
    O = E
    k.stamp_mid(3)
    for i in range(16): k(f"v_cvt_pk_bf16_f32 v{O+i}, v{D2+i}, v{D2+16+i}")
    k.exec_mask(0x07FF07FF07FF07FF)
    for o in range(2):
        for r in range(4): k(f"ds_write_b32 v{voA}, v{O + 8*o + r} offset:{o*1296 + r*80}")
    k.exec_mask(0x03FE03FE03FE03FF)
    for o in range(2): k(f"ds_write_b32 v{voB}, v{O + 8*o + 4} offset:{o*1296 + 3*80}")
    k.exec_mask(0x03FE03FE03FE03FE)
    for o in range(2):
        for r in range(1, 4): k(f"ds_write_b32 v{voB}, v{O + 8*o + 4 + r} offset:{o*1296 + (3-r)*80}")
    k.exec_all()
    k("s_waitcnt lgkmcnt(0)")
    k("s_barrier")
    Z = D2
    k.stamp_mid(4)
    for it in range(3):
        k(f"ds_read2st64_b32 {vr(Z+4*it,2)}, v{vrd} offset0:{2*it} offset1:{2*it+11}")
        k(f"ds_read2st64_b32 {vr(Z+4*it+2,2)}, v{vrd} offset0:{2*it+22} offset1:{2*it+33}")
    for it in range(3):
        k(f"s_waitcnt lgkmcnt({4 - 2*it})")
        k(f"buffer_store_dwordx4 {vr(Z+4*it,4)}, v{vst}, {sr(ST,4)}, s{[sto, s1m, s2m][it]} offen")
    k.stamp_mid(5)
    k.stamp_end(sws)
    k("s_endpgm")
    lds = OUTB + 4 * REG
    k.label("K1_side")
    k.v.reset(1); k.s.reset(swr + 4)
    SR = k.s(4, 4); SI = k.s(4, 4); SO = k.s(4, 4)
    sj = k.s(); sw = k.s(); skg = k.s(); ssg = k.s(); st = k.s(); su = k.s(); sb = k.s(4); so = k.s()
    k("s_cmp_ge_u32 s2, 448")
    k("s_cbranch_scc1 K1_side2")
    vw = k.v(); vkc = k.v(); va = k.v(); vo = k.v()
    k(f"v_lshrrev_b32 v{vw}, 6, v0")
    k(f"v_and_b32 v{vkc}, 63, v0")
    k(f"v_readfirstlane_b32 s{sw}, v{vw}")
    k(f"s_sub_u32 s{sj}, s2, 256")
    k(f"s_lshl_b32 s{sj}, s{sj}, 2")
    k(f"s_add_u32 s{sj}, s{sj}, s{sw}")
    k(f"s_lshr_b32 s{skg}, s{sj}, 7")
    k(f"s_and_b32 s{ssg}, s{sj}, 127")
    k(f"s_lshl_b32 s{skg}, s{skg}, 6")
    k(f"v_add_u32 v{vkc}, s{skg}, v{vkc}")
    k(f"v_lshlrev_b32 v{va}, 1, v{vkc}")
    vlw = k.v(); vlr = k.v(); vq = k.v()
    k(f"v_and_b32 v{vq}, 63, v0")
    k(f"v_lshlrev_b32 v{vlr}, 12, v{vw}")
    k(f"v_lshl_add_u32 v{vlw}, v{vq}, 6, v{vlr}")
    k(f"v_lshl_add_u32 v{vlr}, v{vq}, 4, v{vlr}")
    k(f"v_lshrrev_b32 v{vo}, 2, v{vq}")
    k(f"v_add_u32 v{vo}, s{skg}, v{vo}")
    k(f"v_lshlrev_b32 v{vo}, 13, v{vo}")
    k(f"v_and_b32 v{vq}, 3, v0")
    k(f"v_lshl_add_u32 v{vo}, v{vq}, 4, v{vo}")
    k(f"s_lshr_b32 s{st}, s{ssg}, 5")
    k(f"s_lshl_b32 s{st}, s{st}, 4")
    k(f"s_and_b32 s{su}, s{ssg}, 3")
    k(f"s_lshl_b32 s{su}, s{su}, 2")
    k(f"s_add_u32 s{st}, s{st}, s{su}")
    k(f"s_lshr_b32 s{su}, s{ssg}, 2")
    k(f"s_and_b32 s{su}, s{su}, 7")
    k(f"s_lshl_b32 s{su}, s{su}, 8")
    k(f"s_add_u32 s{st}, s{st}, s{su}")
    k(f"s_mul_i32 s{sb}, s{st}, 642")
    for r in range(1, 4): k(f"s_add_u32 s{sb+r}, s{sb+r-1}, {64*642}")
    k(f"s_lshl_b32 s{so}, s{ssg}, 6")
    k("s_waitcnt lgkmcnt(0)")
    k.srd(SR, swr, 2048*642); k.srd(SI, swr+2, 2048*642); k.srd(SO, sws, T1_BYTES, OFF_WT)
    R = k.v(16, 4); I = k.v(16, 4)
    TLB = arg("TLB", 0)
    if TLB:
        k("s_cmp_ge_u32 s2, 264")
        k("s_cbranch_scc1 K1_notlb")
        k("s_load_dwordx2 s[52:53], s[0:1], 64")
        k.srd(56, sws, 37*MB)
        k(f"v_lshlrev_b32 v100, {TLB}, v0")
        for i in range((37*MB >> TLB) // 256 + 1):
            k(f"s_mov_b32 s48, {i * 256 << TLB}")
            k(f"buffer_load_dword v101, v100, s[56:59], s48 offen")
        k("s_waitcnt lgkmcnt(0)")
        k(f"s_mov_b32 s54, {2048*1280}")
        k(f"s_mov_b32 s55, 0x20000")
        k(f"buffer_load_dword v101, v100, s[52:55], 0 offen")
        k.label("K1_notlb")
    k("s_cmp_lg_u32 s2, 256")
    k("s_cbranch_scc1 K1_nofl")
    SF = k.s(4, 4)
    k.srd(SF, sws, 4096, OFF_FL)
    for i in range(4): k(f"v_mov_b32 v{R+i}, 0")
    k(f"v_lshlrev_b32 v{I}, 4, v0")
    k(f"buffer_store_dwordx4 {vr(R,4)}, v{I}, {sr(SF,4)}, 0 offen")
    k("s_waitcnt vmcnt(0)")
    k.label("K1_nofl")
    for e in range(4):
        for r in range(4):
            k(f"buffer_load_ushort v{R+4*e+r}, v{va}, {sr(SR,4)}, s{sb+r} offen offset:{642*e}" + (mod if NT & 2 else ""))
            k(f"buffer_load_ushort v{I+4*e+r}, v{va}, {sr(SI,4)}, s{sb+r} offen offset:{642*e}" + (mod if NT & 2 else ""))
    if TK1 == 2: wtouch(256, 23, vkc, vq)
    for e in range(4):
        k(f"s_waitcnt vmcnt({24 - 8*e + (2 if TK1 == 2 else 0)})")
        for r in range(4): k(f"v_lshl_or_b32 v{R+4*e+r}, v{I+4*e+r}, 16, v{R+4*e+r}")
        k(f"ds_write_b128 v{vlw}, {vr(R+4*e,4)} offset:{16*e}")
    k("s_waitcnt lgkmcnt(0)")
    for e in range(4): k(f"ds_read_b128 {vr(R+4*e,4)}, v{vlr} offset:{1024*e}")
    for e in range(4):
        k(f"s_waitcnt lgkmcnt({3-e})")
        k(f"buffer_store_dwordx4 {vr(R+4*e,4)}, v{vo}, {sr(SO,4)}, s{so} offen" + (" sc1" if arg("SC1", 0) & 1 else ""))
        if e < 3: k(f"s_add_u32 s{so}, s{so}, {16*8192}")
    k.stamp_end(sws)
    k("s_endpgm")
    k.label("K1_side2")
    if W1_IN_K1:
        k.v.reset(1); k.s.reset(swr + 4)
        k(f"s_cmp_ge_u32 s2, {448 + NWG_W1}")
        k("s_cbranch_scc1 K1_done")
        weight_job(k, 448, 'w1', sws)
        k.stamp_end(sws)
        k.label("K1_done")
    k("s_endpgm")
    return k, 448 + (NWG_W1 if W1_IN_K1 else 0), 256, lds
```

```python
from g_base import *
from g_wj import *
def gen_k2():
    k = K("k2_kernel", 1)
    RS = 144
    sws = k.s(2, 2)
    k.stamp_start()
    k(f"s_load_dwordx2 {sr(sws,2)}, s[0:1], 80")
    if arg("SELF2", 0): code_touch(k, arg("SELF2F", 0), 60, 167, "k2_kernel", arg("SELF2", 0), "k3_kernel")
    k("s_cmp_ge_u32 s2, 321")
    k("s_cbranch_scc1 K2_side")
    S1 = k.s(4, 4); SW = k.s(4, 4); S2 = k.s(4, 4); skc = k.s(); st = k.s(); su = k.s(); so = k.s(); ssc = k.s()
    k(f"s_lshr_b32 s{st}, s2, 5")
    k(f"s_lshl_b32 s{st}, s{st}, 3")
    k(f"s_and_b32 s{su}, s2, 7")
    k(f"s_add_u32 s{st}, s{st}, s{su}")
    k(f"s_lshl_b32 s{st}, s{st}, 2")
    k(f"s_bfe_u32 s{su}, s2, 0x20003")
    k(f"s_add_u32 s{skc}, s{st}, s{su}")
    k(f"s_lshl_b32 s{so}, s{skc}, 13")
    vm = k.v(); vg = k.v(); vw = k.v(); vl = k.v(); vxa = k.v(); vwa = k.v(); t2 = k.v()
    k(f"v_and_b32 v{vm}, 15, v0")
    k(f"v_bfe_u32 v{vg}, v0, 4, 2")
    k(f"v_lshrrev_b32 v{vw}, 6, v0")
    XL = 64 * RS
    nt2 = " nt" if arg("NT2", 0) else ""
    sw = k.s()
    k(f"v_readfirstlane_b32 s{sw}, v{vw}")
    k(f"v_lshl_add_u32 v{vxa}, v{vw}, 3, v{vg}")
    k(f"v_and_b32 v{t2}, 15, v{vxa}")
    k(f"v_xor_b32 v{t2}, v{t2}, v{vm}")
    k(f"v_lshlrev_b32 v{t2}, 4, v{t2}")
    k(f"v_lshl_add_u32 v{vxa}, v{vxa}, 8, v{t2}")
    k(f"v_xor_b32 v{t2}, 64, v{vxa}")
    k(f"s_lshl_b32 s{sw}, s{sw}, 11")
    k(f"s_add_u32 m0, s{sw}, {XL}")
    k(f"v_and_b32 v{vl}, 63, v0")
    k(f"v_lshlrev_b32 v{vwa}, 4, v{vl}")
    k(f"v_lshl_add_u32 v{vwa}, v{vw}, 11, v{vwa}")
    X = k.v(32, 4)
    W = k.v(8, 4)
    iw = len(k.L)
    k.stamp_mid(7)
    k("s_waitcnt lgkmcnt(0)")
    k.stamp_mid(6)
    k.srd(S1, sws, T1_BYTES, OFF_T1); k.srd(SW, sws, T1_BYTES, OFF_WT)
    k(f"buffer_load_dwordx4 v{vxa}, {sr(S1,4)}, s{so} offen" + nt2 + " lds")
    k(f"buffer_load_dwordx4 v{t2}, {sr(S1,4)}, s{so} offen offset:1024" + nt2 + " lds")
    for t in range(2):
        k(f"buffer_load_dwordx4 {vr(W+4*t,4)}, v{vwa}, {sr(SW,4)}, s{so} offen offset:{1024*t}" + nt2)
    k.srd(S2, sws, 256*T2_STRIDE, OFF_T2)
    sc = 2.0 / (2048 * 640)
    k(f"s_mov_b32 s{ssc}, {fl(sc)}")
    k(f"s_cmp_eq_u32 s{skc}, 0")
    k(f"s_cselect_b32 s{ssc}, {fl(sc/2)}, s{ssc}")
    k(f"s_cmp_eq_u32 s{skc}, 320")
    k(f"s_cselect_b32 s{ssc}, {fl(sc/2)}, s{ssc}")
    ie = len(k.L)
    C64 = k.v(8, 4); S64 = k.v(8, 4); N64 = k.v(8, 4); C32 = k.v(8, 4); S32 = k.v(8, 4); N32 = k.v(8, 4)
    FC = k.v(8, 2); FS = k.v(8, 2); IC = k.v(8, 2); IS = k.v(8, 2)
    ang = k.v(8, 4); tmp = k.v(4, 2); fq = k.v(); fg = k.v(); a0 = k.v(); fm = k.v(); sg = k.v()
    ssel0 = k.s(); ssel1 = k.s()
    G = X
    k(f"v_cvt_f32_u32 v{a0}, v{vl}")
    k(f"v_mul_f32 v{a0}, {fl(1/64)}, v{a0}")
    k(f"v_cos_f32 v{tmp}, v{a0}")
    k(f"v_sin_f32 v{tmp+1}, v{a0}")
    k(f"v_lshl_add_u32 v{fq}, v{vw}, 4, v{vm}")
    k(f"v_lshlrev_b32 v{a0}, 2, v{fq}")
    k(f"v_mul_u32_u24 v{ang}, v{a0}, v{vg}")
    k(f"v_lshlrev_b32 v{ang}, 3, v{ang}")
    k(f"v_cvt_pk_bf16_f32 v{sg}, v{tmp}, v{tmp+1}")
    for j in range(1, 8): k(f"v_add_u32 v{ang+j}, v{ang+j-1}, v{a0}")
    for j in range(8): k(f"ds_bpermute_b32 v{G+j}, v{ang+j}, v{sg}")
    k(f"v_lshlrev_b32 v{a0}, 3, v{vm}")
    k(f"v_mul_u32_u24 v{G+16}, v{a0}, v{vg}")
    k(f"v_lshlrev_b32 v{G+16}, 2, v{G+16}")
    for j in range(1, 4): k(f"v_add_u32 v{G+16+j}, v{G+16+j-1}, v{a0}")
    for j in range(4): k(f"ds_bpermute_b32 v{G+8+j}, v{G+16+j}, v{sg}")
    k(f"s_mov_b32 s{ssel0}, 0x05040100")
    k(f"s_mov_b32 s{ssel1}, 0x07060302")
    k(f"v_cvt_f32_u32 v{fq}, v{fq}")
    k(f"v_cvt_f32_u32 v{fg}, v{vg}")
    k(f"v_cvt_f32_u32 v{fm}, v{vm}")
    k(f"v_mul_f32 v{fg}, 4.0, v{fg}")
    def rot(oC, oS, iC, iS, d):
        k(f"v_pk_mul_f32 {vr(oC,2)}, {vr(iC,2)}, {vr(d,2)} op_sel_hi:[1,0]")
        k(f"v_pk_mul_f32 {vr(oS,2)}, {vr(iS,2)}, {vr(d,2)} op_sel_hi:[1,0]")
        k(f"v_pk_fma_f32 {vr(oC,2)}, {vr(iS,2)}, {vr(d,2)}, {vr(oC,2)} op_sel:[0,1,0] neg_lo:[1,0,0] neg_hi:[1,0,0]")
        k(f"v_pk_fma_f32 {vr(oS,2)}, {vr(iC,2)}, {vr(d,2)}, {vr(oS,2)} op_sel:[0,1,0]")
    T = G + 20
    k(f"v_mul_f32 v{a0}, {fl(1/2048)}, v{fq}")
    k(f"v_mul_f32 v{T}, v{a0}, v{fg}")
    k(f"v_add_f32 v{T+1}, v{T}, v{a0}")
    k(f"v_add_f32 v{T+2}, v{a0}, v{a0}")
    k(f"v_mul_f32 v{T+3}, {fl(16.0)}, v{a0}")
    for j in range(2):
        k(f"v_cos_f32 v{FC+j}, v{T+j}")
        k(f"v_sin_f32 v{FS+j}, v{T+j}")
    for j in range(2):
        k(f"v_cos_f32 v{T+4+2*j}, v{T+2+j}")
        k(f"v_sin_f32 v{T+5+2*j}, v{T+2+j}")
    rot(FC+2, FS+2, FC, FS, T+4)
    rot(FC+4, FS+4, FC, FS, T+6)
    rot(FC+6, FS+6, FC+2, FS+2, T+6)
    hoist(k, iw, ie, arg("H2", 0))
    k("s_waitcnt lgkmcnt(0)")
    k(f"v_and_b32 v{sg}, 1, v0")
    k(f"v_mul_u32_u24 v{sg}, 0x8000, v{sg}")
    k(f"v_lshl_or_b32 v{sg}, v{sg}, 16, v{sg}")
    for p in range(4):
        k(f"v_perm_b32 v{C64+p}, v{G+2*p+1}, v{G+2*p}, s{ssel0}")
        k(f"v_perm_b32 v{S64+p}, v{G+2*p+1}, v{G+2*p}, s{ssel1}")
    for p in range(4):
        k(f"v_xor_b32 v{C64+4+p}, v{sg}, v{C64+p}")
        k(f"v_xor_b32 v{S64+4+p}, v{sg}, v{S64+p}")
        k(f"v_xor_b32 v{N64+p}, 0x80008000, v{S64+p}")
        k(f"v_xor_b32 v{N64+4+p}, 0x80008000, v{S64+4+p}")
    for p in range(2):
        k(f"v_perm_b32 v{C32+p}, v{G+8+2*p+1}, v{G+8+2*p}, s{ssel0}")
        k(f"v_perm_b32 v{S32+p}, v{G+8+2*p+1}, v{G+8+2*p}, s{ssel1}")
    for p in range(2):
        k(f"v_xor_b32 v{C32+2+p}, v{sg}, v{C32+p}")
        k(f"v_xor_b32 v{S32+2+p}, v{sg}, v{S32+p}")
    for p in range(4):
        k(f"v_xor_b32 v{C32+4+p}, 0x80000000, v{C32+p}")
        k(f"v_xor_b32 v{S32+4+p}, 0x80000000, v{S32+p}")
        k(f"v_xor_b32 v{N32+p}, 0x80008000, v{S32+p}")
        k(f"v_xor_b32 v{N32+4+p}, 0x00008000, v{S32+p}")
    k(f"v_cvt_f32_u32 v{tmp}, v{vw}")
    k(f"v_fmamk_f32 v{tmp}, v{tmp}, {fl(16.0)}, v{fg}")
    k(f"v_mul_f32 v{a0}, {fl(1/2048)}, v{fm}")
    for tt in range(2):
        if tt: k(f"v_add_f32 v{a0}, {fl(16/2048)}, v{a0}")
        k(f"v_mul_f32 v{T}, v{a0}, v{tmp}")
        k(f"v_add_f32 v{T+1}, v{T}, v{a0}")
        k(f"v_add_f32 v{T+2}, v{a0}, v{a0}")
        for j in range(2):
            k(f"v_cos_f32 v{IC+4*tt+j}, v{T+j}")
            k(f"v_sin_f32 v{IS+4*tt+j}, v{T+j}")
        k(f"v_cos_f32 v{T+4}, v{T+2}")
        k(f"v_sin_f32 v{T+5}, v{T+2}")
        for j in range(2):
            k(f"v_mul_f32 v{IC+4*tt+j}, s{ssc}, v{IC+4*tt+j}")
            k(f"v_mul_f32 v{IS+4*tt+j}, s{ssc}, v{IS+4*tt+j}")
        rot(IC+4*tt+2, IS+4*tt+2, IC+4*tt, IS+4*tt, T+4)
    vlw = k.v(); vlr = k.v(); vst = k.v()
    k(f"v_mul_u32_u24 v{vlr}, {RS}, v{vm}")
    k(f"v_lshl_add_u32 v{vlw}, v{vg}, 3, v{vlr}")
    k(f"v_lshl_add_u32 v{vlw}, v{vw}, 5, v{vlw}")
    k(f"v_lshl_add_u32 v{vlr}, v{vg}, 4, v{vlr}")
    k(f"v_and_b32 v{vst}, 14, v0")
    k(f"v_lshl_add_u32 v{vst}, v{vw}, 4, v{vst}")
    k(f"v_lshl_add_u32 v{vst}, v{vst}, 2, v{vg}")
    k(f"v_mul_u32_u24 v{vst}, {T2_STRIDE}, v{vst}")
    k(f"v_and_b32 v{tmp}, 1, v0")
    k(f"v_lshl_add_u32 v{vst}, v{tmp}, 4, v{vst}")
    k(f"s_lshl_b32 s{st}, s{skc}, 5")
    k(f"s_add_u32 s{su}, s{st}, {4*T2_STRIDE}")
    RA = FC - 0 if False else k.v(4)
    k(f"v_lshlrev_b32 v{tmp}, 1, v{vg}")
    k(f"v_xor_b32 v{tmp}, v{tmp}, v{vm}")
    k(f"v_lshlrev_b32 v{tmp}, 4, v{tmp}")
    k(f"v_lshl_add_u32 v{RA}, v{vm}, 8, v{tmp}")
    k(f"v_xor_b32 v{RA+1}, 16, v{RA}")
    k(f"v_xor_b32 v{RA+2}, 128, v{RA}")
    k(f"v_xor_b32 v{RA+3}, 144, v{RA}")
    D = k.v(16, 4)
    E = X + 16; B = ang
    k.stamp_mid(0)
    k("s_waitcnt vmcnt(2)")
    k.stamp_mid(8)
    k("s_barrier")
    k.stamp_mid(9)
    for t in range(2):
        for kk in range(2):
            for o in range(2):
                k(f"ds_read_b128 {vr(X+16*o+8*t+4*kk,4)}, v{RA+2*kk+o} offset:{XL + 4096*t}")
    for t in range(2):
        for kk in range(2):
            k(f"s_waitcnt lgkmcnt({6 - 4*t - 2*kk})")
            xr = X + 8*t + 4*kk; xi = xr + 16
            mfma(k, D + 4*t, xr, C64 + 4*kk, None if kk == 0 else D + 4*t)
            mfma(k, D + 8 + 4*t, xr, N64 + 4*kk, None if kk == 0 else D + 8 + 4*t)
            mfma(k, D + 4*t, xi, S64 + 4*kk, D + 4*t)
            mfma(k, D + 8 + 4*t, xi, C64 + 4*kk, D + 8 + 4*t)
    k.stamp_mid(1)
    for h in range(4): cmul_pk(k, E + 2*h, E + 8 + 2*h, D + 2*h, D + 8 + 2*h, FC + 2*h, FS + 2*h, -1)
    for o in range(2):
        for p in range(4): k(f"v_cvt_pk_bf16_f32 v{B+4*o+p}, v{E+8*o+2*p}, v{E+8*o+2*p+1}")
    for T in range(2): mfma(k, D + 4*T, C32 + 4*T, B); mfma(k, D + 8 + 4*T, N32 + 4*T, B)
    for T in range(2): mfma(k, D + 4*T, S32 + 4*T, B + 4, D + 4*T); mfma(k, D + 8 + 4*T, C32 + 4*T, B + 4, D + 8 + 4*T)
    WR = X; WI = X + 8
    k.stamp_mid(2)
    k("s_waitcnt vmcnt(0)")
    for j in range(8):
        k(f"v_lshlrev_b32 v{WR+j}, 16, v{W+j}")
        k(f"v_and_b32 v{WI+j}, 0xffff0000, v{W+j}")
    for h in range(4): cmul_pk(k, E + 2*h, E + 8 + 2*h, D + 2*h, D + 8 + 2*h, WR + 2*h, WI + 2*h, +1)
    for o in range(2):
        for p in range(4): k(f"v_cvt_pk_bf16_f32 v{B+4*o+p}, v{E+8*o+2*p}, v{E+8*o+2*p+1}")
    for t in range(2): mfma(k, D + 4*t, B, C32 + 4*t); mfma(k, D + 8 + 4*t, B, S32 + 4*t)
    for t in range(2): mfma(k, D + 4*t, B + 4, N32 + 4*t, D + 4*t); mfma(k, D + 8 + 4*t, B + 4, C32 + 4*t, D + 8 + 4*t)
    for h in range(4): cmul_pk(k, E + 2*h, E + 8 + 2*h, D + 2*h, D + 8 + 2*h, IC + 2*h, IS + 2*h, +1)
    for o in range(2):
        for p in range(4): k(f"v_cvt_pk_bf16_f32 v{B+4*o+p}, v{E+8*o+2*p}, v{E+8*o+2*p+1}")
        for t in range(2): k(f"ds_write_b64 v{vlw}, {vr(B+4*o+2*t,2)} offset:{o*32*RS + t*16*RS}")
    k.stamp_mid(3)
    k("s_waitcnt lgkmcnt(0)")
    k("s_barrier")
    k.stamp_mid(4)
    for t in range(2):
        for kk in range(2):
            for o in range(2):
                k(f"ds_read_b128 {vr(X+16*o+8*t+4*kk,4)}, v{vlr} offset:{o*32*RS + t*16*RS + kk*64}")
    for t in range(2):
        for kk in range(2):
            k(f"s_waitcnt lgkmcnt({6 - 4*t - 2*kk})")
            xr = X + 8*t + 4*kk; xi = xr + 16
            mfma(k, D + 4*t, xr, C64 + 4*kk, None if kk == 0 else D + 4*t)
            mfma(k, D + 8 + 4*t, xr, S64 + 4*kk, None if kk == 0 else D + 8 + 4*t)
            mfma(k, D + 4*t, xi, N64 + 4*kk, D + 4*t)
            mfma(k, D + 8 + 4*t, xi, C64 + 4*kk, D + 8 + 4*t)
    k("s_mov_b32 vcc_lo, 0x55555555")
    k("s_mov_b32 vcc_hi, 0x55555555")
    for o in range(2):
        for p in range(4): k(f"v_cvt_pk_bf16_f32 v{B+4*o+p}, v{D+8*o+2*p}, v{D+8*o+2*p+1}")
    for p in range(4): k(f"v_cndmask_b32_dpp v{X+p}, v{B+4+p}, v{B+p}, vcc quad_perm:[1,0,3,2] row_mask:0xf bank_mask:0xf")
    k("s_not_b64 vcc, vcc")
    k(f"buffer_store_dwordx4 {vr(X,4)}, v{vst}, {sr(S2,4)}, s{st} offen")
    for p in range(4): k(f"v_cndmask_b32_dpp v{X+4+p}, v{B+p}, v{B+4+p}, vcc quad_perm:[1,0,3,2] row_mask:0xf bank_mask:0xf")
    k(f"buffer_store_dwordx4 {vr(X+4,4)}, v{vst}, {sr(S2,4)}, s{su} offen")
    k.stamp_mid(5)
    k.stamp_end(sws)
    k("s_endpgm")
    k.v.reset(1); k.s.reset(sws + 2)
    k.label("K2_side")
    if "NOCT=1" not in sys.argv: code_touch(k, 321, 60, 100, "k3_kernel")
    if arg("DJ", 1) and not W1_IN_K1:
        k(f"s_cmp_ge_u32 s2, {321 + NWG_W1}")
        k("s_cbranch_scc1 K2_done")
        if arg("JP", 2): k(f"s_setprio {arg('JP', 2)}")
        weight_job2(k, 321, sws)
        k.stamp_end(sws)
        k.label("K2_done")
        k("s_endpgm")
        return k, 321 + NWG_W1, 256, 64 * RS + 8192
    if arg("JP", 2): k(f"s_setprio {arg('JP', 2)}")
    k(f"s_cmp_ge_u32 s2, {321 + NWG_W2}")
    k("s_cbranch_scc1 K2_side2")
    weight_job(k, 321, 'w2', sws)
    k.stamp_end(sws)
    k("s_endpgm")
    k.label("K2_side2")
    if not W1_IN_K1:
        k(f"s_cmp_ge_u32 s2, {321 + NWG_W2 + NWG_W1}")
        k("s_cbranch_scc1 K2_done")
        weight_job(k, 321 + NWG_W2, 'w1', sws)
        k.stamp_end(sws)
        k.label("K2_done")
    NZ = 0
    if W1_IN_K1 and arg("ZT", 0):
        r = arg("ZR", 3); m = (8960 + 256*r - 1) // (256*r); NZ = 8 * m
        f0 = 321 + NWG_W2
        k(f"s_cmp_ge_u32 s2, {f0 + NZ}")
        k("s_cbranch_scc1 K2_done")
        k(f"s_sub_u32 s8, s2, {f0}")
        k(f"s_lshr_b32 s8, s8, 3")
        k(f"s_mul_i32 s8, s8, {256*r*128}")
        k(f"s_and_b32 s9, s2, 1")
        k(f"s_mul_i32 s9, s9, {8960*128}")
        k(f"v_lshlrev_b32 v1, 7, v0")
        k(f"v_add_u32 v1, s8, v1")
        k("s_waitcnt lgkmcnt(0)")
        k(f"s_add_u32 s12, s{sws}, s9")
        k(f"s_addc_u32 s13, s{sws+1}, 0")
        k(f"s_add_u32 s12, s12, {OFF_W1}")
        k(f"s_addc_u32 s13, s13, 0")
        k(f"s_mov_b32 s14, {8960*128}")
        k(f"s_mov_b32 s15, 0x20000")
        for i in range(r):
            k(f"buffer_load_dword v2, v1, s[12:15], 0 offen")
            if i < r - 1: k(f"v_add_u32 v1, {256*128}, v1")
        k.stamp_end(sws)
        k.label("K2_done")
    k("s_endpgm")
    return k, 321 + NWG_W2 + (NZ if W1_IN_K1 else NWG_W1), 256, 64 * RS + 8192
```

```python
from g_base import *
P = dict(NPF1=0, NPF2=0, DMA_A=8, T1=1, TS1=0, TU0=28, TU1=42, TU2=56, S1A=0, S1B=0, S2A=14, KM=12, RD=12, D0=16, E0=16, ERATE=4, POLL_LIMIT=400000, TD=0, TE=0, DW=3, DW0=70, DWMAX=40, XNT=0, WE=0, HA=4, T2S=0, T2M=0, HU=-2, DW1=140, VA=1, VB=1, NP=1, PSL=0, SUBF=0, BARP=1, HD=0, NPF3=0, SELF=0, H3=25)
for a in sys.argv:
    if '=' in a:
        n, v = a.split('='); P[n] = int(v)

class VM:
    def __init__(self, k): self.k = k; self.n = 0
    def __call__(self, line):
        self.k(line); self.n += 1; return self.n - 1
    def wait(self, idx, extra=""):
        c = min(63, self.n - idx - 1)
        self.k(f"s_waitcnt vmcnt({c})" + extra)

def interleave(k, start, groups):
    body = k.L[start:]; ok = []; full = True
    for i, l in enumerate(body):
        ok.append(full)
        t = l.strip()
        if t.startswith("s_mov_b32 exec"): full = False
        if t.startswith("s_mov_b64 exec, -1"): full = True
    pos = [i for i in range(len(body)) if ok[i]]
    out = []; n = len(groups); gi = 0
    step = len(pos) / (n + 0.5) if n else 1
    marks = {}
    for g in range(n): marks.setdefault(pos[int(g * step)], []).append(g)
    for i, l in enumerate(body):
        for g in marks.get(i, []): out += ["  " + x for x in groups[g]]
        out.append(l)
    k.L[start:] = out

def gen_k3():
    k = K("k3_kernel", 2); vm = VM(k)
    ZOFF = 322 * 32; STAT = 10368; STAGE = 10496; WB = 21504; BIAS = 20736; XB = WB + 25*1024
    sws = k.s(2, 2); sx = k.s(2, 2); sb1 = k.s(2, 2); sb2 = k.s(4, 4)
    k.stamp_start()
    k(f"s_load_dwordx2 {sr(sws,2)}, s[0:1], 80")
    k(f"s_load_dwordx2 {sr(sx,2)}, s[0:1], 0")
    k(f"s_load_dwordx2 {sr(sb1,2)}, s[0:1], 40")
    k(f"s_load_dwordx4 {sr(sb2,4)}, s[0:1], 56")
    k("s_cmp_ge_u32 s2, 256")
    k("s_cbranch_scc1 K3_done")
    SWS = k.s(4, 4); SA = k.s(4, 4); SB = k.s(4, 4); SC = k.s(4, 4)
    sG = k.s(); sj = k.s(); sblk = k.s(); st = k.s(); su = k.s(); sw = k.s(); stau = k.s(); stt = k.s(); sxo = k.s(); sm = k.s(); sw1 = k.s(); sw1m = k.s()
    sfl = k.s(); scnt = k.s(); sT = k.s(); sW2 = k.s(); sl0 = k.s(); sl1 = k.s(); so = k.s(); so2 = k.s(); sH = k.s(); sc5 = k.s(); sW2t = k.s()
    k(f"s_bfe_u32 s{sG}, s2, 0x20001")
    k(f"s_lshl_b32 s{sG}, s{sG}, 2")
    k(f"s_lshr_b32 s{st}, s2, 6")
    k(f"s_add_u32 s{sG}, s{sG}, s{st}")
    k(f"s_and_b32 s{su}, s2, 1")
    k(f"s_lshl_b32 s{st}, s{su}, 3")
    k(f"s_bfe_u32 s{sj}, s2, 0x30003")
    k(f"s_add_u32 s{sj}, s{sj}, s{st}")
    k(f"s_lshl_b32 s{st}, s{su}, 2")
    k(f"s_bfe_u32 s{sc5}, s2, 0x20003")
    k(f"s_add_u32 s{sc5}, s{sc5}, s{st}")
    k(f"s_lshl_b32 s{sblk}, s{sG}, 4")
    k(f"s_add_u32 s{sblk}, s{sblk}, s{sj}")
    vl16 = k.v(); vl16b = k.v(); vm_ = k.v(); vg = k.v(); vF = k.v(); vP = k.v(); vtc = k.v(); PRG = [vP] + [k.v() for _ in range(P['NP'] - 1)]; emark = k.v.mark(); BI = k.v(16, 4); A139 = k.v(4, 4)
    vmark = k.v.mark()
    vw = k.v(); vda = k.v(); vxa = k.v(); vxl = k.v(); t2 = k.v(); t3 = k.v(); vb = k.v()
    s1280 = k.s()
    k(f"s_movk_i32 s{s1280}, 1280")
    k(f"v_lshrrev_b32 v{vw}, 6, v0")
    k(f"v_lshlrev_b32 v{vda}, 4, v0")
    k(f"v_readfirstlane_b32 s{sw}, v{vw}")
    k(f"v_and_b32 v{vm_}, 15, v0")
    k(f"v_bfe_u32 v{vg}, v0, 4, 2")
    k(f"v_and_b32 v{vl16}, 0x3f0, v{vda}")
    k(f"s_and_b32 s{stau}, s{sw}, 1")
    k(f"s_lshr_b32 s{stt}, s{sw}, 1")
    k(f"s_lshr_b32 s{st}, s{sblk}, 2")
    k(f"s_lshl_b32 s{st}, s{st}, 5")
    k(f"s_and_b32 s{su}, s{sblk}, 3")
    k(f"s_lshl_b32 s{su}, s{su}, 2")
    k(f"s_add_u32 s{st}, s{st}, s{su}")
    k(f"s_mul_i32 s{sxo}, s{st}, 1280")
    k(f"v_lshlrev_b32 v{t2}, 4, v{vg}")
    k(f"v_xor_b32 v{vxa}, v{t2}, v{vda}")
    k(f"s_cmp_ge_u32 s{sw}, 1")
    k(f"s_cselect_b32 s{so}, {12*1280}, 0")
    k(f"s_add_u32 s{so}, s{so}, s{sxo}")
    k(f"s_add_u32 s{so}, s{so}, 4096")
    k(f"s_add_u32 s{so2}, s{sxo}, {8192 + 12*1280}")
    k(f"v_and_b32 v{t3}, 3, v0")
    k(f"s_sub_u32 s{su}, s{sj}, 12")
    k(f"s_cmp_ge_u32 s{sj}, 12")
    k(f"s_cselect_b32 s{su}, s{su}, s{sj}")
    k(f"s_lshl_b32 s{su}, s{su}, 5")
    k(f"s_add_u32 s{su}, s{su}, {96*32 - 192}")
    k(f"s_mul_i32 s{st}, s{sj}, 192")
    k(f"v_lshrrev_b32 v{vb}, 2, v{vl16}")
    k(f"v_mov_b32 v{vxl}, s{su}")
    k(f"v_mov_b32 v{t2}, s{st}")
    k(f"v_cmp_eq_u32 vcc, 3, v{vg}")
    k(f"v_cndmask_b32 v{t2}, v{t2}, v{vxl}, vcc")
    k(f"v_add_u32 v{vb}, v{vb}, v{t2}")
    k(f"s_mul_i32 s{st}, s{sblk}, {T2_STRIDE}")
    k(f"s_lshl_b32 s{sm}, s{sw}, 10")
    k(f"s_mul_i32 s{sw1m}, s{sw}, 35")
    k(f"s_min_u32 s{sw1m}, s{sw1m}, 104")
    k(f"s_lshl_b32 s{sw1m}, s{sw1m}, 10")
    k(f"s_mul_i32 s{sw1}, s{sj}, {140*1024}")
    k(f"s_add_u32 s{sw1}, s{sw1}, {OFF_W1}")
    k(f"s_add_u32 s{sT}, s{sw1}, {139*1024}")
    k(f"s_add_u32 s{sw1}, s{sw1}, s{sw1m}")
    k(f"s_add_u32 s{sw1m}, s{sw1m}, {WB}")
    XM = k.v(10, 2)
    iw = len(k.L)
    k("s_waitcnt lgkmcnt(0)")
    k(f"s_add_u32 s{SA}, s{sws}, s{st}")
    k(f"s_addc_u32 s{SA+1}, s{sws+1}, 0")
    k(f"s_add_u32 s{SA}, s{SA}, {OFF_T2}")
    k(f"s_addc_u32 s{SA+1}, s{SA+1}, 0")
    k(f"s_mov_b32 s{SA+2}, {321*32}")
    k(f"s_mov_b32 s{SA+3}, 0x20000")
    for it in range(3):
        k(f"s_add_u32 m0, s{sm}, {4096*it}")
        k(f"s_movk_i32 s{su}, {4096*it}")
        iT2 = vm(f"buffer_load_dwordx4 v{vda}, {sr(SA,4)}, s{su} offen" + (" nt" if P['XNT'] & 2 else "") + " lds")
    k.srd(SB, sx, 2048*1280)
    xnt = " nt" if P['XNT'] & 1 else ""
    k(f"s_add_u32 m0, s{sm}, {XB}")
    k("s_nop 0")
    vm(f"buffer_load_dwordx4 v{vxa}, {sr(SB,4)}, s{sxo} offen{xnt} lds")
    k(f"s_add_u32 m0, s{sm}, {XB + 4096}")
    k(f"s_cmp_ge_u32 s{sw}, 2")
    iX = vm(f"buffer_load_dwordx4 v{vxa}, {sr(SB,4)}, s{so} offen{xnt} lds")
    k("s_cbranch_scc1 K3_nx")
    k(f"s_add_u32 m0, s{sm}, {XB + 8192}")
    k("s_nop 0")
    k(f"buffer_load_dwordx4 v{vxa}, {sr(SB,4)}, s{so2} offen{xnt} lds")
    k.label("K3_nx")
    k.srd(SWS, sws, 40*MB); k.srd(SC, sb1, 1728*2)
    k(f"s_movk_i32 m0, {BIAS}")
    k("s_nop 0")
    vm(f"buffer_load_dword v{vb}, {sr(SC,4)}, 0 offen" + (" nt" if P['XNT'] & 4 else "") + " lds")
    vm(f"buffer_load_dwordx4 {vr(A139,4)}, v{vl16}, {sr(SWS,4)}, s{sT} offen")
    if P['SELF']:
        code_touch(k, 0, 60, vP, "k3_kernel", P['SELF']); vm.n += 1
    k(f"s_lshr_b32 s{st}, s2, 6")
    k(f"s_lshl_b32 s{st}, s{st}, 2")
    k(f"s_add_u32 s{scnt}, s{st}, s{sw}")
    k(f"s_mul_i32 s{st}, s{scnt}, {70*128}")
    k(f"s_mul_i32 s{su}, s{sj}, {140*1024}")
    k(f"s_add_u32 s{st}, s{st}, s{su}")
    k(f"s_add_u32 s{sH}, s{st}, {OFF_W1}")
    k(f"v_lshlrev_b32 v{vtc}, 3, v{vl16}")
    if P['T1']:
        k.exec_mask((1 << 35) - 1)
        for i in range(2):
            vm(f"buffer_load_dword v{vP}, v{vtc}, {sr(SWS,4)}, s{sH} offen")
            if i < 1: k(f"s_add_u32 s{sH}, s{sH}, {35*128}")
        k.exec_all()
    k(f"s_bfe_u32 s{st}, s2, 0x10005")
    k(f"s_lshl_b32 s{st}, s{st}, 4")
    k(f"s_add_u32 s{st}, s{st}, s{scnt}")
    k(f"s_mul_i32 s{st}, s{st}, {23*128}")
    k(f"s_mul_i32 s{su}, s{sc5}, {270*1024}")
    k(f"s_add_u32 s{st}, s{st}, s{su}")
    k(f"s_add_u32 s{sH}, s{st}, {OFF_W2}")
    def touch2():
        k.exec_mask((1 << 23) - 1)
        vm(f"buffer_load_dword v{vP}, v{vtc}, {sr(SWS,4)}, s{sH} offen")
        k.exec_all()
        k(f"s_add_u32 s{sH}, s{sH}, {90*1024}")
    ntouch = [0]
    def touchN(n):
        for _ in range(n):
            if ntouch[0] < 3: touch2(); ntouch[0] += 1
    touchN(P['T2S'])
    dma = []
    for i in range(35):
        g = []
        if i % 4 == 0:
            g.append(f"s_add_u32 m0, s{sw1m}, {1024*i}")
            if i: g.append(f"s_add_u32 s{sw1}, s{sw1}, 4096")
        g.append(f"buffer_load_dwordx4 v{vl16}, {sr(SWS,4)}, s{sw1} offen offset:{1024*(i%4)} lds")
        dma.append(g)
    def pf(start, n):
        gs = dma[:n]; del dma[:n]
        interleave(k, start, gs); vm.n += len(gs)
    c0 = len(k.L)
    MC = k.v(4, 4); MS = k.v(4, 4); MsC = k.v(4, 4); MnsS = k.v(4, 4)
    TC = k.v(6, 2)
    BM = k.v(4, 4); BL = k.v(16, 4)
    ang = k.v(8, 2); tmp = k.v(4, 2); fn = k.v(); fg = k.v(); a0 = k.v(); fm = k.v(); sg = k.v()
    k(f"v_cvt_f32_u32 v{fm}, v{vm_}")
    k(f"v_cvt_f32_u32 v{fg}, v{vg}")
    k(f"s_lshl_b32 s{sl0}, s{stt}, 4")
    k(f"v_cvt_f32_u32 v{fn}, s{sl0}")
    k(f"v_add_f32 v{fn}, v{fn}, v{fm}")
    k(f"v_mul_f32 v{a0}, {fl(1/32)}, v{fn}")
    k(f"v_mul_f32 v{ang}, {fl(8.0)}, v{fg}")
    k(f"v_mul_f32 v{ang}, v{ang}, v{a0}")
    for j in range(1, 8): k(f"v_add_f32 v{ang+j}, v{ang+j-1}, v{a0}")
    gen_cs8(k, ang, MC, MS, tmp)
    k(f"v_bfe_u32 v{sg}, v0, 5, 1")
    k(f"v_mul_u32_u24 v{sg}, 0x8000, v{sg}")
    k(f"v_lshl_or_b32 v{sg}, v{sg}, 16, v{sg}")
    k(f"v_xor_b32 v{t2}, 0x80008000, v{sg}")
    for p in range(4):
        k(f"v_xor_b32 v{MsC+p}, v{sg}, v{MC+p}")
        k(f"v_xor_b32 v{MnsS+p}, v{t2}, v{MS+p}")
    k(f"v_mul_f32 v{a0}, {fl(1/640)}, v{fn}")
    k(f"v_mul_f32 v{ang}, v{a0}, v{fg}")
    for T in range(1, 3): k(f"v_fmamk_f32 v{ang+T}, v{a0}, {fl(4.0*T)}, v{ang}")
    for T in range(3):
        k(f"v_cos_f32 v{TC+2*T}, v{ang+T}")
        k(f"v_sin_f32 v{TC+2*T+1}, v{ang+T}")
    for which in range(2):
        if which == 0: k(f"v_mul_f32 v{a0}, {fl(1/20)}, v{fm}")
        else:
            k(f"v_cvt_f32_u32 v{a0}, v{t3}")
            k(f"v_add_f32 v{a0}, {fl(16.0)}, v{a0}")
            k(f"v_mul_f32 v{a0}, {fl(1/20)}, v{a0}")
        k(f"v_mul_f32 v{ang}, v{a0}, v{fg}")
        for T in range(1, 3): k(f"v_fmamk_f32 v{ang+T}, v{a0}, {fl(4.0*T)}, v{ang}")
        dst = BM if which == 0 else ang + 4
        for T in range(3):
            k(f"v_cos_f32 v{tmp}, v{ang+T}")
            k(f"v_sin_f32_e64 v{tmp+1}, -v{ang+T}")
            k(f"v_cvt_pk_bf16_f32 v{dst+T}, v{tmp}, v{tmp+1}")
    assert P['NPF1'] == 0
    hoist(k, iw, c0, P['H3'])
    k(f"v_mov_b32 v{BM+3}, 0")
    for i in range(16): k(f"v_mov_b32 v{BL+i}, 0")
    k.exec_mask(0xFFFF000000000000)
    k(f"v_mov_b32 v{BM+2}, 0")
    k(f"v_mov_b32 v{ang+6}, 0")
    for i in range(4):
        k.exec_mask(0x000F000F000F000F << (4*i))
        for T in range(3): k(f"v_mov_b32 v{BL+4*i+T}, v{ang+4+T}")
    k.exec_all()
    AD = k.v(6); vsn = k.v()
    k(f"v_bfe_u32 v{t2}, v0, 2, 2")
    k(f"v_lshl_add_u32 v{t2}, v{vg}, 3, v{t2}")
    k(f"v_mad_u32_u24 v{t2}, v{t2}, 20, v{t3}")
    k(f"v_lshlrev_b32 v{t2}, 5, v{t2}")
    k(f"s_lshl_b32 s{su}, s{stau}, 3")
    k.exec_mask(0x00000000FFFFFFFF)
    k(f"v_add_u32 v{t2}, s{su}, v{t2}")
    for T in range(3):
        for jh in range(2): k(f"v_add_u32 v{AD+2*T+jh}, {(4*T + 80*jh)*32}, v{t2}")
    k.exec_mask(0xFFFFFFFF00000000)
    k(f"v_sub_u32 v{t2}, s{su}, v{t2}")
    for T in range(3):
        for jh in range(2): k(f"v_add_u32 v{AD+2*T+jh}, {(640 - 4*T - 80*jh)*32}, v{t2}")
    k.exec_mask(0x1111111000000000); k(f"v_mov_b32 v{AD+0}, {ZOFF}")
    k.exec_mask(0x1111111100000000); k(f"v_mov_b32 v{AD+1}, {ZOFF}")
    k.exec_mask(0x4444444400000000); k(f"v_mov_b32 v{AD+4}, {ZOFF}"); k(f"v_mov_b32 v{AD+5}, {ZOFF}")
    k.exec_all()
    SGA = k.v(4); sgl = k.v(); sr0 = k.v(); sr1 = k.v(); vsw = k.v(); vsr = k.v(); vsl = k.v()
    k(f"v_and_b32 v{t2}, 1, v{vg}")
    k(f"v_lshrrev_b32 v{vsn}, 1, v{vg}")
    k(f"s_lshl_b32 s{st}, s{stt}, 8")
    k(f"s_lshl_b32 s{su}, s{stau}, 6")
    k(f"s_add_u32 s{st}, s{st}, s{su}")
    k(f"v_lshl_add_u32 v{sgl}, v{vsn}, 7, s{st}")
    k(f"v_lshlrev_b32 v{SGA+1}, 4, v{vm_}")
    k(f"v_xor_b32 v{SGA}, v{sgl}, v{SGA+1}")
    k(f"v_lshl_add_u32 v{SGA}, v{vm_}, 9, v{SGA}")
    k(f"v_lshl_add_u32 v{SGA}, v{t2}, 3, v{SGA}")
    for i in range(1, 4): k(f"v_xor_b32 v{SGA+i}, {16*i}, v{SGA}")
    k(f"v_lshrrev_b32 v{sr0}, 2, v{vm_}")
    k(f"v_xor_b32 v{sr1}, v{sr0}, v{t3}")
    k(f"v_lshl_add_u32 v{sgl}, v{sr1}, 4, v{sgl}")
    k(f"v_lshl_add_u32 v{sgl}, v{t3}, 9, v{sgl}")
    k(f"v_lshl_add_u32 v{sgl}, v{t2}, 3, v{sgl}")
    k(f"v_add_u32 v{sgl}, {16*512}, v{sgl}")
    k(f"v_lshlrev_b32 v{vsw}, 4, v{t2}")
    k(f"v_lshl_add_u32 v{vsw}, v{vsn}, 3, v{vsw}")
    k(f"s_add_u32 s{st}, s{su}, {STAT}")
    k(f"v_mov_b32 v{vsr}, s{st}")
    k(f"s_lshl_b32 s{su}, s{stt}, 5")
    k(f"s_add_u32 s{su}, s{su}, s{st}")
    k(f"v_add_u32 v{vsw}, s{su}, v{vsw}")
    k(f"v_lshl_add_u32 v{vsl}, v{sr0}, 3, v{vsr}")
    k(f"v_lshrrev_b32 v{sr0}, 5, v0")
    k(f"v_lshlrev_b32 v{sr0}, 4, v{sr0}")
    k(f"v_xor_b32 v{sr0}, v{sr0}, v{vda}")
    k(f"v_xor_b32 v{sr1}, 128, v{sr0}")
    k(f"v_add_u32 v{vl16b}, 4096, v{vl16}")
    XA = k.v(4)
    k(f"s_lshl_b32 s{st}, s{stt}, 1")
    k(f"v_add_u32 v{vsn}, s{st}, v{vsn}")
    k(f"s_mul_i32 s{st}, s{stau}, 5120")
    k(f"s_add_u32 s{st}, s{st}, {XB}")
    assert P['NPF1'] + P['NPF2'] <= 25
    k(f"v_lshl_add_u32 v{t2}, v{t2}, 3, s{st}")
    k(f"v_lshl_add_u32 v{vxa}, v{vm_}, 6, v{t2}")
    k(f"v_lshrrev_b32 v{vxl}, 2, v{vm_}")
    for i in range(4):
        k(f"v_add_u32 v{XA+i}, {i}, v{vxl}")
        k(f"v_and_b32 v{XA+i}, 3, v{XA+i}")
        k(f"v_xor_b32 v{XA+i}, v{XA+i}, v{vsn}")
        k(f"v_lshl_add_u32 v{XA+i}, v{XA+i}, 4, v{vxa}")
    k(f"v_xor_b32 v{vb}, v{vxl}, v{vsn}")
    k(f"v_lshl_add_u32 v{t2}, v{vb}, 4, v{t2}")
    k(f"v_mad_u32_u24 v{t2}, v{vxl}, s{s1280}, v{t2}")
    k(f"v_lshl_add_u32 v{vxl}, v{t3}, 6, v{t2}")
    pf(c0, P['NPF1'])
    k(f"s_mul_i32 s{st}, s{sblk}, 10240")
    for S, off in ((SA, OFF_H), (SC, OFF_LN2)):
        k(f"s_add_u32 s{su}, s{st}, {off}")
        k(f"s_add_u32 s{S}, s{sws}, s{su}")
        k(f"s_addc_u32 s{S+1}, s{sws+1}, 0")
        k(f"s_mov_b32 s{S+2}, 10240")
    A = k.v(24, 4)
    if not P.get('CLK') and not P.get('ST2'): k.stamp_mid(0)
    vm.wait(iX)
    k("s_barrier")
    if not P.get('CLK'): k.stamp_mid(1)
    touchN(P['T2M'])
    c1 = len(k.L)
    for T in range(3):
        for o in range(2):
            for jh in range(2): k(f"ds_read_b64_tr_b16 {vr(A+8*T+4*o+2*jh,2)}, v{AD+2*T+jh} offset:{16*o}")
    for i in range(4): k(f"ds_read_b64 {vr(XM+2*i,2)}, v{XA+i} offset:{1280*i}")
    k(f"ds_read_b64 {vr(XM+8,2)}, v{vxl} offset:1024")
    DA = k.v(24, 4)
    for T in range(3):
        k(f"s_waitcnt lgkmcnt({13 - 4*T})")
        mfma(k, DA + 8*T, A + 8*T, MC); mfma(k, DA + 8*T + 4, A + 8*T, MS)
        mfma(k, DA + 8*T, A + 8*T + 4, MnsS, DA + 8*T); mfma(k, DA + 8*T + 4, A + 8*T + 4, MsC, DA + 8*T + 4)
    E = A; OP = k.v(16, 4)
    for i in range(4): k(f"v_mov_b32 v{OP+4*i+3}, 0")
    for T in range(3):
        for h in range(2):
            R = DA + 8*T + 2*h; I = R + 4; oR = E + 8*T + 2*h; oI = oR + 4; cs = TC + 2*T
            k(f"v_pk_mul_f32 {vr(oR,2)}, {vr(R,2)}, {vr(cs,2)} op_sel_hi:[1,0]")
            k(f"v_pk_mul_f32 {vr(oI,2)}, {vr(I,2)}, {vr(cs,2)} op_sel_hi:[1,0]")
            k(f"v_pk_fma_f32 {vr(oR,2)}, {vr(I,2)}, {vr(cs,2)}, {vr(oR,2)} op_sel:[0,1,0] neg_lo:[1,0,0] neg_hi:[1,0,0]")
            k(f"v_pk_fma_f32 {vr(oI,2)}, {vr(R,2)}, {vr(cs,2)}, {vr(oI,2)} op_sel:[0,1,0]")
        for i in range(4): k(f"v_cvt_pk_bf16_f32 v{OP+4*i+T}, v{E+8*T+i}, v{E+8*T+4+i}")
    Y = DA
    for i in range(4):
        mfma(k, Y + 4*i, OP + 4*i, BM)
    for i in range(4):
        mfma(k, Y + 16, OP + 4*i, BL + 4*i, None if i == 0 else Y + 16)
    pf(c1, P['NPF2'])
    XF = A
    k("s_waitcnt lgkmcnt(0)")
    for i in range(10):
        k(f"v_lshlrev_b32 v{XF+2*i}, 16, v{XM+i}")
        k(f"v_and_b32 v{XF+2*i+1}, 0xffff0000, v{XM+i}")
    HP = XM
    for i in range(10):
        k(f"v_pk_add_f32 {vr(XF+2*i,2)}, {vr(XF+2*i,2)}, {vr(Y+2*i,2)}")
    for i in range(10): k(f"v_cvt_pk_bf16_f32 v{HP+i}, v{XF+2*i}, v{XF+2*i+1}")
    ones = tmp; ST = k.v(10, 2)
    k(f"v_mov_b32 v{ones}, 0x3f803f80")
    for i in range(5):
        k(f"v_dot2_f32_bf16 v{ST+2*i}, v{HP+2*i}, v{ones}, 0")
        k(f"v_dot2_f32_bf16 v{ST+2*i+1}, v{HP+2*i}, v{HP+2*i}, 0")
    for i in range(5):
        k(f"v_dot2_f32_bf16 v{ST+2*i}, v{HP+2*i+1}, v{ones}, v{ST+2*i}")
        k(f"v_dot2_f32_bf16 v{ST+2*i+1}, v{HP+2*i+1}, v{HP+2*i+1}, v{ST+2*i+1}")
    for i in range(5): k(f"ds_write_b64 v{SGA+i if i < 4 else sgl}, {vr(HP+2*i,2)} offset:{STAGE}")
    for i in range(4):
        k.exec_mask(0x000F000F000F000F << (4*i))
        k(f"v_pk_add_f32 {vr(ST+2*i,2)}, {vr(ST+2*i,2)}, {vr(ST+8,2)}")
    k.exec_all()
    for q in range(2):
        k(f"v_permlane32_swap_b32 v{ST+q}, v{ST+2+q}")
        k(f"v_permlane32_swap_b32 v{ST+4+q}, v{ST+6+q}")
    k(f"v_pk_add_f32 {vr(ST,2)}, {vr(ST,2)}, {vr(ST+2,2)}")
    k(f"v_pk_add_f32 {vr(ST+4,2)}, {vr(ST+4,2)}, {vr(ST+6,2)}")
    for q in range(2): k(f"v_permlane16_swap_b32 v{ST+q}, v{ST+4+q}")
    k(f"v_pk_add_f32 {vr(ST,2)}, {vr(ST,2)}, {vr(ST+4,2)}")
    un = 0
    for sh in (8, 4, 2, 1):
        for q in range(2): k(f"v_add_f32_dpp v{ST+q}, v{ST+q}, v{ST+q} row_ror:{sh} row_mask:0xf bank_mask:0xf")
        for i in (un,):
            k(f"v_lshlrev_b32 v{XF+2*i}, 16, v{HP+i}")
            k(f"v_and_b32 v{XF+2*i+1}, 0xffff0000, v{HP+i}")
        un += 1
    k.exec_mask(0x0001000100010001)
    k(f"ds_write_b64 v{vsw}, {vr(ST,2)}")
    k.exec_all()
    for i in range(un, 10):
        k(f"v_lshlrev_b32 v{XF+2*i}, 16, v{HP+i}")
        k(f"v_and_b32 v{XF+2*i+1}, 0xffff0000, v{HP+i}")
    if not P.get('CLK'): k.stamp_mid(2)
    k("s_waitcnt lgkmcnt(0)")
    k("s_barrier")
    G = k.v(20, 4); Z = OP
    for t in range(2):
        for hh in range(2): k(f"ds_read_b128 {vr(G+8*t+4*hh,4)}, v{vsr} offset:{32*t+16*hh}")
    for t in range(2): k(f"ds_read_b64 {vr(G+16+2*t,2)}, v{vsl} offset:{32*t}")
    c2 = len(k.L)
    if not P['HD']:
        for it in range(3): k(f"ds_read_b128 {vr(Z+4*it,4)}, v{sr1 if it == 1 else sr0} offset:{STAGE + 4096*it}")
    k(f"s_movk_i32 s{st}, 4096")
    k(f"s_movk_i32 s{su}, 8192")
    k(f"s_waitcnt lgkmcnt({0 if P['HD'] else 3})")
    for i in range(4): k(f"v_pk_add_f32 {vr(ST+2*i,2)}, {vr(G+2*i,2)}, {vr(G+8+2*i,2)}")
    k(f"v_pk_add_f32 {vr(ST+8,2)}, {vr(G+16,2)}, {vr(G+18,2)}")
    if not P['HD']:
        k("s_waitcnt lgkmcnt(0)")
        for it in range(3): vm(f"buffer_store_dwordx4 {vr(Z+4*it,4)}, v{vda}, {sr(SA,4)}, {['0', 's%d' % st, 's%d' % su][it]} offen sc1")
    SCL = G
    chains = []
    for i in range(5):
        kk = K("tmp", 0); ln_stats(kk, ST+2*i, ST+2*i+1, SCL+2*i, SCL+2*i+1, Y + i); chains.append(kk.L)
    for j in range(len(chains[0])):
        for c in chains: k.L.append(c[j])
    LP = Y + 8
    for i in range(10):
        sc_ = SCL + 2*(i >> 1)
        k(f"v_pk_fma_f32 {vr(XF+2*i,2)}, {vr(XF+2*i,2)}, {vr(sc_,2)}, {vr(sc_,2)} op_sel:[0,0,1] op_sel_hi:[1,0,1]")
    for i in range(10):
        k(f"v_cvt_pk_bf16_f32 v{LP+i}, v{XF+2*i}, v{XF+2*i+1}")
        if i & 1: k(f"ds_write_b64 v{SGA+(i>>1) if i < 8 else sgl}, {vr(LP+i-1,2)}")
    pf(c2, P['NPF3'])
    k("s_waitcnt lgkmcnt(0)")
    k("s_barrier")
    Z2 = G
    for it in range(3): k(f"ds_read_b128 {vr(Z2+4*it,4)}, v{sr1 if it == 1 else sr0} offset:{4096*it}")
    k(f"s_mul_i32 s{sW2}, s{sc5}, 54")
    k(f"s_add_u32 s{sW2}, s{sW2}, s{sw}")
    k(f"s_mul_i32 s{sW2}, s{sW2}, 5120")
    k(f"s_add_u32 s{sW2}, s{sW2}, {OFF_W2}")
    k(f"s_lshl_b32 s{sfl}, s{sG}, 8")
    k(f"s_add_u32 s{sfl}, s{sfl}, {OFF_FL}")
    for it in range(3):
        k(f"s_waitcnt lgkmcnt({2-it})")
        iS = vm(f"buffer_store_dwordx4 {vr(Z2+4*it,4)}, v{vda}, {sr(SC,4)}, {['0', 's%d' % st, 's%d' % su][it]} offen sc1")
    if not P.get('CLK'): k.stamp_mid(3)
    if P['HD']:
        for it in range(3): k(f"ds_read_b128 {vr(Z+4*it,4)}, v{sr1 if it == 1 else sr0} offset:{STAGE + 4096*it}")
    def hstore():
        k(f"s_movk_i32 s{st}, 4096")
        k("s_waitcnt lgkmcnt(0)")
        for it in range(3): vm(f"buffer_store_dwordx4 {vr(Z+4*it,4)}, v{vda}, {sr(SA,4)}, {['0', 's%d' % st, 's%d' % su][it]} offen sc1")
    k.v.reset(vmark)
    W2V = [None]
    k.a(256)
    NORD = list(range(11)) + [13, 11, 12]
    def w2reg(i): return ar(4*i, 4) if i < 64 else vr(W2V[0] + 4*(i - 64), 4)
    w2next = [0]; w2idx = {}
    def w2issue(n):
        for z in range(n):
            i = w2next[0]
            if i >= 70: return
            s, b = divmod(i, 5)
            if b == 0: k(f"s_add_u32 s{sW2t}, s{sW2}, {NORD[s]*20480}")
            w2idx[i] = vm(f"buffer_load_dwordx4 {w2reg(i)}, v{vl16 if b < 4 else vl16b}, {sr(SWS,4)}, s{sW2t} offen offset:{1024*(b&3)}")
            w2next[0] += 1
    def dmaissue(n):
        for g in dma[:n]:
            for l in g: k(l)
            vm.n += 1
        del dma[:n]
    def seam(no, lastst, nA, nB, mid, filler, pregs):
        if no == 0: dmaissue(P['DMA_A'])
        w2issue(nA)
        vm.wait(lastst)
        k("s_barrier")
        if not P.get('CLK') or no: k.stamp_mid(mid)
        k(f"s_cmp_lg_u32 s{sw}, 0")
        k(f"s_cbranch_scc1 K3_nf{no}")
        k(f"s_lshl_b32 s{st}, s{sj}, 2")
        k(f"s_add_u32 s{st}, s{st}, s{sfl}")
        k(f"v_mov_b32 v{vP}, 1")
        k(f"v_mov_b32 v{vF}, 0")
        k("s_mov_b64 exec, 1")
        k(f"buffer_store_dword v{vP}, v{vF}, {sr(SWS,4)}, s{st} offen offset:{128*no} sc1")
        k.exec_all()
        k.label(f"K3_nf{no}")
        late = no == 0
        if no == 0 and P['HD']: hstore()
        if no == 0: dmaissue(35)
        if no == 0: touchN(P['TS1'])
        w2issue(nB)
        f0 = len(k.L); filler(late)
        if no == 1 and P['HU'] >= 0: hread()
        fill = k.L[f0:]; del k.L[f0:]
        NP = P['NP']; PR = pregs
        def poll(i): k(f"buffer_load_dword v{PR[i]}, v{vF}, {sr(SWS,4)}, s{sfl} offen offset:{128*no} sc1")
        if no == 0 and P['SUBF']:
            k(f"v_and_b32 v{vF}, 3, v0")
            k(f"s_lshl_b32 s{scnt}, s{sw}, 2")
            k(f"v_add_lshl_u32 v{vF}, v{vF}, s{scnt}, 2")
        else: k(f"v_lshlrev_b32 v{vF}, 2, v{vm_}")
        k(f"s_mov_b32 s{scnt}, 0")
        nch = max(NP - 1, 1); ch = (len(fill) + nch - 1) // nch
        for i in range(nch):
            if NP > 1: poll(i)
            k.L += fill[i*ch:(i+1)*ch]
            if P['PSL']: k(f"s_sleep {P['PSL']}")
        if no == 0 and late and not P['BARP']:
            k(f"s_waitcnt vmcnt({NP - 1})")
            k("s_barrier")
            for u in range(7): rdA(u)
        k.label(f"K3_p{no}")
        for i in range(NP):
            poll((i + NP - 1) % NP)
            if i == 0:
                k(f"s_add_u32 s{scnt}, s{scnt}, 1")
                k(f"s_cmp_gt_u32 s{scnt}, {P['POLL_LIMIT']}")
            k(f"s_waitcnt vmcnt({NP - 1})")
            if i == 0: k(f"s_cbranch_scc1 K3_x{no}")
            k(f"v_cmp_ne_u32 vcc, 1, v{PR[i]}")
            if i < NP - 1: k(f"s_cbranch_vccz K3_x{no}")
            else: k(f"s_cbranch_vccnz K3_p{no}")
        k.label(f"K3_x{no}")
        if not P.get('CLK') or no: k.stamp_mid(mid + 1)
        return late
    RD = P['RD']; KM = P['KM']
    vlr = k.v(3); vln = k.v(); vs1 = k.v(); ACC = k.v(56, 4); Af = k.v(56, 4); Bf = k.v(8*RD, 4); O = BI
    items = [(ks, b) for ks in range(KM) for b in range(7)] + [(ks, b) for b in (6, 0, 1, 2, 3, 4, 5) for ks in range(KM, 20)]
    lg = []
    def rdA(u):
        if u >= len(items): return
        ks, b = items[u]
        if (ks, b) == (19, 6): return
        off = (ks*7 + b) * 1024
        k(f"ds_read_b128 {vr(Af + 4*(u % 14), 4)}, v{vlr + (off >> 16)} offset:{off & 0xffff}")
        lg.append(u)
    def fillD(late):
        k(f"v_lshlrev_b32 v{vs1}, 3, v{vg}")
        for b in range(7): k(f"ds_read_b64 {vr(BI+2*b,2)}, v{vs1} offset:{BIAS + 32*b}")
        for i in range(3): k(f"v_add_u32 v{vlr+i}, {65536*i + WB}, v{vl16}")
        if not late:
            for u in range(7): rdA(u)
        k(f"v_lshrrev_b32 v{vs1}, 3, v{vm_}")
        k(f"v_mul_u32_u24 v{vln}, 10240, v{vs1}")
        k(f"v_lshl_add_u32 v{vln}, v{vg}, 7, v{vln}")
        k(f"v_and_b32 v{vs1}, 7, v{vm_}")
        k(f"v_lshl_add_u32 v{vln}, v{vs1}, 4, v{vln}")
        k(f"v_and_b32 v{vs1}, 1, v{vg}")
        k(f"v_lshlrev_b32 v{vs1}, 10, v{vs1}")
        k(f"v_lshl_add_u32 v{vs1}, v{vm_}, 4, v{vs1}")
        k(f"v_lshrrev_b32 v{ACC+4}, 1, v{vg}")
        k(f"v_lshl_add_u32 v{vs1}, v{ACC+4}, 8, v{vs1}")
        assert late
        k("s_waitcnt lgkmcnt(0)")
        for b in range(7):
            for q in range(2):
                k(f"v_lshlrev_b32 v{ACC+8*b+2*q}, 16, v{BI+2*b+q}")
                k(f"v_and_b32 v{ACC+8*b+2*q+1}, 0xffff0000, v{BI+2*b+q}")
        k(f"s_lshl_b32 s{st}, s{sG}, 2")
        k(f"s_add_u32 s{st}, s{st}, s{sw}")
        k(f"s_mul_i32 s{sl0}, s{st}, {4*10240}")
        k(f"s_add_u32 s{sl0}, s{sl0}, {OFF_LN2}")
        k(f"s_add_u32 s{sl1}, s{sl0}, {2*10240}")
        k(f"s_lshl_b32 s{st}, s{sG}, 1")
        k(f"s_add_u32 s{st}, s{st}, s{stt}")
        k(f"s_mul_i32 s{so}, s{st}, {54*4096}")
        k(f"s_lshl_b32 s{st}, s{stau}, 11")
        k(f"s_add_u32 s{so}, s{so}, s{st}")
        k(f"s_add_u32 s{so}, s{so}, {OFF_HP}")
        k(f"s_lshr_b32 s{st}, s{sj}, 1")
        k(f"s_add_u32 s{st}, s{st}, 48")
        k(f"s_lshl_b32 s{st}, s{st}, 12")
        k(f"s_add_u32 s{so2}, s{so}, s{st}")
        k(f"s_and_b32 s{st}, s{sj}, 1")
        k(f"s_lshl_b32 s{st}, s{st}, 9")
        k(f"s_add_u32 s{so2}, s{so2}, s{st}")
        k(f"s_mul_i32 s{st}, s{sj}, {3*4096}")
        k(f"s_add_u32 s{so}, s{so}, s{st}")
    B2L = 11264
    def hdma():
        t0 = t1 = vF
        k(f"s_bfe_u32 s{st}, s2, 0x10005")
        k(f"s_lshl_b32 s{su}, s{sG}, 1")
        k(f"s_add_u32 s{su}, s{su}, s{st}")
        k(f"s_lshl_b32 s{st}, s{su}, 2")
        k(f"s_add_u32 s{st}, s{st}, s{sw}")
        k(f"s_mul_i32 s{st}, s{st}, {2*10240}")
        k(f"s_mul_i32 s{su}, s{sc5}, 1280")
        k(f"s_add_u32 s{st}, s{st}, s{su}")
        k(f"s_add_u32 s{st}, s{st}, {OFF_H}")
        k(f"s_mul_i32 m0, s{sw}, 2816")
        k(f"v_cmp_gt_u32 vcc, 256, v{vl16}")
        vm(f"buffer_load_dwordx4 v{vl16}, {sr(SWS,4)}, s{st} offen sc1 lds")
        k(f"v_add_u32 v{t1}, {10240 - 1280}, v{vl16}")
        k(f"v_cndmask_b32 v{t1}, v{t1}, v{vl16}, vcc")
        vm(f"buffer_load_dwordx4 v{t1}, {sr(SWS,4)}, s{st} offen offset:1024 sc1 lds")
        k(f"s_add_u32 s{st}, s{st}, {10240 - 1280}")
        k.exec_mask(0xFFFFFFFF)
        vm(f"buffer_load_dwordx4 v{vl16}, {sr(SWS,4)}, s{st} offen offset:2048 sc1 lds")
        k.exec_all()
        k.srd(SB, sb2, 640*2)
        k(f"s_mul_i32 s{su}, s{sc5}, 160")
        k(f"s_movk_i32 m0, {B2L}")
        k(f"v_lshrrev_b32 v{t0}, 2, v{vl16}")
        vm(f"buffer_load_dword v{t0}, {sr(SB,4)}, s{su} offen lds")
    late = seam(0, iS, P['S1A'], P['S1B'], 4, fillD, PRG)
    bidx = {}
    bq = [(ks, rho) for ks in range(20) for rho in range(2)]
    def ldB():
        ks, rho = bq.pop(0)
        if rho == 0 and ks in (8, 16):
            k(f"s_add_u32 s{sl0}, s{sl0}, 4096"); k(f"s_add_u32 s{sl1}, s{sl1}, 4096")
        bidx[(ks, rho)] = vm(f"buffer_load_dwordx4 {vr(Bf + 8*(ks % RD) + 4*rho, 4)}, v{vln}, {sr(SWS,4)}, s{sl0 if rho == 0 else sl1} offen offset:{512*(ks & 7)} sc1")
    if P['TD']:
        k(f"s_and_b32 s{st}, s{sj}, 7")
        k(f"s_lshl_b32 s{st}, s{st}, 2")
        k(f"s_add_u32 s{st}, s{st}, s{sw}")
        k(f"s_mul_i32 s{st}, s{st}, {40*128}")
        k(f"s_mul_i32 s{su}, s{sG}, {16*10240}")
        k(f"s_add_u32 s{st}, s{st}, s{su}")
        k(f"s_add_u32 s{st}, s{st}, {OFF_LN2}")
        k.exec_mask((1 << 40) - 1)
        vm(f"buffer_load_dword v{vP}, v{vtc}, {sr(SWS,4)}, s{st} offen sc1")
        k.exec_all()
    for _ in range(P['D0']): ldB()
    if late and P['BARP']:
        k("s_barrier")
        for u in range(7): rdA(u)
    TCH = [P['TU0'], P['TU1'], P['TU2']][ntouch[0]:]
    waited = set(); vq = []
    lastS = None
    def epi(b):
        ops = []
        ob = O + 8*((b >> 1) & 1) if b < 6 else O + 8
        for rho in range(2):
            a = ACC + 8*b + 4*rho
            oo = (ob + 4*rho + 2*(b & 1)) if b < 6 else ob + 2*rho
            for r in range(4): ops.append(f"v_mul_f32_e64 v{a+r}, v{a+r}, |v{a+r}|")
            for q in range(2): ops.append(f"v_cvt_pk_bf16_f32 v{oo+q}, v{a+2*q}, v{a+2*q+1}")
            for q in range(2): ops.append(f"v_pk_max_i16 v{oo+q}, v{oo+q}, 0")
        if b == 6:
            for q in range(2): ops.append(f"v_permlane16_swap_b32 v{ob+q}, v{ob+2+q}")
            ops.append(("single", ob))
        elif b & 1:
            ops.append(("pair", ob, b >> 1))
        return ops
    def emit(op):
        nonlocal lastS
        if isinstance(op, str): k(op)
        elif op[0] == "single":
            k(f"s_cmp_ge_u32 s{sj}, 12")
            k("s_cbranch_scc1 K3_ns")
            k(f"buffer_store_dwordx4 {vr(op[1],4)}, v{vs1}, {sr(SWS,4)}, s{so2} offen sc1")
            k.label("K3_ns")
        else:
            for rho in range(2):
                lastS = vm(f"buffer_store_dwordx4 {vr(op[1]+4*rho,4)}, v{vl16}, {sr(SWS,4)}, s{so} offen offset:{1024*rho} sc1")
            if op[2] < 2: k(f"s_add_u32 s{so}, s{so}, 4096")
    for u, (ks, b) in enumerate(items):
        if ks not in waited:
            vm.wait(bidx[(ks, 1)]); waited.add(ks)
            if u == 0:
                k.stamp_mid(6)
        if P.get('CLK') == 1 and u in (0, 14, 28, 56, 98, 122): k.stamp_clk([0, 14, 28, 56, 98, 122].index(u))
        if (ks, b) == (19, 6): a = A139
        else:
            a = Af + 4*(u % 14)
            k(f"s_waitcnt lgkmcnt({len(lg) - lg.index(u) - 1})")
        bb = Bf + 8*(ks % RD); d = ACC + 8*b
        def valu(n):
            for _ in range(n):
                if vq and vq[0][0] <= u: emit(vq.pop(0)[1])
        mfma(k, d + 4, a, bb + 4, d if ks == 0 else d + 4)
        valu(P['VA'])
        rdA(u + 7)
        mfma(k, d, a, bb, d)
        valu(P['VB'])
        done_ks = ks if u < 7*KM else KM
        if bq and b in (1, 3, 5) and bq[0][0] < done_ks + RD: ldB()
        if u in TCH: touch2()
        if u == P['HU']: hdma()
        if P['DW'] and u % P['DW'] == P['DW'] - 1 and u >= P['DW0'] and u < P['DW1'] and w2next[0] < P['DWMAX']: w2issue(1)
        if u >= 7*KM and ks == 19:
            for op in epi(b): vq.append((u + 2, op))
    assert not bq
    while vq: emit(vq.pop(0)[1])
    k.stamp_mid(7)
    if P.get('CLK') == 1: k.stamp_clk(10)
    k.v.reset(emark)
    ED = 6
    vh = k.v(4); vq3 = k.v(3); vrr = k.v(); vo = k.v(3); vor = k.v(3); vow = k.v(); vhh = k.v(); vg8 = k.v(); t2 = k.v()
    W2V[0] = k.v(24, 4); ACC = k.v(80, 4); HR = k.v(16*ED, 4); HB = k.v(10, 2); BB = k.v(10, 2)
    srt = sl0; sho = sl1; sbo = so2
    def hread():
        for b in range(5):
            k(f"ds_read_b64 {vr(HB+2*b,2)}, v{vhh} offset:{256*b}")
            k(f"ds_read_b64 {vr(BB+2*b,2)}, v{vg8} offset:{B2L + 32*b}")
    def fillE(late):
        for q in range(4):
            k(f"s_add_u32 s{st}, s{sw}, {q}")
            k(f"s_and_b32 s{st}, s{st}, 3")
            k(f"s_lshl_b32 s{su}, s{st}, 10")
            k(f"v_add_u32 v{vh+q}, s{su}, v{vl16}")
            if q:
                k(f"s_mul_i32 s{su}, s{st}, {15*1024}")
                k(f"s_add_u32 s{su}, s{su}, {WB + (q-1)*5*1024}")
                k(f"v_add_u32 v{vq3+q-1}, s{su}, v{vl16}")
        k(f"s_mul_i32 s{su}, s{sw}, {15*1024}")
        k(f"s_add_u32 s{su}, s{su}, {WB}")
        k(f"v_add_u32 v{vrr}, s{su}, v{vl16}")
        k(f"s_bfe_u32 s{st}, s2, 0x10005")
        k(f"s_lshl_b32 s{srt}, s{sG}, 1")
        k(f"s_add_u32 s{srt}, s{srt}, s{st}")
        k(f"s_mul_i32 s{sH}, s{srt}, 54")
        k(f"s_add_u32 s{sH}, s{sH}, s{sw}")
        k(f"s_lshl_b32 s{sH}, s{sH}, 12")
        k(f"s_add_u32 s{sH}, s{sH}, {OFF_HP}")
        k.srd(SC, sb2+2, 2048*1280)
        k(f"s_lshl_b32 s{st}, s{srt}, 2")
        k(f"s_add_u32 s{st}, s{st}, s{sw}")
        k(f"s_lshr_b32 s{su}, s{st}, 1")
        k(f"s_lshl_b32 s{su}, s{su}, 5")
        k(f"s_and_b32 s{st}, s{st}, 1")
        k(f"s_lshl_b32 s{st}, s{st}, 3")
        k(f"s_add_u32 s{su}, s{su}, s{st}")
        k(f"s_mul_i32 s{so}, s{su}, 1280")
        k(f"s_mul_i32 s{sbo}, s{sc5}, 160")
        k(f"s_add_u32 s{so}, s{so}, s{sbo}")
        k(f"v_lshlrev_b32 v{vg8}, 3, v{vg}")
        k(f"s_mul_i32 s{su}, s{sw}, {16*176}")
        k(f"v_mul_u32_u24 v{vow}, 176, v{vm_}")
        k(f"v_add3_u32 v{vow}, v{vow}, v{vg8}, s{su}")
        for i in range(3):
            k(f"v_lshrrev_b32 v{t2}, 4, v{vl16}")
            if i: k(f"v_add_u32 v{t2}, {64*i}, v{t2}")
            k(f"v_mul_u32_u24 v{vhh}, 205, v{t2}")
            k(f"v_lshrrev_b32 v{vhh}, 11, v{vhh}")
            k(f"v_mul_u32_u24 v{vor+i}, 10, v{vhh}")
            k(f"v_sub_u32 v{t2}, v{t2}, v{vor+i}")
            k(f"v_lshlrev_b32 v{t2}, 4, v{t2}")
            k(f"v_mul_u32_u24 v{vor+i}, 176, v{vhh}")
            k(f"v_add3_u32 v{vor+i}, v{vor+i}, v{t2}, s{su}")
            k(f"v_and_b32 v{vo+i}, 3, v{vhh}")
            k(f"v_and_b32 v{HR}, 4, v{vhh}")
            k(f"v_lshl_add_u32 v{vo+i}, v{HR}, 2, v{vo+i}")
            k(f"v_and_b32 v{HR}, 8, v{vhh}")
            k(f"v_lshrrev_b32 v{HR}, 1, v{HR}")
            k(f"v_add_u32 v{vo+i}, v{vo+i}, v{HR}")
            k(f"v_mad_u32_u24 v{vo+i}, v{vo+i}, s{s1280}, v{t2}")
        k(f"v_bfe_u32 v{t2}, v0, 3, 1")
        if P['HU'] == -2:
            k(f"v_mul_u32_u24 v{vhh}, 10240, v{t2}")
            k.srd(SB, sb2, 640*2)
            k(f"s_lshl_b32 s{st}, s{srt}, 2")
            k(f"s_add_u32 s{st}, s{st}, s{sw}")
            k(f"s_mul_i32 s{sho}, s{st}, {2*10240}")
            k(f"s_mul_i32 s{st}, s{sc5}, 1280")
            k(f"s_add_u32 s{sho}, s{sho}, s{st}")
            k(f"s_add_u32 s{sho}, s{sho}, {OFF_H}")
        else:
            k(f"v_mov_b32 v{vhh}, s{su}")
            k(f"v_mad_u32_u24 v{vhh}, v{t2}, s{s1280}, v{vhh}")
        k(f"v_and_b32 v{t2}, 7, v0")
        k(f"v_lshl_add_u32 v{vhh}, v{t2}, 4, v{vhh}")
        k(f"v_lshrrev_b32 v{t2}, 1, v{vg}")
        k(f"v_lshl_add_u32 v{vhh}, v{t2}, 7, v{vhh}")
        k(f"v_and_b32 v{t2}, 1, v{vg}")
        k(f"v_lshl_add_u32 v{vhh}, v{t2}, 3, v{vhh}")
    P['S2A'] = min(P['S2A'], 64 - w2next[0])
    sys.stderr.write(f'w2 issued before seam2: {w2next[0]}\n')
    seam(1, lastS, P['S2A'], 70 - P['WE'] - P['S2A'] - w2next[0], 8, fillE, PRG)
    ndef = w2next[0]
    hq = [(s, q) for s in range(14) for q in range(4)]
    hidx = {}
    def ldH():
        s, q = hq.pop(0)
        if q == 0: k(f"s_add_u32 s{sT}, s{sH}, {NORD[s]*16384}")
        hidx[(s, q)] = vm(f"buffer_load_dwordx4 {vr(HR + 16*(s % ED) + 4*q, 4)}, v{vh+q}, {sr(SWS,4)}, s{sT} offen sc1")
    if P['TE']:
        k(f"s_and_b32 s{st}, s{sj}, 3")
        k(f"s_lshl_b32 s{st}, s{st}, 2")
        k(f"s_add_u32 s{st}, s{st}, s{sw}")
        k(f"s_mul_i32 s{st}, s{st}, {108*128}")
        k(f"s_mul_i32 s{su}, s{srt}, {54*4096}")
        k(f"s_add_u32 s{st}, s{st}, s{su}")
        k(f"s_add_u32 s{st}, s{st}, {OFF_HP}")
        k.exec_mask((1 << 54) - 1)
        vm(f"buffer_load_dword v{vP}, v{vtc}, {sr(SWS,4)}, s{st} offen sc1")
        k(f"s_add_u32 s{st}, s{st}, {54*128}")
        vm(f"buffer_load_dword v{vP}, v{vtc}, {sr(SWS,4)}, s{st} offen sc1")
        k.exec_all()
    for _ in range(P['E0']): ldH()
    groups = [(s, q) for s in range(12) for q in range(4)] + [(s, q) for q in (1, 2, 3, 0) for s in (12, 13)]
    donegrp = set(); cnt = 0; wq = []; extra = []
    iE = None
    if P['HU'] == -2:
        for b in range(5):
            extra.append(f"buffer_load_dwordx2 {vr(HB+2*b,2)}, v{vhh}, {sr(SWS,4)}, s{sho} offen offset:{256*b} sc1")
            extra.append(f"buffer_load_dwordx2 {vr(BB+2*b,2)}, v{vg8}, {sr(SB,4)}, s{sbo} offen offset:{32*b}")
    for gi, (s, q) in enumerate(groups):
        if (s, q) == (11, 0):
            assert not hq and w2next[0] == 70 and (P['HU'] >= 0 or iE is not None) and not extra, (hq, w2next)
            k(f"s_cmp_ge_u32 s{sw}, 2")
            k("s_cbranch_scc1 K3_sk")
        vm.wait(max(hidx[(s, q)], w2idx[5*s+4] if 5*s+4 >= ndef else 0))
        for b in range(5):
            d = ACC + 4*(5*q + b)
            cs = "0" if s == 0 else vr(d, 4)
            k(f"v_mfma_f32_16x16x32_bf16 {vr(d,4)}, {w2reg(5*s+b)}, {vr(HR + 16*(s % ED) + 4*q, 4)}, {cs}")
            cnt += 1
            if cnt % P['ERATE'] == 0 or (hq and hq[0][0] - s < 3):
                okH = hq and (hq[0][0] < ED or (hq[0][0] - ED, hq[0][1]) in donegrp)
                if okH and (hq[0][0] - s <= P['HA'] or w2next[0] == 70): ldH()
                elif w2next[0] < 70: w2issue(1)
                elif not hq and P['HU'] == -1 and iE is None:
                    hdma(); iE = vm.n - 1
                elif not hq and extra: iE = vm(extra.pop(0))
            if wq and wq[0][0] <= cnt: k(wq.pop(0)[1])
        donegrp.add((s, q))
        if (s, q) == (11, 3): k.label("K3_sk")
        if (s, q) == (13, 1) and P['HU'] == -1:
            vm.wait(iE); hread()
        if s == 13 and q:
            for b in range(5): wq.append((cnt + 2 + 2*b, f"ds_write_b128 v{vq3+q-1}, {vr(ACC+4*(5*q+b),4)} offset:{1024*b}"))
    while wq: k(wq.pop(0)[1])
    if not P.get('CLK'): k.stamp_mid(10)
    F = HR + 60
    if P['HU'] == -2: vm.wait(iE)
    else: k("s_waitcnt lgkmcnt(15)")
    for i in range(10):
        k(f"v_lshlrev_b32 v{F+2*i}, 16, v{HB+i}")
        k(f"v_and_b32 v{F+2*i+1}, 0xffff0000, v{HB+i}")
    k("s_waitcnt lgkmcnt(0)")
    k("s_barrier")
    k.stamp_mid(11)
    R = HR
    for i in range(15): k(f"ds_read_b128 {vr(R+4*i,4)}, v{vrr} offset:{1024*i}")
    for i in range(10): k(f"v_pk_add_f32 {vr(ACC+2*i,2)}, {vr(ACC+2*i,2)}, {vr(F+2*i,2)}")
    for i in range(10):
        k(f"v_lshlrev_b32 v{F+2*i}, 16, v{BB+i}")
        k(f"v_and_b32 v{F+2*i+1}, 0xffff0000, v{BB+i}")
    for i in range(10): k(f"v_pk_add_f32 {vr(ACC+2*i,2)}, {vr(ACC+2*i,2)}, {vr(F+2*i,2)}")
    OS = 176
    for src in range(3):
        for b in range(5):
            if src < 2 and b == 0: k(f"s_waitcnt lgkmcnt({10 - 5*src})")
            if src == 2: k(f"s_waitcnt lgkmcnt(4)")
            for q in range(2): k(f"v_pk_add_f32 {vr(ACC+4*b+2*q,2)}, {vr(ACC+4*b+2*q,2)}, {vr(R+20*src+4*b+2*q,2)}")
            if src == 2:
                for q in range(2): k(f"v_cvt_pk_bf16_f32 v{HB+2*b+q}, v{ACC+4*b+2*q}, v{ACC+4*b+2*q+1}")
                k(f"ds_write_b64 v{vow}, {vr(HB+2*b,2)} offset:{32*b}")
    k("s_waitcnt lgkmcnt(0)")
    for i in range(3): k(f"ds_read_b128 {vr(R+4*i,4)}, v{vor+i}")
    for i in range(3):
        k(f"s_waitcnt lgkmcnt({2-i})")
        if i == 2: k.exec_mask(0xFFFFFFFF)
        k(f"buffer_store_dwordx4 {vr(R+4*i,4)}, v{vo+i}, {sr(SC,4)}, s{so} offen" + (" nt" if P['XNT'] & 8 else "") + (" sc1" if P['XNT'] & 16 else "") + (" sc0" if P['XNT'] & 32 else ""))
    k.stamp_end(sws)
    k.label("K3_done")
    k("s_endpgm")
    return k, 256, 256, 160 * 1024
```

```python
from g_base import *
NWG_W1, NWG_W2 = 140, 135
W1_IN_K1 = "W1K1=1" in sys.argv
def weight_job(k, filt_first, kind, ws_s, split=False):
    m = k.v.mark(); sm = k.s.mark()
    ncol, ng, argoff, off, nfr = (1728, 28, 32, OFF_W1, 16*140) if kind == 'w1' else (640, 10, 48, OFF_W2, 8*270)
    njob = 560 if kind == 'w1' else 540
    sp = k.s(2, 2); S1 = k.s(4, 4); S2 = k.s(4, 4); sj = k.s(); sw = k.s(); sF = k.s(); sks = k.s(); st = k.s(); so = k.s(); ssel0 = k.s(); ssel1 = k.s(); sg = k.s(); sh = k.s()
    k(f"s_load_dwordx2 {sr(sp,2)}, s[0:1], {argoff}")
    vw = k.v(); vl = k.v(); vfq = k.v(); vg = k.v(); va = k.v(); vb = k.v(); vo = k.v(); vt = k.v(); vu = k.v()
    k(f"v_lshrrev_b32 v{vw}, 6, v0")
    k(f"v_and_b32 v{vl}, 63, v0")
    k(f"v_readfirstlane_b32 s{sw}, v{vw}")
    k(f"v_and_b32 v{vfq}, 15, v{vl}")
    k(f"v_lshrrev_b32 v{vg}, 4, v{vl}")
    k(f"s_sub_u32 s{sj}, s2, {filt_first}")
    k(f"s_lshl_b32 s{sj}, s{sj}, 2")
    k(f"s_add_u32 s{sj}, s{sj}, s{sw}")
    mul = (65536 + ng - 1)//ng
    k(f"s_mul_i32 s{sks}, s{sj}, {mul}")
    k(f"s_lshr_b32 s{sks}, s{sks}, 16")
    for j in range(560): assert (j * mul) >> 16 == j // ng
    k(f"s_mul_i32 s{st}, s{sks}, {ng}")
    k(f"s_sub_u32 s{sF}, s{sj}, s{st}")
    rowb = ncol * 2
    sd = k.s(4); sb = k.s(); sq = k.s()
    for e in range(4):
        k(f"s_lshl_b32 s{sb}, s{sF}, 2")
        if e: k(f"s_add_u32 s{sb}, s{sb}, {e}")
        if kind == 'w1':
            k(f"s_mul_i32 s{sq}, s{sb}, 43")
            k(f"s_lshr_b32 s{sq}, s{sq}, 8")
            k(f"s_mul_i32 s{sq}, s{sq}, 134")
            k(f"s_add_u32 s{sq}, s{sq}, s{sb}")
            k(f"s_mul_i32 s{sd+e}, s{sb}, 140")
            k(f"s_sub_u32 s{sd+e}, s{sd+e}, {96*140 - 6}")
            k(f"s_cmp_lt_u32 s{sb}, 96")
            k(f"s_cselect_b32 s{sd+e}, s{sq}, s{sd+e}")
        else:
            k(f"s_mul_i32 s{sq}, s{sb}, 52")
            k(f"s_lshr_b32 s{sq}, s{sq}, 8")
            k(f"s_mul_i32 s{sq}, s{sq}, 265")
            k(f"s_add_u32 s{sd+e}, s{sq}, s{sb}")
        k(f"s_lshl_b32 s{sd+e}, s{sd+e}, 10")
    k(f"s_mul_i32 s{so}, s{sks}, {(7 if kind == 'w1' else 5)*1024}")
    for e in range(4): k(f"s_add_u32 s{sd+e}, s{sd+e}, s{so}")
    if kind == 'w1':
        k(f"s_cmp_eq_u32 s{sF}, 27")
        k(f"s_cselect_b32 s{sF}, 24, s{sF}")
        k(f"s_mov_b32 s{sg}, {8*rowb}")
        k(f"s_mov_b32 s{sh}, {4*rowb}")
    else:
        k(f"s_cmp_ge_u32 s{sks}, 48")
        k(f"s_movk_i32 s{sg}, {4*rowb}")
        k(f"s_movk_i32 s{sh}, {16*rowb}")
        k(f"s_cselect_b32 s{sh}, s{sg}, s{sh}")
        k(f"s_cselect_b32 s{sg}, {8*rowb}, s{sg}")
    k(f"v_lshrrev_b32 v{vt}, 2, v{vfq}")
    k(f"v_lshlrev_b32 v{vu}, 12, v{vw}")
    k(f"v_lshl_add_u32 v{vt}, v{vt}, 10, v{vu}")
    k(f"v_lshl_add_u32 v{vt}, v{vg}, 8, v{vt}")
    k(f"v_and_b32 v{vo}, 3, v{vfq}")
    k(f"v_lshl_add_u32 v{vt}, v{vo}, 6, v{vt}")
    k(f"v_lshlrev_b32 v{vo}, 4, v{vl}")
    k(f"v_add_u32 v{vu}, v{vo}, v{vu}")
    k(f"v_mul_lo_u32 v{va}, v{vg}, s{sg}")
    k(f"v_lshl_add_u32 v{va}, v{vfq}, 3, v{va}")
    k(f"v_add_u32 v{vb}, s{sh}, v{va}")
    k(f"s_mul_i32 s{st}, s{sks}, {32*rowb}")
    k(f"s_lshl_b32 s{sF}, s{sF}, 7")
    k(f"s_add_u32 s{st}, s{st}, s{sF}")
    k(f"s_mov_b32 s{ssel0}, 0x05040100")
    k(f"s_mov_b32 s{ssel1}, 0x07060302")
    i1 = len(k.L)
    k("s_waitcnt lgkmcnt(0)")
    k.srd(S1, sp, 640*1728*2)
    k.srd(S2, ws_s, nfr*1024, off)
    if split and kind == 'w2':
        k(f"s_cmp_lt_u32 s{sj}, {njob}")
        k(f"s_cselect_b32 s{S1+2}, s{S1+2}, 0")
        k(f"s_cselect_b32 s{S2+2}, s{S2+2}, 0")
    X = k.v(16, 2); O = k.v(16, 4); vx = k.v(8)
    mod = {0: "", 1: " nt", 2: " sc1", 3: " sc0 sc1", 4: " sc1 nt", 5: " sc0 sc1 nt"}[arg("NTM", 1)] if arg("NT", 0) & 4 else ""
    for j in range(8):
        base = va if j < 4 else vb
        byte = (j & 3) * rowb
        if byte < 4096:
            k(f"buffer_load_dwordx2 {vr(X+2*j,2)}, v{base}, {sr(S1,4)}, s{st} offen offset:{byte}" + mod)
        else:
            k(f"v_add_u32 v{vx+j}, {byte}, v{base}")
            k(f"buffer_load_dwordx2 {vr(X+2*j,2)}, v{vx+j}, {sr(S1,4)}, s{st} offen" + mod)
    i2 = len(k.L)
    k("s_waitcnt vmcnt(0)")
    for e in range(4):
        for p in range(4):
            sel = ssel0 if (e & 1) == 0 else ssel1
            lo = X + 2*(2*p) + (e >> 1); hi = X + 2*(2*p+1) + (e >> 1)
            k(f"v_perm_b32 v{O+4*e+p}, v{hi}, v{lo}, s{sel}")
        k(f"ds_write_b128 v{vt}, {vr(O+4*e,4)} offset:{16*e}")
    k("s_waitcnt lgkmcnt(0)")
    for e in range(4): k(f"ds_read_b128 {vr(O+4*e,4)}, v{vu} offset:{1024*e}")
    for e in range(4):
        k(f"s_waitcnt lgkmcnt({3-e})")
        k(f"buffer_store_dwordx4 {vr(O+4*e,4)}, v{vo}, {sr(S2,4)}, s{sd+e} offen" + (" sc1" if arg("SC1", 0) & 2 else ""))
    if split: return i1, i2
    k.v.reset(m); k.s.reset(sm)

def weight_job2(k, first, ws_s):
    m = k.v.mark(); sm = k.s.mark()
    a0 = len(k.L); a1, a2 = weight_job(k, first, 'w1', ws_s, True); a3 = len(k.L)
    b1, b2 = weight_job(k, first, 'w2', ws_s, True); b3 = len(k.L)
    L = k.L
    fa = L[a2:a3]; fa[0] = "  s_waitcnt vmcnt(8)"
    fb = L[b2:b3]; fb[0] = "  s_waitcnt vmcnt(4)"
    k.L[a0:] = L[a0:a1] + L[a1:a2] + L[a3:b1] + L[b1:b2] + fa + fb
    k.v.reset(m); k.s.reset(sm)
```
